```python
import torch

def _softmax(x, axis=-1):
    return torch.softmax(x, dim=axis)
def _gelu(x):
    return torch.nn.functional.gelu(x, approximate="tanh")
def _silu(x):
    return torch.nn.functional.silu(x)
def _sigmoid(x):
    return torch.sigmoid(x)
def _layernorm(x, axis=-1, eps=1e-5):
    m = x.mean(dim=axis, keepdim=True)
    v = x.var(dim=axis, keepdim=True, unbiased=False)
    return (x - m) / torch.sqrt(v + eps)
def _scatter_add(tgt, idx, src, axis=0):
    return tgt.clone().index_add_(axis, idx, src)
def _segment_sum(src, seg, n):
    out = torch.zeros((n,) + src.shape[1:], dtype=src.dtype)
    return out.index_add_(0, seg, src)
def _pad(x, pw):
    flat = tuple(v for pair in reversed(pw) for v in pair)
    return torch.nn.functional.pad(x, flat)

kernel_name = 'gated_mix__softmax_full_mha__swiglu_ffn__prompt'

def setup_inputs():

    _w = (lambda a: (lambda t: t.to(torch.bfloat16) if t.is_floating_point() else t)(torch.as_tensor(a)))
    def _A_setup():
        B, S, D = 1, 2048, 1024
        return {
            "x": _w((lambda *s: torch.randn(*s, dtype=torch.bfloat16) * 0.05)(B, S, D)),
            "wqkv": _w((lambda *s: torch.randn(*s, dtype=torch.bfloat16) * 0.8)(D, 3 * D)),
            "wo": _w((lambda *s: torch.randn(*s, dtype=torch.bfloat16) * 0.05)(D, D)),
        }
    _A_in = _A_setup()

    def _B_setup():
        B, S, D, F = 1, 2048, 1024, 3584
        return {
            "x": _w((lambda *s: torch.randn(*s, dtype=torch.bfloat16) * 0.05)(B, S, D)),
            "w_gate": _w((lambda *s: torch.randn(*s, dtype=torch.bfloat16) * 0.1)(D, F)),
            "w_up": _w((lambda *s: torch.randn(*s, dtype=torch.bfloat16) * 0.1)(D, F)),
            "w_down": _w((lambda *s: torch.randn(*s, dtype=torch.bfloat16) * 0.1)(F, D)),
        }
    _B_in = _B_setup()

    return {
        "A_x": _A_in["x"],
        "A_wqkv": _A_in["wqkv"],
        "A_wo": _A_in["wo"],
        "B_x": _B_in["x"],
        "B_w_gate": _B_in["w_gate"],
        "B_w_up": _B_in["w_up"],
        "B_w_down": _B_in["w_down"],
        "gate_w": _w((lambda *s: torch.randn(*s, dtype=torch.bfloat16) * 0.05)(1024) * 16.0),
    }

def reference(A_x, A_wqkv, A_wo, B_x, B_w_gate, B_w_up, B_w_down, gate_w):
    def _A_ref(x, wqkv, wo):
        B, S, D = x.shape
        H = 32; Dh = D // H
        qkv = (lambda x, *d: x.permute(*d))((x @ wqkv).reshape(B, S, 3, H, Dh), 2, 0, 3, 1, 4)
        q, k, v = qkv[0], qkv[1], qkv[2]
        scale = Dh ** -0.5
        scores = torch.einsum("bhqd,bhkd->bhqk", q, k) * scale
        p = _softmax(scores, axis=-1)
        o = torch.einsum("bhqk,bhkd->bhqd", p, v)
        return (lambda x, *d: x.permute(*d))(o, 0, 2, 1, 3).reshape(B, S, D) @ wo

    def _B_ref(x, w_gate, w_up, w_down):
        g = _silu(x @ w_gate)
        u = x @ w_up
        return (g * u) @ w_down

    x = A_x
    g = _sigmoid((x * gate_w).sum(-1, keepdims=True))
    a = _A_ref(x, A_wqkv, A_wo)
    b = _B_ref(x, B_w_gate, B_w_up, B_w_down)
    return g * a + (1 - g) * b
```

```python
import struct
import sys

NAME = "gated_mix__softmax_full_mha__swiglu_ffn__prompt"

QF_BASE = 0
KV_BASE = 4 << 20
AF_BASE = 12 << 20
AF_KB = 288
G_BASE = AF_BASE + 64 * AF_KB * 1024
WS_USED = G_BASE + 2048 * 8

LOG2E = 1.4426950408889634
QSCALE = (32 ** -0.5) * LOG2E


def f32bits(x):
    return struct.unpack("<I", struct.pack("<f", x))[0]


class Asm:
    def __init__(self):
        self.lines = []

    def __call__(self, s):
        for ln in s.split("\n"):
            ln = ln.strip()
            if not ln:
                continue
            if ln.endswith(":") or ln.startswith("."):
                self.lines.append(ln)
            else:
                self.lines.append("    " + ln)

    def label(self, name):
        self.lines.append(name + ":")

    def text(self):
        return "\n".join(self.lines) + "\n"


def vr(base, n=4):
    return f"v[{base}:{base + n - 1}]"


def srd(a, dst, lo, nbytes):
    a(f"s_mov_b32 s{dst}, s{lo}")
    a(f"s_mov_b32 s{dst + 1}, s{lo + 1}")
    a(f"s_mov_b32 s{dst + 2}, {nbytes}")
    a(f"s_mov_b32 s{dst + 3}, 0x00020000")


def interleave(a, mains, fillers, start=0, per=2):
    fi = 0
    for i, m in enumerate(mains):
        a(m)
        if i >= start:
            for _ in range(per):
                if fi < len(fillers):
                    a(fillers[fi])
                    fi += 1
    while fi < len(fillers):
        a(fillers[fi])
        fi += 1


def kernel_header(a, name):
    a(f".globl {name}")
    a(".p2align 8")
    a(f".type {name},@function")
    a.label(name)


def descriptor(name, vgpr, sgpr, accum):
    return f""".p2align 6
.amdhsa_kernel {name}
  .amdhsa_next_free_vgpr {vgpr}
  .amdhsa_next_free_sgpr {sgpr}
  .amdhsa_accum_offset {accum}
  .amdhsa_group_segment_fixed_size 0
  .amdhsa_kernarg_size 88
  .amdhsa_user_sgpr_count 2
  .amdhsa_user_sgpr_kernarg_segment_ptr 1
  .amdhsa_system_sgpr_workgroup_id_x 1
.end_amdhsa_kernel
"""


def gen_k1(a):
    name = "k1_kernel"
    XBUF = [0, 32768]
    WBASE = 65536
    WSTRIDE = 40960
    S_X, S_QKV, S_G, S_U, S_WS, S_GW = 8, 12, 16, 20, 24, 28
    S_WAVE, S_W1024, S_ROWBLK, S_XCD, S_COLSUB = 32, 33, 34, 35, 36
    S_KX = 37
    S_WO = 38
    S_CNT = 43
    S_T0, S_T1, S_T2, S_T3 = 44, 45, 46, 47
    S_GVAL, S_OMG = 48, 49
    S_FU, S_QKU, S_VU = 50, 51, 52
    S_TOK = 53
    S_NL2E, S_QS = 54, 55
    S_E = 56
    ACC = 0
    FR = [160, 188]
    V_XA = 216
    V_WA = 220
    V_DX = 225
    V_DW6, V_DW7 = 229, 230
    V_LANE = 231
    V_L16 = 232
    V_T = 234

    def acc(slot, tb):
        return ACC + (slot * 2 + tb) * 16

    kernel_header(a, name)
    a("s_cmp_ge_u32 s2, 256")
    a("s_cbranch_scc1 L_k1_end")
    a("s_load_dwordx4 s[60:63], s[0:1], 0")
    a("s_load_dwordx4 s[64:67], s[0:1], 32")
    a("s_load_dwordx2 s[68:69], s[0:1], 56")
    a("s_load_dwordx2 s[70:71], s[0:1], 80")
    a(f"v_and_b32 v{V_LANE}, 63, v0")
    a(f"v_lshrrev_b32 v{V_T}, 6, v0")
    a(f"v_lshlrev_b32 v{V_L16}, 4, v{V_LANE}")
    a(f"v_readfirstlane_b32 s{S_WAVE}, v{V_T}")
    a(f"s_and_b32 s{S_XCD}, s2, 7")
    a(f"s_lshr_b32 s{S_COLSUB}, s2, 3")
    a(f"s_and_b32 s{S_COLSUB}, s{S_COLSUB}, 3")
    a(f"s_lshr_b32 s{S_ROWBLK}, s2, 5")
    a(f"s_lshl_b32 s{S_W1024}, s{S_WAVE}, 10")
    a("s_waitcnt lgkmcnt(0)")
    srd(a, S_X, 60, 2048 * 2048)
    srd(a, S_QKV, 62, 1024 * 6144)
    srd(a, S_G, 64, 1024 * 7168)
    srd(a, S_U, 66, 1024 * 7168)
    srd(a, S_GW, 68, 2048)
    srd(a, S_WS, 70, WS_USED)

    L = V_LANE
    T0, T1, T2, T3 = V_T, V_T + 1, V_T + 2, V_T + 3
    a(f"s_lshl_b32 s{S_T0}, s2, 3")
    a(f"s_add_u32 s{S_TOK}, s{S_T0}, s{S_WAVE}")
    a(f"s_lshl_b32 s{S_T0}, s{S_TOK}, 11")
    a(f"v_lshlrev_b32 v{T0}, 5, v{L}")
    a(f"buffer_load_dwordx4 v[0:3], v{T0}, s[{S_X}:{S_X+3}], s{S_T0} offen")
    a(f"buffer_load_dwordx4 v[4:7], v{T0}, s[{S_X}:{S_X+3}], s{S_T0} offen offset:16")
    a(f"buffer_load_dwordx4 v[8:11], v{T0}, s[{S_GW}:{S_GW+3}], 0 offen")
    a(f"buffer_load_dwordx4 v[12:15], v{T0}, s[{S_GW}:{S_GW+3}], 0 offen offset:16")

    a(f"s_and_b32 s{S_T0}, s{S_WAVE}, 1")
    a(f"s_lshl_b32 s{S_T0}, s{S_T0}, 2")
    a(f"v_lshrrev_b32 v{T0}, 4, v{L}")
    a(f"v_add_u32 v{T0}, s{S_T0}, v{T0}")
    a(f"v_and_b32 v{T1}, 7, v{L}")
    a(f"v_xor_b32 v{T0}, v{T0}, v{T1}")
    a(f"v_lshlrev_b32 v{T0}, 4, v{T0}")
    a(f"v_lshrrev_b32 v{T2}, 3, v{L}")
    a(f"s_lshl_b32 s{S_T0}, s{S_ROWBLK}, 8")
    a(f"s_lshl_b32 s{S_T1}, s{S_WAVE}, 3")
    a(f"s_add_u32 s{S_T0}, s{S_T0}, s{S_T1}")
    a(f"v_add_u32 v{T3}, s{S_T0}, v{T2}")
    a(f"v_lshlrev_b32 v{T3}, 11, v{T3}")
    a(f"v_add_u32 v{V_DX}, v{T3}, v{T0}")
    for j in range(1, 4):
        a(f"v_add_u32 v{V_DX + j}, {j * 64 * 2048}, v{V_DX}")
    a(f"v_lshrrev_b32 v{T0}, 2, v{L}")
    a(f"v_and_b32 v{T0}, 4, v{T0}")
    a(f"v_xor_b32 v{T0}, v{T0}, v{T1}")
    a(f"v_lshlrev_b32 v{T0}, 4, v{T0}")
    a(f"v_add_u32 v{T3}, s{S_T1}, v{T2}")
    a(f"v_mul_u32_u24 v{V_DW6}, 6144, v{T3}")
    a(f"v_add_u32 v{V_DW6}, v{V_DW6}, v{T0}")
    a(f"v_mul_u32_u24 v{V_DW7}, 7168, v{T3}")
    a(f"v_add_u32 v{V_DW7}, v{V_DW7}, v{T0}")
    a(f"s_lshr_b32 s{S_T0}, s{S_WAVE}, 1")
    a(f"s_lshl_b32 s{S_T0}, s{S_T0}, 13")
    a(f"v_and_b32 v{T0}, 31, v{L}")
    a(f"v_lshlrev_b32 v{T0}, 7, v{T0}")
    a(f"v_add_u32 v{T0}, s{S_T0}, v{T0}")
    a(f"v_lshrrev_b32 v{T1}, 1, v{L}")
    a(f"v_and_b32 v{T1}, 7, v{T1}")
    a(f"v_lshrrev_b32 v{T2}, 5, v{L}")
    a(f"v_xor_b32 v{T1}, v{T1}, v{T2}")
    for ks in range(4):
        a(f"v_xor_b32 v{T3}, {2 * ks}, v{T1}")
        a(f"v_lshlrev_b32 v{T3}, 4, v{T3}")
        a(f"v_add_u32 v{V_XA + ks}, v{T0}, v{T3}")
    a(f"v_lshrrev_b32 v{T0}, 5, v{L}")
    a(f"v_lshlrev_b32 v{T0}, 10, v{T0}")
    a(f"v_lshrrev_b32 v{T1}, 2, v{L}")
    a(f"v_and_b32 v{T1}, 3, v{T1}")
    a(f"v_lshlrev_b32 v{T2}, 7, v{T1}")
    a(f"v_add_u32 v{T0}, v{T0}, v{T2}")
    a(f"v_lshrrev_b32 v{T1}, 1, v{T1}")
    a(f"v_lshlrev_b32 v{T1}, 6, v{T1}")
    a(f"v_add_u32 v{T0}, v{T0}, v{T1}")
    a(f"v_lshlrev_b32 v{T1}, 1, v{L}")
    a(f"v_and_b32 v{T1}, 32, v{T1}")
    a(f"v_add_u32 v{T0}, v{T0}, v{T1}")
    a(f"v_and_b32 v{T1}, 3, v{L}")
    a(f"v_lshlrev_b32 v{T1}, 3, v{T1}")
    a(f"v_add_u32 v{T0}, v{T0}, v{T1}")
    a(f"v_add_u32 v{T0}, {WBASE}, v{T0}")
    a(f"s_and_b32 s{S_T2}, s{S_WAVE}, 1")
    a(f"s_mov_b32 s{S_NL2E}, {f32bits(-LOG2E):#x}")
    a(f"s_mov_b32 s{S_KX}, 0")
    a(f"s_cmp_eq_u32 s{S_COLSUB}, 3")
    a("s_cbranch_scc1 L_k1_O")

    for variant in ("E", "O"):
        a.label(f"L_k1_{variant}")
        if variant == "E":
            blocks = [S_G, S_U, S_G, S_U, S_QKV]
            a(f"s_mul_i32 s{S_E}, s{S_XCD}, 3")
            a(f"s_add_u32 s{S_E}, s{S_E}, s{S_COLSUB}")
            a(f"s_lshl_b32 s{S_WO}, s{S_E}, 8")
            a(f"s_mov_b32 s{S_WO+1}, s{S_WO}")
            a(f"s_add_u32 s{S_WO+2}, s{S_WO}, 128")
            a(f"s_mov_b32 s{S_WO+3}, s{S_WO+2}")
            a(f"s_lshl_b32 s{S_WO+4}, s{S_E}, 7")
            a(f"s_lshl_b32 s{S_T0}, s{S_T2}, 14")
            a(f"v_add_u32 v{V_WA}, s{S_T0}, v{T0}")
            a(f"v_add_u32 v{V_WA+1}, 8192, v{V_WA}")
            a(f"v_xor_b32 v{V_WA+2}, 64, v{V_WA}")
            a(f"v_xor_b32 v{V_WA+3}, 64, v{V_WA+1}")
            a(f"s_lshl_b32 s{S_T0}, s{S_T2}, 6")
            a(f"v_xor_b32 v{V_WA+4}, s{S_T0}, v{T0}")
            a(f"v_add_u32 v{V_WA+4}, {4*8192}, v{V_WA+4}")
            a(f"s_lshl_b32 s{S_FU}, s{S_E}, 2")
            a(f"s_lshl_b32 s{S_T0}, s{S_T2}, 1")
            a(f"s_add_u32 s{S_FU}, s{S_FU}, s{S_T0}")
            a(f"s_lshl_b32 s{S_QKU}, s{S_E}, 1")
            a(f"s_add_u32 s{S_QKU}, s{S_QKU}, s{S_T2}")
            swapped = [False] * 5
        else:
            blocks = [S_G, S_U, S_QKV, S_QKV, S_QKV]
            a(f"s_lshl_b32 s{S_WO}, s{S_XCD}, 7")
            a(f"s_add_u32 s{S_WO}, s{S_WO}, 6144")
            a(f"s_mov_b32 s{S_WO+1}, s{S_WO}")
            a(f"s_lshl_b32 s{S_WO+2}, s{S_XCD}, 7")
            a(f"s_add_u32 s{S_WO+2}, s{S_WO+2}, {24*128}")
            a(f"s_lshl_b32 s{S_WO+3}, s{S_XCD}, 8")
            a(f"s_add_u32 s{S_WO+3}, s{S_WO+3}, 4096")
            a(f"s_add_u32 s{S_WO+4}, s{S_WO+3}, 128")
            a(f"s_lshl_b32 s{S_T0}, s{S_T2}, 6")
            a(f"v_xor_b32 v{V_WA}, s{S_T0}, v{T0}")
            a(f"v_add_u32 v{V_WA+1}, 8192, v{V_WA}")
            a(f"v_add_u32 v{V_WA+2}, 16384, v{V_WA}")
            a(f"s_lshl_b32 s{S_T0}, s{S_T2}, 13")
            a(f"s_add_u32 s{S_T0}, s{S_T0}, {3*8192}")
            a(f"v_add_u32 v{V_WA+3}, s{S_T0}, v{T0}")
            a(f"v_xor_b32 v{V_WA+4}, 64, v{V_WA+3}")
            a(f"s_lshl_b32 s{S_FU}, s{S_XCD}, 1")
            a(f"s_add_u32 s{S_FU}, s{S_FU}, 96")
            a(f"s_add_u32 s{S_FU}, s{S_FU}, s{S_T2}")
            a(f"s_lshl_b32 s{S_QKU}, s{S_XCD}, 1")
            a(f"s_add_u32 s{S_QKU}, s{S_QKU}, 48")
            a(f"s_add_u32 s{S_QKU}, s{S_QKU}, s{S_T2}")
            a(f"s_lshl_b32 s{S_VU}, s{S_XCD}, 2")
            a(f"s_lshl_b32 s{S_T0}, s{S_T2}, 1")
            a(f"s_add_u32 s{S_VU}, s{S_VU}, s{S_T0}")
            swapped = [False, False, False, True, True]

        def dma_list(buf):
            out = []
            for j in range(4):
                out.append(f"s_add_u32 m0, s{S_W1024}, {XBUF[buf] + j * 8192}\ns_nop 0\n"
                           f"buffer_load_dwordx4 v{V_DX + j}, s[{S_X}:{S_X+3}], s{S_KX} offen lds")
            for p in range(5):
                sr = blocks[p]
                vd = V_DW6 if sr == S_QKV else V_DW7
                pitch = 6144 if sr == S_QKV else 7168
                out.append(f"s_add_u32 m0, s{S_W1024}, {WBASE + buf * WSTRIDE + p * 8192}\ns_nop 0\n"
                           f"buffer_load_dwordx4 v{vd}, s[{sr}:{sr+3}], s{S_WO + p} offen lds\n"
                           f"s_add_u32 s{S_WO + p}, s{S_WO + p}, {64 * pitch}")
            out[3] += f"\ns_add_u32 s{S_KX}, s{S_KX}, 128"
            return out

        def frag_reads(buf, ks, fs):
            out = []
            F = FR[fs]
            for tb in range(2):
                out.append(f"ds_read_b128 {vr(F + tb * 4)}, v{V_XA + ks} offset:{XBUF[buf] + tb * 4096}")
            for sl in range(5):
                for t in range(2):
                    out.append(f"ds_read_b64_tr_b16 {vr(F + 8 + sl * 4 + t * 2, 2)}, v{V_WA + sl} "
                               f"offset:{buf * WSTRIDE + (16 * ks + 4 * t) * 128}")
            order = [0, 2, 3, 1] + list(range(4, 12))
            return [out[i] for i in order]

        def mfmas(fs, first=False):
            out = []
            F = FR[fs]
            for sl in range(5):
                for tb in range(2):
                    X = vr(F + tb * 4)
                    W = vr(F + 8 + sl * 4)
                    A, B = (X, W) if swapped[sl] else (W, X)
                    c = "0" if first else vr(acc(sl, tb), 16)
                    out.append(f"v_mfma_f32_32x32x16_bf16 {vr(acc(sl, tb), 16)}, {A}, {B}, {c}")
            return out

        for d in dma_list(0):
            a(d)
        for d in dma_list(1):
            a(d)
        a("s_waitcnt vmcnt(18)")
        for i in range(8):
            a(f"v_lshlrev_b32 v{16 + 2*i}, 16, v{i}")
            a(f"v_and_b32 v{17 + 2*i}, 0xffff0000, v{i}")
            a(f"v_lshlrev_b32 v{32 + 2*i}, 16, v{8 + i}")
            a(f"v_and_b32 v{33 + 2*i}, 0xffff0000, v{8 + i}")
        for i in range(16):
            a(f"v_mul_f32 v{16 + i}, v{16 + i}, v{32 + i}")
        for i in range(8):
            a(f"v_cvt_pk_bf16_f32 v{i}, v{16 + 2*i}, v{17 + 2*i}")
        for i in range(8):
            a(f"v_lshlrev_b32 v{16 + 2*i}, 16, v{i}")
            a(f"v_and_b32 v{17 + 2*i}, 0xffff0000, v{i}")
        for st in (8, 4, 2, 1):
            for i in range(st):
                a(f"v_add_f32 v{16 + i}, v{16 + i}, v{16 + st + i}")
        for dpp in ("row_shr:1", "row_shr:2", "row_shr:4", "row_shr:8", "row_bcast:15 row_mask:0xa", "row_bcast:31 row_mask:0xc"):
            a("s_nop 1")
            a(f"v_add_f32_dpp v16, v16, v16 {dpp}" + ("" if "bcast" in dpp else " bound_ctrl:0"))
        a("s_nop 1")
        a("v_cvt_pk_bf16_f32 v17, v16, v16")
        a("v_and_b32 v17, 0xffff0000, v17")
        a(f"v_mul_f32 v17, s{S_NL2E}, v17")
        a("v_exp_f32 v17, v17")
        a("s_nop 0")
        a("v_add_f32 v17, 1.0, v17")
        a("v_rcp_f32 v17, v17")
        a("s_nop 0")
        a("v_cvt_pk_bf16_f32 v17, v17, v17")
        a("v_and_b32 v17, 0xffff0000, v17")
        a("v_sub_f32 v18, 1.0, v17")
        a("v_cvt_pk_bf16_f32 v18, v18, v18")
        a("v_and_b32 v18, 0xffff0000, v18")
        a("s_nop 0")
        a(f"v_readlane_b32 s{S_GVAL}, v17, 63")
        a(f"v_readlane_b32 s{S_OMG}, v18, 63")

        a("s_waitcnt vmcnt(9)")
        a("s_barrier")
        for r in frag_reads(0, 0, 0):
            a(r)

        def stage(buf, first=False, dma=True, last=False):
            for ks in range(3):
                a("s_waitcnt lgkmcnt(0)")
                fill = frag_reads(buf, ks + 1, (ks + 1) & 1)
                extra = []
                if not first and stage.pending:
                    n = 3 if ks == 0 else 3
                    extra = stage.pending[:n]
                    stage.pending = stage.pending[n:]
                ms = mfmas(ks & 1, first=(first and ks == 0))
                interleave(a, ms[:6], fill, per=2)
                interleave(a, ms[6:], extra, per=1)
            if last:
                a("s_waitcnt lgkmcnt(0)")
                for m in mfmas(1):
                    a(m)
                return
            a("s_waitcnt vmcnt(0) lgkmcnt(0)")
            a("s_barrier")
            fill = frag_reads(buf ^ 1, 0, 0)
            d = dma_list(buf) if dma else []
            stage.pending = d[3:]
            ms = mfmas(1)
            interleave(a, ms[:6], fill, per=2)
            interleave(a, ms[6:], d[:3], per=1)

        stage.pending = []
        stage(0, first=True)
        a(f"s_mov_b32 s{S_CNT}, 6")
        a(".p2align 6")
        a.label(f"L_k1_{variant}_loop")
        saved = list(stage.pending)
        stage(1)
        stage(0)
        assert stage.pending == saved
        a(f"s_sub_u32 s{S_CNT}, s{S_CNT}, 1")
        a(f"s_cmp_lg_u32 s{S_CNT}, 0")
        a(f"s_cbranch_scc1 L_k1_{variant}_loop")
        stage(1)
        stage(0, dma=False)
        stage(1, last=True)
        a("s_nop 15")

        a(f"s_lshl_b32 s{S_T0}, s{S_ROWBLK}, 3")
        a(f"s_and_b32 s{S_T1}, s{S_WAVE}, 6")
        a(f"s_add_u32 s{S_T0}, s{S_T0}, s{S_T1}")
        TB = S_T0
        tmp = FR[0]
        pk = [V_T, V_T + 8]
        npk = 0

        def store_tile(src, soff):
            nonlocal npk
            P = pk[npk & 1]
            npk += 1
            for d in range(8):
                a(f"v_cvt_pk_bf16_f32 v{P + d}, v{src + 2*d}, v{src + 2*d + 1}")
            a(f"buffer_store_dwordx4 {vr(P)}, v{V_L16}, s[{S_WS}:{S_WS+3}], s{soff} offen")
            a(f"buffer_store_dwordx4 {vr(P + 4)}, v{V_L16}, s[{S_WS}:{S_WS+3}], s{soff} offen offset:1024")

        qslot = 4 if variant == "E" else 2
        a(f"s_cmp_lt_u32 s{S_QKU}, 32")
        a(f"s_cselect_b32 s{S_QS}, {f32bits(QSCALE):#x}, 1.0")
        a(f"s_lshl_b32 s{S_T1}, s{S_QKU}, 17")
        a(f"s_lshl_b32 s{S_T2}, s{TB}, 11")
        a(f"s_add_u32 s{S_T1}, s{S_T1}, s{S_T2}")
        a(f"s_sub_u32 s{S_T3}, s{S_QKU}, 32")
        a(f"s_lshl_b32 s{S_T3}, s{S_T3}, 18")
        a(f"s_lshl_b32 s{S_T2}, s{TB}, 12")
        a(f"s_add_u32 s{S_T3}, s{S_T3}, s{S_T2}")
        a(f"s_add_u32 s{S_T3}, s{S_T3}, {KV_BASE}")
        a(f"s_cmp_lt_u32 s{S_QKU}, 32")
        a(f"s_cselect_b32 s{S_T1}, s{S_T1}, s{S_T3}")
        a(f"s_cselect_b32 s{S_T2}, 1, 2")
        a(f"s_lshl_b32 s{S_T2}, s{S_T2}, 11")
        a(f"s_add_u32 s{S_T2}, s{S_T1}, s{S_T2}")
        for tb in range(2):
            base = acc(qslot, tb)
            for r in range(16):
                a(f"v_mul_f32 v{base + r}, s{S_QS}, v{base + r}")
            store_tile(base, S_T1 if tb == 0 else S_T2)
        if variant == "O":
            for vi in range(2):
                a(f"s_add_u32 s{S_T1}, s{S_VU}, {vi}")
                a(f"s_lshl_b32 s{S_T1}, s{S_T1}, 18")
                a(f"s_lshl_b32 s{S_T2}, s{TB}, 12")
                a(f"s_add_u32 s{S_T1}, s{S_T1}, s{S_T2}")
                a(f"s_add_u32 s{S_T1}, s{S_T1}, {KV_BASE + 2048}")
                a(f"s_add_u32 s{S_T2}, s{S_T1}, 4096")
                for tb in range(2):
                    store_tile(acc(3 + vi, tb), S_T1 if tb == 0 else S_T2)
        pairs = [(0, 1), (2, 3)] if variant == "E" else [(0, 1)]
        for pi, (gs, us) in enumerate(pairs):
            a(f"s_mul_i32 s{S_T1}, s{TB}, {AF_KB}")
            a(f"s_add_u32 s{S_T2}, s{S_FU}, {pi}")
            a(f"s_lshl_b32 s{S_T2}, s{S_T2}, 1")
            a(f"s_add_u32 s{S_T1}, s{S_T1}, s{S_T2}")
            a(f"s_lshl_b32 s{S_T1}, s{S_T1}, 10")
            a(f"s_add_u32 s{S_T1}, s{S_T1}, {AF_BASE + 64 * 1024}")
            a(f"s_add_u32 s{S_T2}, s{S_T1}, {AF_KB * 1024}")
            for tb in range(2):
                G = acc(gs, tb)
                U = acc(us, tb)
                t = tmp + tb * 16
                for r in range(16):
                    a(f"v_mul_f32 v{t + r}, s{S_NL2E}, v{G + r}")
                for r in range(16):
                    a(f"v_exp_f32 v{t + r}, v{t + r}")
                for r in range(16):
                    a(f"v_add_f32 v{t + r}, 1.0, v{t + r}")
                for r in range(16):
                    a(f"v_rcp_f32 v{t + r}, v{t + r}")
                for r in range(16):
                    a(f"v_mul_f32 v{G + r}, v{G + r}, v{t + r}")
                for r in range(16):
                    a(f"v_mul_f32 v{G + r}, v{G + r}, v{U + r}")
                store_tile(G, S_T1 if tb == 0 else S_T2)
        a(f"v_mov_b32 v{tmp}, s{S_GVAL}")
        a(f"v_mov_b32 v{tmp + 1}, s{S_OMG}")
        a(f"s_lshl_b32 s{S_T1}, s{S_TOK}, 3")
        a(f"s_add_u32 s{S_T1}, s{S_T1}, {G_BASE}")
        a(f"v_mov_b32 v{tmp + 2}, 0")
        a(f"v_cmp_eq_u32 vcc, 0, v{V_LANE}")
        a("s_and_saveexec_b64 s[58:59], vcc")
        a(f"buffer_store_dwordx2 {vr(tmp, 2)}, v{tmp + 2}, s[{S_WS}:{S_WS+3}], s{S_T1} offen")
        a("s_endpgm")
    a.label("L_k1_end")
    a("s_endpgm")
    return name, (256, 512, 147456), descriptor(name, 256, 80, 256)


def gen_k2(a):
    name = "k2_kernel"
    STG = 32768
    NRING = 4
    S_WS = 8
    S_WAVE, S_HEAD, S_QBLK, S_SRC, S_LDS, S_CNT = 12, 13, 14, 15, 16, 17
    S_T0, S_T1, S_T2 = 18, 19, 20
    S_TOKB, S_KVB = 21, 22
    S_BIG = 23
    V_Q = 0
    V_K = 8
    V_V = 16
    V_S = [32, 48]
    V_C = 64
    V_O = 80
    V_P = 96
    V_L = 104
    V_ONE = 108
    V_L16 = 112
    V_KA, V_VA = 113, 114
    V_LANE = 115
    V_T = 116

    kernel_header(a, name)
    a("s_cmp_ge_u32 s2, 256")
    a("s_cbranch_scc1 L_k2_end")
    a("s_load_dwordx2 s[4:5], s[0:1], 80")
    a(f"v_and_b32 v{V_LANE}, 63, v0")
    a(f"v_lshrrev_b32 v{V_T}, 6, v0")
    a(f"v_lshlrev_b32 v{V_L16}, 4, v{V_LANE}")
    a(f"v_readfirstlane_b32 s{S_WAVE}, v{V_T}")
    a(f"s_and_b32 s{S_HEAD}, s2, 7")
    a(f"s_lshl_b32 s{S_HEAD}, s{S_HEAD}, 2")
    a(f"s_lshr_b32 s{S_T0}, s2, 3")
    a(f"s_and_b32 s{S_T0}, s{S_T0}, 3")
    a(f"s_add_u32 s{S_HEAD}, s{S_HEAD}, s{S_T0}")
    a(f"s_lshr_b32 s{S_QBLK}, s2, 5")
    a("s_waitcnt lgkmcnt(0)")
    srd(a, S_WS, 4, WS_USED)
    W = f"s[{S_WS}:{S_WS+3}]"
    a(f"s_lshl_b32 s{S_TOKB}, s{S_QBLK}, 3")
    a(f"s_add_u32 s{S_TOKB}, s{S_TOKB}, s{S_WAVE}")
    a(f"s_lshl_b32 s{S_T0}, s{S_HEAD}, 17")
    a(f"s_lshl_b32 s{S_T1}, s{S_TOKB}, 11")
    a(f"s_add_u32 s{S_T0}, s{S_T0}, s{S_T1}")
    a(f"buffer_load_dwordx4 {vr(V_Q)}, v{V_L16}, {W}, s{S_T0} offen")
    a(f"buffer_load_dwordx4 {vr(V_Q + 4)}, v{V_L16}, {W}, s{S_T0} offen offset:1024")
    a(f"s_lshl_b32 s{S_KVB}, s{S_HEAD}, 18")
    a(f"s_add_u32 s{S_KVB}, s{S_KVB}, {KV_BASE}")
    a(f"s_lshl_b32 s{S_LDS}, s{S_WAVE}, 12")
    a(f"s_add_u32 s{S_SRC}, s{S_KVB}, s{S_LDS}")

    def dma_stage():
        s = f"s_mov_b32 m0, s{S_LDS}\ns_nop 0\n"
        for i in range(4):
            s += f"buffer_load_dwordx4 v{V_L16}, {W}, s{S_SRC} offen offset:{i * 1024} lds\n"
        s += f"s_add_u32 s{S_SRC}, s{S_SRC}, {STG}\n"
        s += f"s_add_u32 s{S_LDS}, s{S_LDS}, {STG}\n"
        s += f"s_and_b32 s{S_LDS}, s{S_LDS}, {NRING * STG - 1}\n"
        return s

    for _ in range(3):
        a(dma_stage())
    a(f"v_lshrrev_b32 v{V_T}, 4, v{V_LANE}")
    a(f"v_lshrrev_b32 v{V_T+1}, 2, v{V_LANE}")
    a(f"v_xor_b32 v{V_T}, v{V_T}, v{V_T+1}")
    a(f"v_and_b32 v{V_T}, 1, v{V_T}")
    a(f"v_cmp_eq_u32 vcc, 0, v{V_T}")
    a(f"v_mov_b32 v{V_T+1}, 0x3f803f80")
    a("s_nop 1")
    a(f"v_cndmask_b32 v{V_ONE}, 0, v{V_T+1}, vcc")
    for i in range(1, 4):
        a(f"v_mov_b32 v{V_ONE + i}, v{V_ONE}")
    for i in range(16):
        a(f"v_mov_b32 v{V_O + i}, 0")
    for i in range(4):
        a(f"v_mov_b32 v{V_L + i}, 0")
    a(f"v_mov_b32 v{V_KA}, v{V_L16}")
    a(f"v_mov_b32 v{V_VA}, v{V_L16}")
    a(f"s_mov_b32 s{S_BIG}, {f32bits(2.0 ** 60):#x}")
    a("s_waitcnt vmcnt(8)")
    a("s_barrier")

    def rdK(blk):
        o = (blk % 8) * 4096
        return [f"ds_read_b128 {vr(V_K)}, v{V_KA} offset:{o}", f"ds_read_b128 {vr(V_K + 4)}, v{V_KA} offset:{o + 1024}"]

    def rdV(blk):
        o = (blk % 8) * 4096 + 2048
        return [f"ds_read_b128 {vr(V_V)}, v{V_VA} offset:{o}", f"ds_read_b128 {vr(V_V + 4)}, v{V_VA} offset:{o + 1024}"]

    def ring_adv(v):
        return f"v_add_u32 v{v}, {STG}, v{v}\nv_and_b32 v{v}, {NRING * STG - 1}, v{v}"

    def rowmax(dst, S, init=None):
        if init is None:
            a(f"v_max3_f32 v{dst}, v{S}, v{S+1}, v{S+2}")
            rest = list(range(3, 16))
        else:
            a(f"v_max3_f32 v{dst}, v{init}, v{S}, v{S+1}")
            rest = list(range(2, 16))
        while len(rest) >= 2:
            a(f"v_max3_f32 v{dst}, v{dst}, v{S + rest[0]}, v{S + rest[1]}")
            rest = rest[2:]
        if rest:
            a(f"v_max_f32 v{dst}, v{dst}, v{S + rest[0]}")

    def crosshalf_max(dst, tmp):
        a(f"v_mov_b32 v{tmp}, v{dst}")
        a("s_nop 1")
        a(f"v_permlane32_swap_b32 v{tmp}, v{dst}")
        a("s_nop 1")
        a(f"v_max_f32 v{dst}, v{dst}, v{tmp}")

    for r in rdK(0):
        a(r)
    for r in rdV(0):
        a(r)
    a("s_waitcnt lgkmcnt(2)")
    S0 = V_S[0]
    a(f"v_mfma_f32_32x32x16_bf16 {vr(S0, 16)}, {vr(V_K)}, {vr(V_Q)}, 0")
    a(f"v_mfma_f32_32x32x16_bf16 {vr(S0, 16)}, {vr(V_K + 4)}, {vr(V_Q + 4)}, {vr(S0, 16)}")
    for r in rdK(1):
        a(r)
    a("s_nop 15")
    rowmax(V_T, S0)
    crosshalf_max(V_T, V_T + 1)
    for i in range(16):
        a(f"v_sub_f32 v{V_C + i}, 0, v{V_T}")
    for i in range(16):
        a(f"v_sub_f32 v{S0 + i}, v{S0 + i}, v{V_T}")
    a(f"s_mov_b32 s{S_CNT}, 0")
    a(".p2align 6")
    a.label("L_k2_loop")
    for i in range(8):
        Sc = V_S[i & 1]
        Sn = V_S[(i + 1) & 1]
        if i == 6:
            a("s_waitcnt vmcnt(0)")
            a("s_barrier")
            a(f"s_cmp_ge_u32 s{S_CNT}, 5")
            a("s_cbranch_scc1 L_k2_nodma")
            a(dma_stage())
            a.label("L_k2_nodma")
            a(ring_adv(V_KA))
        ex = [f"v_exp_f32 v{Sc + r}, v{Sc + r}" for r in range(16)]
        cv = [f"v_cvt_pk_bf16_f32 v{V_P + d}, v{Sc + 2*d}, v{Sc + 2*d + 1}" for d in range(8)]
        a("s_waitcnt lgkmcnt(0)")
        a(f"v_mfma_f32_32x32x16_bf16 {vr(Sn, 16)}, {vr(V_K)}, {vr(V_Q)}, {vr(V_C, 16)}")
        for e in ex[0:4]:
            a(e)
        a(f"v_mfma_f32_32x32x16_bf16 {vr(Sn, 16)}, {vr(V_K + 4)}, {vr(V_Q + 4)}, {vr(Sn, 16)}")
        for r in rdK(i + 2):
            a(r)
        for e in ex[4:9]:
            a(e)
        for c in cv[0:4]:
            a(c)
        for e in ex[9:11]:
            a(e)
        a(f"v_mfma_f32_32x32x16_bf16 {vr(V_O, 16)}, {vr(V_V)}, {vr(V_P)}, {vr(V_O, 16)}")
        for e in ex[11:14]:
            a(e)
        a(f"v_mfma_f32_16x16x32_bf16 {vr(V_L)}, {vr(V_ONE)}, {vr(V_P)}, {vr(V_L)}")
        for e in ex[14:16]:
            a(e)
        for c in cv[4:8]:
            a(c)
        a("s_nop 1")
        a(f"v_mfma_f32_32x32x16_bf16 {vr(V_O, 16)}, {vr(V_V + 4)}, {vr(V_P + 4)}, {vr(V_O, 16)}")
        if i == 7:
            a(ring_adv(V_VA))
        for r in rdV(i + 1):
            a(r)
        a(f"v_mfma_f32_16x16x32_bf16 {vr(V_L)}, {vr(V_ONE)}, {vr(V_P + 4)}, {vr(V_L)}")
    a(f"s_add_u32 s{S_CNT}, s{S_CNT}, 1")
    a(f"s_cmp_lt_u32 s{S_CNT}, 8")
    a("s_cbranch_scc1 L_k2_loop")
    a("s_waitcnt lgkmcnt(0)")
    a("s_nop 15")

    a(f"v_max3_f32 v{V_T}, abs(v{V_O}), abs(v{V_O+1}), abs(v{V_O+2})")
    for i in range(3, 15, 2):
        a(f"v_max3_f32 v{V_T}, v{V_T}, abs(v{V_O+i}), abs(v{V_O+i+1})")
    a(f"v_max_f32 v{V_T}, v{V_T}, abs(v{V_O+15})")
    a(f"v_mov_b32 v{V_T+1}, 0x7f000000")
    a(f"v_cmp_lt_f32 vcc, v{V_T}, v{V_T+1}")
    a(f"v_cmp_gt_f32 s[24:25], s{S_BIG}, v{V_L}")
    for i in range(16):
        a(f"v_cmp_o_f32 s[26:27], v{V_O+i}, v{V_O+i}")
        a("s_and_b64 vcc, vcc, s[26:27]")
    a("s_and_b64 vcc, vcc, s[24:25]")
    a("s_cmp_eq_u64 vcc, exec")
    a("s_cbranch_scc0 L_k2_slow")
    a.label("L_k2_fin")
    a(f"v_rcp_f32 v{V_T}, v{V_L}")
    a(f"s_mul_i32 s{S_T0}, s{S_TOKB}, {AF_KB}")
    a(f"s_lshl_b32 s{S_T1}, s{S_HEAD}, 1")
    a(f"s_add_u32 s{S_T0}, s{S_T0}, s{S_T1}")
    a(f"s_lshl_b32 s{S_T0}, s{S_T0}, 10")
    a(f"s_add_u32 s{S_T0}, s{S_T0}, {AF_BASE}")
    for i in range(16):
        a(f"v_mul_f32 v{V_O + i}, v{V_O + i}, v{V_T}")
    for d in range(8):
        a(f"v_cvt_pk_bf16_f32 v{V_P + d}, v{V_O + 2*d}, v{V_O + 2*d + 1}")
    a(f"buffer_store_dwordx4 {vr(V_P)}, v{V_L16}, {W}, s{S_T0} offen")
    a(f"buffer_store_dwordx4 {vr(V_P + 4)}, v{V_L16}, {W}, s{S_T0} offen offset:1024")
    a.label("L_k2_end")
    a("s_endpgm")

    a.label("L_k2_slow")
    S0 = V_S[0]
    a(f"v_mov_b32 v{V_T}, 0xff800000")
    a(f"s_mov_b32 s{S_T0}, s{S_KVB}")
    a(f"s_mov_b32 s{S_CNT}, 0")
    a.label("L_k2_slow_max")
    a(f"buffer_load_dwordx4 {vr(V_K)}, v{V_L16}, {W}, s{S_T0} offen")
    a(f"buffer_load_dwordx4 {vr(V_K + 4)}, v{V_L16}, {W}, s{S_T0} offen offset:1024")
    a("s_waitcnt vmcnt(0)")
    a(f"v_mfma_f32_32x32x16_bf16 {vr(S0, 16)}, {vr(V_K)}, {vr(V_Q)}, 0")
    a(f"v_mfma_f32_32x32x16_bf16 {vr(S0, 16)}, {vr(V_K + 4)}, {vr(V_Q + 4)}, {vr(S0, 16)}")
    a("s_nop 15")
    rowmax(V_T, S0, init=V_T)
    a(f"s_add_u32 s{S_T0}, s{S_T0}, 4096")
    a(f"s_add_u32 s{S_CNT}, s{S_CNT}, 1")
    a(f"s_cmp_lt_u32 s{S_CNT}, 64")
    a("s_cbranch_scc1 L_k2_slow_max")
    crosshalf_max(V_T, V_T + 1)
    for i in range(16):
        a(f"v_sub_f32 v{V_C + i}, 0, v{V_T}")
        a(f"v_mov_b32 v{V_O + i}, 0")
    for i in range(4):
        a(f"v_mov_b32 v{V_L + i}, 0")
    a(f"s_mov_b32 s{S_T0}, s{S_KVB}")
    a(f"s_mov_b32 s{S_CNT}, 0")
    a.label("L_k2_slow_pv")
    a(f"buffer_load_dwordx4 {vr(V_K)}, v{V_L16}, {W}, s{S_T0} offen")
    a(f"buffer_load_dwordx4 {vr(V_K + 4)}, v{V_L16}, {W}, s{S_T0} offen offset:1024")
    a(f"buffer_load_dwordx4 {vr(V_V)}, v{V_L16}, {W}, s{S_T0} offen offset:2048")
    a(f"buffer_load_dwordx4 {vr(V_V + 4)}, v{V_L16}, {W}, s{S_T0} offen offset:3072")
    a("s_waitcnt vmcnt(0)")
    a(f"v_mfma_f32_32x32x16_bf16 {vr(S0, 16)}, {vr(V_K)}, {vr(V_Q)}, {vr(V_C, 16)}")
    a(f"v_mfma_f32_32x32x16_bf16 {vr(S0, 16)}, {vr(V_K + 4)}, {vr(V_Q + 4)}, {vr(S0, 16)}")
    a("s_nop 15")
    for r in range(16):
        a(f"v_exp_f32 v{S0 + r}, v{S0 + r}")
    a("s_nop 0")
    for d in range(8):
        a(f"v_cvt_pk_bf16_f32 v{V_P + d}, v{S0 + 2*d}, v{S0 + 2*d + 1}")
    a("s_nop 1")
    a(f"v_mfma_f32_32x32x16_bf16 {vr(V_O, 16)}, {vr(V_V)}, {vr(V_P)}, {vr(V_O, 16)}")
    a(f"v_mfma_f32_32x32x16_bf16 {vr(V_O, 16)}, {vr(V_V + 4)}, {vr(V_P + 4)}, {vr(V_O, 16)}")
    a(f"v_mfma_f32_16x16x32_bf16 {vr(V_L)}, {vr(V_ONE)}, {vr(V_P)}, {vr(V_L)}")
    a(f"v_mfma_f32_16x16x32_bf16 {vr(V_L)}, {vr(V_ONE)}, {vr(V_P + 4)}, {vr(V_L)}")
    a("s_nop 15")
    a(f"s_add_u32 s{S_T0}, s{S_T0}, 4096")
    a(f"s_add_u32 s{S_CNT}, s{S_CNT}, 1")
    a(f"s_cmp_lt_u32 s{S_CNT}, 64")
    a("s_cbranch_scc1 L_k2_slow_pv")
    a("s_branch L_k2_fin")
    return name, (256, 512, NRING * STG), descriptor(name, 128, 32, 128)


def gen_k3(a):
    name = "k3_kernel"
    ASZ, WSZ = 32768, 16384
    STG = ASZ + WSZ
    NR = 3
    S_WS, S_WO, S_WD, S_OUT = 8, 12, 16, 20
    S_WAVE, S_MB, S_NB, S_CNT = 24, 25, 26, 27
    S_ASRC, S_WSRC, S_LA, S_LW = 28, 29, 30, 31
    S_T0, S_T1, S_T2 = 32, 33, 34
    ACC = [0, 32]
    FR = [64, 76]
    V_XA, V_WA = 88, 89
    V_DW = 90
    V_L16, V_LANE = 91, 92
    V_G = 94
    V_T = 100

    kernel_header(a, name)
    a("s_cmp_ge_u32 s2, 256")
    a("s_cbranch_scc1 L_k3_end")
    a("s_load_dwordx2 s[40:41], s[0:1], 16")
    a("s_load_dwordx2 s[42:43], s[0:1], 48")
    a("s_load_dwordx2 s[44:45], s[0:1], 64")
    a("s_load_dwordx2 s[46:47], s[0:1], 80")
    a(f"v_and_b32 v{V_LANE}, 63, v0")
    a(f"v_lshrrev_b32 v{V_T}, 6, v0")
    a(f"v_lshlrev_b32 v{V_L16}, 4, v{V_LANE}")
    a(f"v_readfirstlane_b32 s{S_WAVE}, v{V_T}")
    a(f"s_and_b32 s{S_T0}, s2, 7")
    a(f"s_lshr_b32 s{S_T1}, s2, 3")
    a(f"s_lshr_b32 s{S_MB}, s{S_T0}, 1")
    a(f"s_lshl_b32 s{S_MB}, s{S_MB}, 2")
    a(f"s_and_b32 s{S_T2}, s{S_T1}, 3")
    a(f"s_add_u32 s{S_MB}, s{S_MB}, s{S_T2}")
    a(f"s_and_b32 s{S_NB}, s{S_T0}, 1")
    a(f"s_lshl_b32 s{S_NB}, s{S_NB}, 3")
    a(f"s_lshr_b32 s{S_T2}, s{S_T1}, 2")
    a(f"s_add_u32 s{S_NB}, s{S_NB}, s{S_T2}")
    a("s_waitcnt lgkmcnt(0)")
    srd(a, S_WO, 40, 1024 * 2048)
    srd(a, S_WD, 42, 3584 * 2048)
    srd(a, S_OUT, 44, 2048 * 2048)
    srd(a, S_WS, 46, WS_USED)
    W = f"s[{S_WS}:{S_WS+3}]"
    L = V_LANE
    T0, T1, T2, T3 = V_T, V_T + 1, V_T + 2, V_T + 3
    a(f"s_lshl_b32 s{S_T0}, s{S_MB}, 2")
    a(f"s_add_u32 s{S_T0}, s{S_T0}, s{S_WAVE}")
    a(f"s_mul_i32 s{S_ASRC}, s{S_T0}, {AF_KB * 1024}")
    a(f"s_add_u32 s{S_ASRC}, s{S_ASRC}, {AF_BASE}")
    a(f"s_lshl_b32 s{S_LA}, s{S_WAVE}, 13")
    a(f"s_lshl_b32 s{S_LW}, s{S_WAVE}, 12")
    a(f"s_add_u32 s{S_LW}, s{S_LW}, {ASZ}")
    a(f"s_lshl_b32 s{S_WSRC}, s{S_NB}, 7")
    a(f"v_lshrrev_b32 v{T0}, 2, v{L}")
    a(f"v_and_b32 v{T0}, 4, v{T0}")
    a(f"v_and_b32 v{T1}, 7, v{L}")
    a(f"v_xor_b32 v{T0}, v{T0}, v{T1}")
    a(f"v_lshlrev_b32 v{T0}, 4, v{T0}")
    a(f"v_lshrrev_b32 v{T2}, 3, v{L}")
    a(f"s_lshl_b32 s{S_T0}, s{S_WAVE}, 5")
    a(f"v_add_u32 v{T2}, s{S_T0}, v{T2}")
    a(f"v_lshlrev_b32 v{T2}, 11, v{T2}")
    a(f"v_add_u32 v{V_DW}, v{T2}, v{T0}")
    a(f"s_lshr_b32 s{S_T0}, s{S_WAVE}, 1")
    a(f"s_lshl_b32 s{S_T0}, s{S_T0}, 14")
    a(f"v_add_u32 v{V_XA}, s{S_T0}, v{V_L16}")
    a(f"v_lshrrev_b32 v{T0}, 5, v{L}")
    a(f"v_lshlrev_b32 v{T0}, 9, v{T0}")
    a(f"v_lshrrev_b32 v{T1}, 2, v{L}")
    a(f"v_and_b32 v{T1}, 3, v{T1}")
    a(f"v_lshlrev_b32 v{T2}, 7, v{T1}")
    a(f"v_add_u32 v{T0}, v{T0}, v{T2}")
    a(f"v_lshrrev_b32 v{T1}, 1, v{T1}")
    a(f"v_lshlrev_b32 v{T1}, 6, v{T1}")
    a(f"v_add_u32 v{T0}, v{T0}, v{T1}")
    a(f"v_lshlrev_b32 v{T1}, 1, v{L}")
    a(f"v_and_b32 v{T1}, 32, v{T1}")
    a(f"v_add_u32 v{T0}, v{T0}, v{T1}")
    a(f"v_and_b32 v{T1}, 3, v{L}")
    a(f"v_lshlrev_b32 v{T1}, 3, v{T1}")
    a(f"v_add_u32 v{T0}, v{T0}, v{T1}")
    a(f"s_and_b32 s{S_T0}, s{S_WAVE}, 1")
    a(f"s_lshl_b32 s{S_T0}, s{S_T0}, 6")
    a(f"v_xor_b32 v{T0}, s{S_T0}, v{T0}")
    a(f"v_add_u32 v{V_WA}, {ASZ}, v{T0}")
    a(f"s_lshl_b32 s{S_T0}, s{S_MB}, 7")
    a(f"s_lshr_b32 s{S_T1}, s{S_WAVE}, 1")
    a(f"s_lshl_b32 s{S_T1}, s{S_T1}, 6")
    a(f"s_add_u32 s{S_T0}, s{S_T0}, s{S_T1}")
    a(f"s_mov_b32 s36, s{S_T0}")
    a(f"s_lshl_b32 s{S_T0}, s{S_T0}, 3")
    a(f"s_add_u32 s{S_T0}, s{S_T0}, {G_BASE}")
    a(f"v_and_b32 v{T0}, 31, v{L}")
    a(f"v_lshlrev_b32 v{T0}, 3, v{T0}")
    a(f"buffer_load_dwordx2 {vr(V_G, 2)}, v{T0}, {W}, s{S_T0} offen")
    a(f"buffer_load_dwordx2 {vr(V_G + 2, 2)}, v{T0}, {W}, s{S_T0} offen offset:256")

    def dma_list(slot, wsrd):
        out = []
        for hf in range(2):
            s = f"s_add_u32 m0, s{S_LA}, {slot * STG + hf * 4096}\ns_add_u32 s{S_T0}, s{S_ASRC}, {hf * 4096}\n"
            s += f"buffer_load_dwordx4 v{V_L16}, {W}, s{S_T0} offen lds"
            out.append(s)
            for i in range(1, 4):
                out.append(f"buffer_load_dwordx4 v{V_L16}, {W}, s{S_T0} offen offset:{i * 1024} lds")
        for i in range(4):
            out.append(f"s_add_u32 m0, s{S_LW}, {slot * STG + i * 1024}\ns_add_u32 s{S_T1}, s{S_WSRC}, {i * 16384}\n"
                       f"buffer_load_dwordx4 v{V_DW}, s[{wsrd}:{wsrd+3}], s{S_T1} offen lds")
        out[-1] += f"\ns_add_u32 s{S_ASRC}, s{S_ASRC}, 8192\ns_add_u32 s{S_WSRC}, s{S_WSRC}, {128 * 2048}"
        return out

    V_XA2, V_WA2 = 98, 99
    a(f"v_add_u32 v{V_XA2}, {2 * STG}, v{V_XA}")
    a(f"v_add_u32 v{V_WA2}, {2 * STG}, v{V_WA}")
    V_XA1, V_WA1 = 104, 105
    a(f"v_add_u32 v{V_XA1}, {STG}, v{V_XA}")
    a(f"v_add_u32 v{V_WA1}, {STG}, v{V_WA}")

    def frag_reads(slot, ks, fs):
        F = FR[fs]
        xa, wa = [(V_XA, V_WA), (V_XA1, V_WA1), (V_XA2, V_WA2)][slot]
        return [f"ds_read_b128 {vr(F)}, v{xa} offset:{ks * 1024}",
                f"ds_read_b64_tr_b16 {vr(F + 8, 2)}, v{wa} offset:{(16 * ks) * 128}",
                f"ds_read_b64_tr_b16 {vr(F + 10, 2)}, v{wa} offset:{(16 * ks + 8) * 128}",
                f"ds_read_b128 {vr(F + 4)}, v{xa} offset:{8192 + ks * 1024}"]

    def mfmas(fs, which, first):
        F = FR[fs]
        out = []
        for tb in range(2):
            d = vr(ACC[which] + tb * 16, 16)
            out.append(f"v_mfma_f32_32x32x16_bf16 {d}, {vr(F + 8)}, {vr(F + tb * 4)}, {'0' if first else d}")
        return out

    NST = 36

    def wsrd_of(st):
        return S_WO if st < 8 else S_WD

    def issue(st):
        if st >= NST:
            return []
        d = dma_list(st % NR, wsrd_of(st))
        if st == 8:
            d[0] = f"s_lshl_b32 s{S_WSRC}, s{S_NB}, 7\n" + d[0]
        return d

    def stage(st, nxt_dma, last=False):
        slot = st % NR
        which = 0 if st < 8 else 1
        first = st in (0, 8)
        for ks in range(8):
            if ks == 7 and not last:
                a(f"s_waitcnt vmcnt({stage.keep}) lgkmcnt(0)")
                a("s_barrier")
                fill = frag_reads((st + 1) % NR, 0, 0)
                stage.pending = list(nxt_dma)
            else:
                a("s_waitcnt lgkmcnt(0)")
                fill = frag_reads(slot, ks + 1, (ks + 1) & 1) if ks < 7 else []
            ms = mfmas(ks & 1, which, first and ks == 0)
            ex = stage.pending[:2]
            stage.pending = stage.pending[2:]
            a(ms[0])
            for f in fill[:2]:
                a(f)
            for e in ex[:1]:
                a(e)
            a(ms[1])
            for f in fill[2:]:
                a(f)
            for e in ex[1:]:
                a(e)

    stage.pending = []
    for st in range(3):
        for d in issue(st):
            a(d)
    a("s_waitcnt vmcnt(24)")
    a("s_barrier")
    for r in frag_reads(0, 0, 0):
        a(r)
    stage.keep = 12
    for st in range(0, 9):
        stage(st, issue(st + 3))
    a(f"s_mov_b32 s{S_CNT}, 8")
    a(".p2align 6")
    a.label("L_k3_loop")
    saved = list(stage.pending)
    for st in range(9, 12):
        stage(st, issue(st + 3))
    assert saved == stage.pending
    a(f"s_sub_u32 s{S_CNT}, s{S_CNT}, 1")
    a(f"s_cmp_lg_u32 s{S_CNT}, 0")
    a("s_cbranch_scc1 L_k3_loop")
    stage(33, [])
    stage.keep = 0
    stage(34, [])
    stage(35, [], last=True)
    a("s_nop 15")

    a(f"v_and_b32 v{T0}, 31, v{L}")
    a(f"v_add_u32 v{T0}, s36, v{T0}")
    a(f"v_lshlrev_b32 v{T0}, 11, v{T0}")
    a(f"v_lshrrev_b32 v{T1}, 5, v{L}")
    a(f"v_lshlrev_b32 v{T1}, 4, v{T1}")
    a(f"v_add_u32 v{T0}, v{T0}, v{T1}")
    a(f"s_lshl_b32 s{S_T0}, s{S_NB}, 7")
    a(f"s_and_b32 s{S_T1}, s{S_WAVE}, 1")
    a(f"s_lshl_b32 s{S_T1}, s{S_T1}, 6")
    a(f"s_add_u32 s{S_T0}, s{S_T0}, s{S_T1}")
    a(f"s_add_u32 s{S_T1}, s{S_T0}, {32 * 2048}")
    P = FR[0]
    for tb in range(2):
        A = ACC[0] + tb * 16
        B = ACC[1] + tb * 16
        g, omg = V_G + 2 * tb, V_G + 2 * tb + 1
        Pt = P + tb * 8
        for X, sc in ((A, g), (B, omg)):
            for d in range(8):
                a(f"v_cvt_pk_bf16_f32 v{Pt + d}, v{X + 2*d}, v{X + 2*d + 1}")
            for d in range(8):
                a(f"v_lshlrev_b32 v{X + 2*d}, 16, v{Pt + d}")
                a(f"v_and_b32 v{X + 2*d + 1}, 0xffff0000, v{Pt + d}")
            for r in range(16):
                a(f"v_mul_f32 v{X + r}, v{X + r}, v{sc}")
            for d in range(8):
                a(f"v_cvt_pk_bf16_f32 v{Pt + d}, v{X + 2*d}, v{X + 2*d + 1}")
            for d in range(8):
                a(f"v_lshlrev_b32 v{X + 2*d}, 16, v{Pt + d}")
                a(f"v_and_b32 v{X + 2*d + 1}, 0xffff0000, v{Pt + d}")
        for r in range(16):
            a(f"v_add_f32 v{A + r}, v{A + r}, v{B + r}")
        for d in range(8):
            a(f"v_cvt_pk_bf16_f32 v{Pt + d}, v{A + 2*d}, v{A + 2*d + 1}")
        a("s_nop 1")
        for q in (0, 2):
            a(f"v_permlane32_swap_b32 v{Pt + 2*q}, v{Pt + 2*q + 2}")
            a(f"v_permlane32_swap_b32 v{Pt + 2*q + 1}, v{Pt + 2*q + 3}")
        so = S_T0 if tb == 0 else S_T1
        a(f"buffer_store_dwordx4 {vr(Pt)}, v{T0}, s[{S_OUT}:{S_OUT+3}], s{so} offen")
        a(f"buffer_store_dwordx4 {vr(Pt + 4)}, v{T0}, s[{S_OUT}:{S_OUT+3}], s{so} offen offset:32")
    a.label("L_k3_end")
    a("s_endpgm")
    return name, (256, 256, NR * STG), descriptor(name, 128, 48, 128)


def main():
    out = sys.argv[1] if len(sys.argv) > 1 else f"cdna_kernels/{NAME}.s"
    ref = open(f"cdna_kernels/{NAME}.s.ref").read().split("\n")
    head = [ln for ln in ref if ln.startswith(";") and "@launch" not in ln and "Override launch" not in ln
            and "grid=ceil" not in ln]
    a = Asm()
    ks = [gen_k1(a), gen_k2(a), gen_k3(a)]
    txt = "\n".join(head) + "\n"
    for n, (g, b, l), _ in ks:
        txt += f"; @launch kernel={n} grid=({g},1,1) block=({b},1,1) lds={l}\n"
    txt += '.amdgcn_target "amdgcn-amd-amdhsa--gfx950"\n.text\n'
    txt += a.text()
    txt += '.section .rodata,"a"\n'
    for _, _, d in ks:
        txt += d
    open(out, "w").write(txt)


if __name__ == "__main__":
    main()
```

```python
import struct
import sys

NAME = "gated_mix__softmax_full_mha__swiglu_ffn__prompt"
KNAME = NAME + "_kernel"

QF_BASE = 0
KV_BASE = 4 << 20
AF_BASE = 12 << 20
AF_KB = 144
AF_O = 112
G_BASE = AF_BASE + 128 * AF_KB * 1024
FLAG_BASE = G_BASE + 2048 * 8
WS_USED = FLAG_BASE + 256 * 128
STAMP_BASE = 64 << 20
STAMPS = False
OPT = set()
LOG2E = 1.4426950408889634
QSCALE = (32 ** -0.5) * LOG2E
C0, C2, C3 = 0, 4, 8
SPIN_LIMIT = 1 << 22


def f32bits(x):
    return struct.unpack("<I", struct.pack("<f", x))[0]


class Asm:
    def __init__(self):
        self.lines = []

    def __call__(self, s):
        for ln in s.split("\n"):
            ln = ln.strip()
            if not ln:
                continue
            if ln.endswith(":") or ln.startswith("."):
                self.lines.append(ln)
            else:
                self.lines.append("    " + ln)

    def label(self, name):
        self.lines.append(name + ":")

    def text(self):
        return "\n".join(self.lines) + "\n"


def vr(base, n=4):
    return f"v[{base}:{base + n - 1}]"


def sr(base, n=4):
    return f"s[{base}:{base + n - 1}]"


def srd(a, dst, lo, nbytes):
    a(f"s_mov_b32 s{dst}, s{lo}")
    a(f"s_mov_b32 s{dst + 1}, s{lo + 1}")
    a(f"s_mov_b32 s{dst + 2}, {nbytes}")
    a(f"s_mov_b32 s{dst + 3}, 0x00020000")


class Stamper:
    def __init__(self, a):
        self.a = a

    def start(self):
        self.stamp(-1)

    def stamp(self, idx):
        if not STAMPS:
            return
        self.a("s_memrealtime s[80:81]")
        self.a("s_memtime s[82:83]")
        self.a("s_waitcnt lgkmcnt(0)")
        self.a(f"v_writelane_b32 v255, s80, {2 * (idx + 1)}")
        self.a(f"v_writelane_b32 v255, s82, {2 * (idx + 1) + 1}")

    def loop_stamp(self, base, scnt, mul, add):
        if not STAMPS:
            return
        self.a("s_memtime s[82:83]")
        self.a(f"s_mul_i32 s80, s{scnt}, {mul}")
        self.a(f"s_add_u32 s80, s80, {base + add}")
        self.a("s_waitcnt lgkmcnt(0)")
        self.a("v_writelane_b32 v255, s82, s80")

    def finish(self, vt):
        if not STAMPS:
            return
        a = self.a
        a("s_mov_b64 exec, -1")
        a("s_lshl_b32 s80, s2, 3")
        a(f"s_add_u32 s80, s80, s{S_WAVE}")
        a("s_lshl_b32 s80, s80, 8")
        a(f"s_add_u32 s80, s80, {STAMP_BASE}")
        a(f"s_mov_b32 s{S_WS + 2}, 0x10000000")
        a(f"v_lshlrev_b32 v{vt}, 2, v{V_LANE}")
        a(f"buffer_store_dword v255, v{vt}, {sr(S_WS)}, s80 offen")


S_WAVE = 3
S_WS, S_DBG = 4, 8
V_LANE, V_L16 = 228, 229
V_C0 = 251
WS = sr(S_WS)
DBG = sr(S_DBG)


def signal(a, off, vt, label):
    a(f"s_cmp_lg_u32 s{S_WAVE}, 0")
    a(f"s_cbranch_scc1 {label}")
    a(f"v_mov_b32 v{vt}, 1")
    a(f"v_mov_b32 v{vt + 1}, {off}")
    a("s_mov_b64 exec, 1")
    a(f"buffer_atomic_add v{vt}, v{vt + 1}, {DBG}, 0 offen sc1")
    a("s_mov_b64 exec, -1")
    a.label(label)


def spin(a, label, load, vval, expect, scnt):
    a(f"s_mov_b32 s{scnt}, 0")
    a.label(label)
    a(f"v_cmp_ne_u32 vcc, {expect}, v{vval}")
    a("s_cmp_eq_u64 vcc, 0")
    a(f"s_cbranch_scc1 {label}_ok")
    a("s_sleep 1")
    a(load)
    a("s_waitcnt vmcnt(0)")
    a(f"s_add_u32 s{scnt}, s{scnt}, 1")
    a(f"s_cmp_lt_u32 s{scnt}, {SPIN_LIMIT}")
    a(f"s_cbranch_scc1 {label}")
    a.label(f"{label}_ok")


def phase1(a, st):
    XBUF = [0, 32768]
    WBASE = 65536
    WSTRIDE = 40960
    S_X, S_QKV, S_G, S_U, S_GW, S_PF = 12, 16, 20, 24, 28, 32
    S_W1024, S_ROWBLK, S_XCD, S_COLSUB, S_KX = 36, 37, 38, 39, 40
    S_WO = 41
    S_CNT = 46
    S_T0, S_T1, S_T2, S_T3 = 47, 48, 49, 50
    S_WN = 51
    S_NL2E, S_ONE, S_QS = 52, 54, 56
    S_FU, S_QKU, S_VU, S_TOK, S_E = 58, 59, 60, 61, 62
    S_PFO, S_PFS, S_PFN = 63, 100, 101
    XF = [160, 176]
    WF = 192
    V_XA = 212
    V_WA, V_WB = 214, 218
    V_DX = 220
    V_DW6, V_DW7 = 224, 225
    V_PF, V_PFD = 226, 227
    V_ST = 230
    V_T = 232
    L = V_LANE
    T0, T1, T2, T3 = V_T, V_T + 1, V_T + 2, V_T + 3

    def acc(nt, tt):
        return (nt * 4 + tt) * 4

    a("s_load_dwordx16 s[64:79], s[0:1], 0")
    a("s_load_dwordx4 s[52:55], s[0:1], 72")
    a(f"v_and_b32 v{L}, 63, v0")
    a(f"v_lshrrev_b32 v{T0}, 6, v0")
    a(f"v_lshlrev_b32 v{V_L16}, 4, v{L}")
    a(f"v_readfirstlane_b32 s{S_WAVE}, v{T0}")
    a("s_getpc_b64 s[28:29]")
    a.label("L_p1_pc")
    a(f"s_sub_u32 s28, s28, L_p1_pc-{KNAME}")
    a("s_subb_u32 s29, s29, 0")
    a(f"s_cmp_eq_u32 s{S_WAVE}, 7")
    a(f"s_cselect_b32 s30, L_code_end-{KNAME}, 0")
    a("s_mov_b32 s31, 0x00020000")
    a(f"s_lshr_b32 s{S_COLSUB}, s2, 3")
    a(f"s_and_b32 s{S_COLSUB}, s{S_COLSUB}, 3")
    a(f"s_lshl_b32 s{S_T0}, s{S_COLSUB}, 13")
    a(f"v_lshlrev_b32 v{T1}, 7, v{L}")
    a(f"buffer_load_dword v{V_PFD}, v{T1}, s[28:31], s{S_T0} offen")
    a(f"s_and_b32 s{S_XCD}, s2, 7")
    a(f"s_lshr_b32 s{S_ROWBLK}, s2, 5")
    a(f"s_lshl_b32 s{S_W1024}, s{S_WAVE}, 10")
    a(f"s_and_b32 s{S_WN}, s{S_WAVE}, 1")
    a(f"s_lshl_b32 s{S_T0}, s{S_WN}, 2")
    a(f"v_lshrrev_b32 v{T0}, 4, v{L}")
    a(f"v_add_u32 v{T0}, s{S_T0}, v{T0}")
    a(f"v_and_b32 v{T1}, 7, v{L}")
    a(f"v_xor_b32 v{T0}, v{T0}, v{T1}")
    a(f"v_lshlrev_b32 v{T0}, 4, v{T0}")
    a(f"v_lshrrev_b32 v{T2}, 3, v{L}")
    a(f"s_lshl_b32 s{S_T0}, s{S_ROWBLK}, 8")
    a(f"s_lshl_b32 s{S_T1}, s{S_WAVE}, 3")
    a(f"s_add_u32 s{S_T0}, s{S_T0}, s{S_T1}")
    a(f"v_add_u32 v{T3}, s{S_T0}, v{T2}")
    a(f"v_lshlrev_b32 v{T3}, 11, v{T3}")
    a(f"v_add_u32 v{V_DX}, v{T3}, v{T0}")
    for j in range(1, 4):
        a(f"v_add_u32 v{V_DX + j}, {j * 64 * 2048}, v{V_DX}")
    a(f"v_and_b32 v{T0}, 2, v{T2}")
    a(f"s_lshl_b32 s{S_T0}, s{S_WN}, 2")
    a(f"v_or_b32 v{T0}, s{S_T0}, v{T0}")
    a(f"v_xor_b32 v{T0}, v{T0}, v{T1}")
    a(f"v_lshlrev_b32 v{T0}, 4, v{T0}")
    a(f"v_add_u32 v{T3}, s{S_T1}, v{T2}")
    a(f"v_mul_u32_u24 v{V_DW6}, 6144, v{T3}")
    a(f"v_add_u32 v{V_DW6}, v{V_DW6}, v{T0}")
    a(f"v_mul_u32_u24 v{V_DW7}, 7168, v{T3}")
    a(f"v_add_u32 v{V_DW7}, v{V_DW7}, v{T0}")
    a(f"s_mov_b32 s{S_KX}, 0")
    a(f"s_mul_i32 s{S_E}, s{S_XCD}, 3")
    a(f"s_add_u32 s{S_E}, s{S_E}, s{S_COLSUB}")
    a(f"s_lshl_b32 s{S_T0}, s{S_E}, 8")
    a(f"s_lshl_b32 s{S_T1}, s{S_XCD}, 7")
    a(f"s_add_u32 s{S_T2}, s{S_T1}, 6144")
    a(f"s_cmp_eq_u32 s{S_COLSUB}, 3")
    a(f"s_cselect_b32 s{S_WO}, s{S_T2}, s{S_T0}")
    a(f"s_mov_b32 s{S_WO+1}, s{S_WO}")
    a(f"s_add_u32 s{S_T0}, s{S_T0}, 128")
    a(f"s_add_u32 s{S_T2}, s{S_T1}, {24 * 128}")
    a(f"s_lshl_b32 s{S_T1}, s{S_XCD}, 8")
    a(f"s_add_u32 s{S_T1}, s{S_T1}, 4096")
    a(f"s_add_u32 s{S_T3}, s{S_T1}, 128")
    a(f"s_lshl_b32 s{S_FU}, s{S_E}, 7")
    a(f"s_cmp_eq_u32 s{S_COLSUB}, 3")
    a(f"s_cselect_b32 s{S_WO+2}, s{S_T2}, s{S_T0}")
    a(f"s_cselect_b32 s{S_WO+3}, s{S_T1}, s{S_T0}")
    a(f"s_cselect_b32 s{S_WO+4}, s{S_T3}, s{S_FU}")
    a(f"s_lshl_b32 s{S_T0}, s{S_ROWBLK}, 3")
    a(f"s_lshl_b32 s{S_T1}, s{S_ROWBLK}, 8")
    a(f"s_lshl_b32 s{S_T2}, s{S_COLSUB}, 6")
    a(f"s_add_u32 s{S_T1}, s{S_T1}, s{S_T2}")
    a(f"s_cmp_lt_u32 s{S_WAVE}, 5")
    a(f"s_cselect_b32 s{S_T0}, s{S_T0}, s{S_T1}")
    a(f"s_cselect_b32 s{S_T1}, 7, 63")
    a(f"v_and_b32 v{V_PF}, s{S_T1}, v{L}")
    a(f"v_add_u32 v{V_PF}, s{S_T0}, v{V_PF}")
    a("s_waitcnt lgkmcnt(0)")
    srd(a, S_X, 64, 2048 * 2048)
    srd(a, S_QKV, 66, 1024 * 6144)
    srd(a, S_G, 72, 1024 * 7168)
    srd(a, S_U, 74, 1024 * 7168)
    srd(a, S_PF, 64, 2048 * 2048)
    a(f"s_cmp_gt_u32 s{S_WAVE}, 5")
    a(f"s_cselect_b32 s{S_PF+2}, 0, s{S_PF+2}")
    a(f"s_mov_b32 s{S_PFO}, 0")
    a(f"s_mov_b32 s{S_PFS}, 128")
    a(f"s_mov_b32 s{S_T3}, 2048")
    a(f"s_cmp_eq_u32 s{S_COLSUB}, 3")
    a("s_cbranch_scc1 L_p1_O")

    for variant in ("E", "O"):
        a.label(f"L_p1_{variant}")
        if variant == "E":
            blocks = [S_G, S_U, S_G, S_U, S_QKV]
            tiles = [(V_WA + 0, 0, 0), (V_WA + 1, 0, 0), (V_WA + 0, 8192, 0), (V_WA + 1, 8192, 0),
                     (V_WA + 2, 0, 0), (V_WA + 3, 0, 0), (V_WA + 2, 8192, 0), (V_WA + 3, 8192, 0),
                     (V_WB + 0, 0, 0), (V_WB + 1, 0, 0)]
            hunits = [(0, 2), (4, 6)]
            qk_t, v_t = 8, None
        else:
            blocks = [S_G, S_U, S_QKV, S_QKV, S_QKV]
            tiles = [(V_WB + 0, 0, 0), (V_WB + 1, 0, 0), (V_WB + 0, 8192, 0), (V_WB + 1, 8192, 0),
                     (V_WB + 0, 16384, 0), (V_WB + 1, 16384, 0),
                     (V_WA + 0, 0, 1), (V_WA + 1, 0, 1), (V_WA + 2, 0, 1), (V_WA + 3, 0, 1)]
            hunits = [(0, 2)]
            qk_t, v_t = 4, 6

        def dma_list(buf):
            out = []
            for j in range(4):
                out.append(f"s_add_u32 m0, s{S_W1024}, {XBUF[buf] + j * 8192}\ns_nop 0\n"
                           f"buffer_load_dwordx4 v{V_DX + j}, {sr(S_X)}, s{S_KX} offen lds")
            for p in range(5):
                b = blocks[p]
                vd = V_DW6 if b == S_QKV else V_DW7
                pitch = 6144 if b == S_QKV else 7168
                out.append(f"s_add_u32 m0, s{S_W1024}, {WBASE + buf * WSTRIDE + p * 8192}\ns_nop 0\n"
                           f"buffer_load_dwordx4 v{vd}, {sr(b)}, s{S_WO + p} offen lds\n"
                           f"s_add_u32 s{S_WO + p}, s{S_WO + p}, {64 * pitch}")
            out[3] += f"\ns_add_u32 s{S_KX}, s{S_KX}, 128"
            return out

        for p in range(5):
            b = blocks[p]
            pitch = 6144 if b == S_QKV else 7168
            a(f"s_cmp_eq_u32 s{S_WAVE}, {p}")
            a(f"s_cselect_b32 s{S_PF}, s{b}, s{S_PF}")
            a(f"s_cselect_b32 s{S_PF+1}, s{b+1}, s{S_PF+1}")
            a(f"s_cselect_b32 s{S_PF+2}, s{b+2}, s{S_PF+2}")
            a(f"s_cselect_b32 s{S_PFO}, s{S_WO+p}, s{S_PFO}")
            a(f"s_cselect_b32 s{S_PFS}, {64 * pitch}, s{S_PFS}")
            a(f"s_cselect_b32 s{S_T3}, {pitch}, s{S_T3}")
        a(f"v_mul_lo_u32 v{V_PF}, v{V_PF}, s{S_T3}")
        pf = (f"buffer_load_dword v{V_PFD}, v{V_PF}, {sr(S_PF)}, s{S_PFO} offen\n"
              f"s_add_u32 s{S_PFO}, s{S_PFO}, s{S_PFS}")
        a(pf)
        a(pf)
        for d in dma_list(0):
            a(d)
        d1 = dma_list(1)
        srd(a, S_DBG, 52, 256)
        srd(a, S_WS, 54, WS_USED)
        srd(a, S_GW, 78, 2048)
        a(f"s_lshr_b32 s{S_T0}, s{S_WAVE}, 1")
        a(f"s_lshl_b32 s{S_T0}, s{S_T0}, 13")
        a(f"v_and_b32 v{T1}, 15, v{L}")
        a(f"v_lshlrev_b32 v{T1}, 7, v{T1}")
        a(f"v_add_u32 v{T3}, s{S_T0}, v{T1}")
        a(f"v_lshrrev_b32 v{T1}, 1, v{L}")
        a(f"v_and_b32 v{T1}, 7, v{T1}")
        a(f"v_lshrrev_b32 v{T2}, 4, v{L}")
        a(f"v_xor_b32 v{T1}, v{T1}, v{T2}")
        a(f"v_lshlrev_b32 v{T1}, 4, v{T1}")
        a(f"v_add_u32 v{V_XA}, v{T3}, v{T1}")
        a(f"v_xor_b32 v{V_XA+1}, 64, v{V_XA}")
        a(f"v_lshlrev_b32 v{T2}, 10, v{T2}")
        a(f"v_lshrrev_b32 v{T1}, 2, v{L}")
        a(f"v_and_b32 v{T1}, 3, v{T1}")
        a(f"v_lshlrev_b32 v{T3}, 7, v{T1}")
        a(f"v_add_u32 v{T2}, v{T2}, v{T3}")
        a(f"v_lshlrev_b32 v{T1}, 2, v{L}")
        a(f"v_and_b32 v{T1}, 0x60, v{T1}")
        a(f"v_add_u32 v{T2}, v{T2}, v{T1}")
        a(f"v_and_b32 v{T1}, 3, v{L}")
        a(f"v_lshlrev_b32 v{T1}, 3, v{T1}")
        a(f"v_add_u32 v{T2}, v{T2}, v{T1}")
        if variant == "E":
            a(f"s_lshl_b32 s{S_T0}, s{S_WN}, 14")
            a(f"s_add_u32 s{S_T0}, s{S_T0}, {WBASE}")
            a(f"s_mov_b32 s{S_T1}, {WBASE + 4 * 8192}")
            a(f"s_lshl_b32 s{S_FU}, s{S_E}, 2")
            a(f"s_lshl_b32 s{S_T2}, s{S_WN}, 1")
            a(f"s_add_u32 s{S_FU}, s{S_FU}, s{S_T2}")
            a(f"s_lshl_b32 s{S_QKU}, s{S_E}, 1")
            a(f"s_add_u32 s{S_QKU}, s{S_QKU}, s{S_WN}")
        else:
            a(f"s_lshl_b32 s{S_T0}, s{S_WN}, 13")
            a(f"s_add_u32 s{S_T0}, s{S_T0}, {WBASE + 3 * 8192}")
            a(f"s_mov_b32 s{S_T1}, {WBASE}")
            a(f"s_lshl_b32 s{S_FU}, s{S_XCD}, 1")
            a(f"s_add_u32 s{S_FU}, s{S_FU}, 96")
            a(f"s_add_u32 s{S_FU}, s{S_FU}, s{S_WN}")
            a(f"s_lshl_b32 s{S_QKU}, s{S_XCD}, 1")
            a(f"s_add_u32 s{S_QKU}, s{S_QKU}, 48")
            a(f"s_add_u32 s{S_QKU}, s{S_QKU}, s{S_WN}")
            a(f"s_lshl_b32 s{S_VU}, s{S_XCD}, 2")
            a(f"s_lshl_b32 s{S_T2}, s{S_WN}, 1")
            a(f"s_add_u32 s{S_VU}, s{S_VU}, s{S_T2}")
        for q in range(4):
            a(f"v_xor_b32 v{V_WA + q}, {q << 5}, v{T2}")
            a(f"v_add_u32 v{V_WA + q}, s{S_T0}, v{V_WA + q}")
        a(f"s_lshl_b32 s{S_T2}, s{S_WN}, 6")
        a(f"v_xor_b32 v{V_WB}, s{S_T2}, v{T2}")
        a(f"v_add_u32 v{V_WB}, s{S_T1}, v{V_WB}")
        a(f"v_xor_b32 v{V_WB+1}, 32, v{V_WB}")
        a(f"v_lshrrev_b32 v{T1}, 3, v{L}")
        a(f"v_lshlrev_b32 v{T1}, 8, v{T1}")
        a(f"v_and_b32 v{T2}, 7, v{L}")
        a(f"v_lshlrev_b32 v{T2}, 4, v{T2}")
        a(f"v_add_u32 v{V_ST}, v{T1}, v{T2}")
        a(f"s_mov_b32 s{S_NL2E}, {f32bits(-LOG2E):#x}")
        a(f"s_mov_b32 s{S_NL2E+1}, {f32bits(-LOG2E):#x}")
        a(f"s_mov_b32 s{S_ONE}, 1.0")
        a(f"s_mov_b32 s{S_ONE+1}, 1.0")
        a(f"s_lshl_b32 s{S_T0}, s2, 3")
        a(f"s_add_u32 s{S_TOK}, s{S_T0}, s{S_WAVE}")
        for i in range(0, 160, 2):
            a(f"v_mov_b64 {vr(i, 2)}, 0")

        def wread(buf, j):
            ks, nt = divmod(j, 10)
            va, imm, _ = tiles[nt]
            F = WF + (j % 5) * 4
            return [f"ds_read_b64_tr_b16 {vr(F + 2 * t, 2)}, v{va} offset:{buf * WSTRIDE + imm + (32 * ks + 4 * t) * 128}"
                    for t in range(2)]

        def xread(buf, ks, tt):
            return f"ds_read_b128 {vr(XF[ks] + 4 * tt)}, v{V_XA + ks} offset:{XBUF[buf] + tt * 2048}"

        def mfma(j, tt):
            ks, nt = divmod(j, 10)
            W = vr(WF + (j % 5) * 4)
            X = vr(XF[ks] + 4 * tt)
            A, B = (X, W) if tiles[nt][2] else (W, X)
            d = vr(acc(nt, tt))
            return f"v_mfma_f32_16x16x32_bf16 {d}, {A}, {B}, {d}"

        a(pf)
        a(pf)
        a(f"s_lshl_b32 s{S_T0}, s2, 7")
        a(f"s_add_u32 s{S_T0}, s{S_T0}, {FLAG_BASE}")
        a(f"v_mov_b32 v{T0}, 0")
        a(f"buffer_store_dword v{T0}, v{T0}, {WS}, s{S_T0} offen sc1")
        st.stamp(0)
        a("s_waitcnt vmcnt(3)")
        a("s_barrier")
        st.stamp(1)
        for tt in range(4):
            a(xread(0, 0, tt))
        for j in range(4):
            for r in wread(0, j):
                a(r)
        for d in d1[:2]:
            a(d)

        def stage(buf, post_barrier=None):
            for j in range(20):
                if j == 16:
                    a("s_waitcnt vmcnt(1) lgkmcnt(0)")
                    a("s_barrier")
                    st.loop_stamp(32, S_CNT, 2, buf)
                    assert not stage.pending
                    stage.pending = dma_list(buf) + [pf]
                    if post_barrier:
                        post_barrier()
                elif j % 2 == 0 and j < 16:
                    a("s_waitcnt lgkmcnt(4)")
                wr = wread(buf, j + 4) if j + 4 < 20 else wread(buf ^ 1, j + 4 - 20)
                xr = []
                if 2 <= j <= 5:
                    xr = [xread(buf, 1, j - 2)]
                if j in (16, 17):
                    xr = [xread(buf ^ 1, 0, 2 * (j - 16)), xread(buf ^ 1, 0, 2 * (j - 16) + 1)]
                dm = []
                if stage.pending and j not in (16, 17):
                    dm = [stage.pending.pop(0)]
                slots = [wr[:1], wr[1:], xr[:1], xr[1:] + dm]
                for tt in range(4):
                    a(mfma(j, tt))
                    for f in slots[tt]:
                        a(f)

        GX, GW_, G0, G1, GA = V_T, V_T + 8, V_T + 16, V_T + 17, V_T + 18

        def events():
            a(f"s_cmp_eq_u32 s{S_CNT}, 0")
            a(f"s_cbranch_scc0 L_p1_{variant}_e0")
            signal(a, C0, G0, f"L_p1_{variant}_e0")
            a(f"s_cmp_eq_u32 s{S_CNT}, 7")
            a(f"s_cbranch_scc0 L_p1_{variant}_e7")
            a(f"v_mov_b32 v{G1}, {C0}")
            a(f"buffer_load_dword v{V_C0}, v{G1}, {DBG}, 0 offen sc1")
            a(f"s_lshl_b32 s{S_T0}, s{S_TOK}, 11")
            a(f"v_lshlrev_b32 v{G0}, 5, v{L}")
            a(f"buffer_load_dwordx4 {vr(GX)}, v{G0}, {sr(S_X)}, s{S_T0} offen")
            a(f"buffer_load_dwordx4 {vr(GX+4)}, v{G0}, {sr(S_X)}, s{S_T0} offen offset:16")
            a(f"buffer_load_dwordx4 {vr(GW_)}, v{G0}, {sr(S_GW)}, 0 offen")
            a(f"buffer_load_dwordx4 {vr(GW_+4)}, v{G0}, {sr(S_GW)}, 0 offen offset:16")
            for s_ in (S_X, S_QKV, S_G, S_U, S_PF):
                a(f"s_mov_b32 s{s_ + 2}, 0")
            a.label(f"L_p1_{variant}_e7")

        stage.pending = d1[2:] + [pf]
        a(f"s_mov_b32 s{S_CNT}, 0")
        a(".p2align 6")
        a.label(f"L_p1_{variant}_loop")
        saved = list(stage.pending)
        stage(0, post_barrier=events)
        stage(1)
        assert stage.pending == saved
        a(f"s_add_u32 s{S_CNT}, s{S_CNT}, 1")
        a(f"s_cmp_lt_u32 s{S_CNT}, 8")
        a(f"s_cbranch_scc1 L_p1_{variant}_loop")
        a("s_waitcnt lgkmcnt(0)")
        st.stamp(2)

        a(f"s_lshl_b32 s{S_T0}, s{S_ROWBLK}, 3")
        a(f"s_and_b32 s{S_T1}, s{S_WAVE}, 6")
        a(f"s_add_u32 s{S_T0}, s{S_T0}, s{S_T1}")
        TB = S_T0
        pk = [WF, WF + 4, WF + 8, WF + 12]
        npk = 0
        nstore = 0

        def pack_store(r0, r1, voff, soff, imm):
            nonlocal npk, nstore
            P = pk[npk % 4]
            npk += 1
            nstore += 1
            a(f"v_cvt_pk_bf16_f32 v{P}, v{r0}, v{r0+1}")
            a(f"v_cvt_pk_bf16_f32 v{P+1}, v{r0+2}, v{r0+3}")
            a(f"v_cvt_pk_bf16_f32 v{P+2}, v{r1}, v{r1+1}")
            a(f"v_cvt_pk_bf16_f32 v{P+3}, v{r1+2}, v{r1+3}")
            a(f"buffer_store_dwordx4 {vr(P)}, v{voff}, {WS}, s{soff} offen offset:{imm} sc1")

        a(f"s_cmp_lt_u32 s{S_QKU}, 32")
        a(f"s_cselect_b32 s{S_QS}, {f32bits(QSCALE):#x}, 1.0")
        a(f"s_mov_b32 s{S_QS+1}, s{S_QS}")
        a(f"s_lshl_b32 s{S_T1}, s{S_QKU}, 17")
        a(f"s_lshl_b32 s{S_T2}, s{TB}, 11")
        a(f"s_add_u32 s{S_T1}, s{S_T1}, s{S_T2}")
        a(f"s_sub_u32 s{S_T3}, s{S_QKU}, 32")
        a(f"s_lshl_b32 s{S_T3}, s{S_T3}, 18")
        a(f"s_lshl_b32 s{S_T2}, s{TB}, 12")
        a(f"s_add_u32 s{S_T3}, s{S_T3}, s{S_T2}")
        a(f"s_add_u32 s{S_T3}, s{S_T3}, {KV_BASE}")
        a(f"s_cmp_lt_u32 s{S_QKU}, 32")
        a(f"s_cselect_b32 s{S_T1}, s{S_T1}, s{S_T3}")
        a(f"s_cselect_b32 s{S_T2}, 1, 2")
        a(f"s_lshl_b32 s{S_T2}, s{S_T2}, 11")
        a(f"s_add_u32 s{S_T2}, s{S_T1}, s{S_T2}")
        for tt in range(4):
            for t in range(2):
                b = acc(qk_t + t, tt)
                for h in range(2):
                    a(f"v_pk_mul_f32 {vr(b + 2*h, 2)}, {vr(b + 2*h, 2)}, {sr(S_QS, 2)}")
            pack_store(acc(qk_t, tt), acc(qk_t + 1, tt), V_ST, S_T1 if tt < 2 else S_T2, (tt & 1) * 128)
        if v_t is not None:
            for vi in range(2):
                a(f"s_add_u32 s{S_T1}, s{S_VU}, {vi}")
                a(f"s_lshl_b32 s{S_T1}, s{S_T1}, 18")
                a(f"s_lshl_b32 s{S_T2}, s{TB}, 12")
                a(f"s_add_u32 s{S_T1}, s{S_T1}, s{S_T2}")
                a(f"s_add_u32 s{S_T1}, s{S_T1}, {KV_BASE + 2048}")
                a(f"s_add_u32 s{S_T2}, s{S_T1}, 4096")
                for m in range(2):
                    for e in range(2):
                        nt = v_t + 2 * vi + e
                        pack_store(acc(nt, 2 * m), acc(nt, 2 * m + 1), V_ST, S_T1 if m == 0 else S_T2, e * 128)
        nstore = 0
        tmp = XF[0]
        for ui, (gt, ut) in enumerate(hunits):
            a(f"s_lshl_b32 s{S_T1}, s{TB}, 1")
            a(f"s_mul_i32 s{S_T1}, s{S_T1}, {AF_KB}")
            a(f"s_add_u32 s{S_T1}, s{S_T1}, s{S_FU}")
            a(f"s_add_u32 s{S_T1}, s{S_T1}, {ui}")
            a(f"s_lshl_b32 s{S_T1}, s{S_T1}, 10")
            a(f"s_add_u32 s{S_T1}, s{S_T1}, {AF_BASE}")
            for tp in range(2):
                regs = []
                for tt in (2 * tp, 2 * tp + 1):
                    for t in range(2):
                        regs.append((acc(gt + t, tt), acc(ut + t, tt)))
                tb = tmp + tp * 16
                for i, (G, U) in enumerate(regs):
                    for h in range(2):
                        a(f"v_pk_mul_f32 {vr(tb + 4*i + 2*h, 2)}, {vr(G + 2*h, 2)}, {sr(S_NL2E, 2)}")
                for r in range(16):
                    a(f"v_exp_f32 v{tb + r}, v{tb + r}")
                for r in range(8):
                    a(f"v_pk_add_f32 {vr(tb + 2*r, 2)}, {vr(tb + 2*r, 2)}, {sr(S_ONE, 2)}")
                for r in range(16):
                    a(f"v_rcp_f32 v{tb + r}, v{tb + r}")
                for i, (G, U) in enumerate(regs):
                    for h in range(2):
                        a(f"v_pk_mul_f32 {vr(G + 2*h, 2)}, {vr(G + 2*h, 2)}, {vr(tb + 4*i + 2*h, 2)}")
                for i, (G, U) in enumerate(regs):
                    for h in range(2):
                        a(f"v_pk_mul_f32 {vr(G + 2*h, 2)}, {vr(G + 2*h, 2)}, {vr(U + 2*h, 2)}")
                if ui > 0:
                    for tt in (2 * tp, 2 * tp + 1):
                        pack_store(acc(gt, tt), acc(gt + 1, tt), V_L16, S_T1, 0)
                        if tt < 3:
                            a(f"s_add_u32 s{S_T1}, s{S_T1}, {AF_KB * 1024}")
            if ui == 0:
                a("s_waitcnt vmcnt(0)")
                a("s_barrier")
                a(f"s_cmp_lg_u32 s{S_WAVE}, 0")
                a(f"s_cbranch_scc1 L_p1_{variant}_flag")
                a(f"s_lshl_b32 s{S_T2}, s2, 7")
                a(f"s_add_u32 s{S_T2}, s{S_T2}, {FLAG_BASE}")
                a(f"v_mov_b32 v{G0}, 1")
                a(f"v_mov_b32 v{G1}, 0")
                a("s_mov_b64 exec, 1")
                a(f"buffer_store_dword v{G0}, v{G1}, {WS}, s{S_T2} offen sc1")
                a("s_mov_b64 exec, -1")
                a.label(f"L_p1_{variant}_flag")
                st.stamp(3)
                for tt in range(4):
                    pack_store(acc(gt, tt), acc(gt + 1, tt), V_L16, S_T1, 0)
                    if tt < 3:
                        a(f"s_add_u32 s{S_T1}, s{S_T1}, {AF_KB * 1024}")
        if variant == "E":
            a("s_branch L_p1_gate")

    a.label("L_p1_gate")
    a(f"v_mov_b32 v{GA}, 0")
    for i in range(8):
        a(f"v_lshlrev_b32 v{G0}, 16, v{GX+i}")
        a(f"v_lshlrev_b32 v{G1}, 16, v{GW_+i}")
        a(f"v_mul_f32 v{G0}, v{G0}, v{G1}")
        a(f"v_and_b32 v{GX+i}, 0xffff0000, v{GX+i}")
        a(f"v_and_b32 v{GW_+i}, 0xffff0000, v{GW_+i}")
        a(f"v_mul_f32 v{GX+i}, v{GX+i}, v{GW_+i}")
        a(f"v_cvt_pk_bf16_f32 v{G0}, v{G0}, v{GX+i}")
        a(f"v_lshlrev_b32 v{G1}, 16, v{G0}")
        a(f"v_and_b32 v{G0}, 0xffff0000, v{G0}")
        a(f"v_add_f32 v{GA}, v{GA}, v{G1}")
        a(f"v_add_f32 v{GA}, v{GA}, v{G0}")
    for dpp in ("row_shr:1 bound_ctrl:0", "row_shr:2 bound_ctrl:0", "row_shr:4 bound_ctrl:0", "row_shr:8 bound_ctrl:0",
                "row_bcast:15 row_mask:0xa", "row_bcast:31 row_mask:0xc"):
        a("s_nop 1")
        a(f"v_add_f32_dpp v{GA}, v{GA}, v{GA} {dpp}")
    a(f"v_cvt_pk_bf16_f32 v{G0}, v{GA}, v{GA}")
    a(f"v_and_b32 v{G0}, 0xffff0000, v{G0}")
    a(f"v_mul_f32 v{G0}, s{S_NL2E}, v{G0}")
    a(f"v_exp_f32 v{G0}, v{G0}")
    a("s_nop 0")
    a(f"v_add_f32 v{G0}, 1.0, v{G0}")
    a(f"v_rcp_f32 v{G0}, v{G0}")
    a("s_nop 0")
    a(f"v_cvt_pk_bf16_f32 v{G0}, v{G0}, v{G0}")
    a(f"v_and_b32 v{G0}, 0xffff0000, v{G0}")
    a(f"v_sub_f32 v{G1}, 1.0, v{G0}")
    a(f"v_cvt_pk_bf16_f32 v{G1}, v{G1}, v{G1}")
    a(f"v_and_b32 v{G1}, 0xffff0000, v{G1}")
    a(f"s_lshl_b32 s{S_T1}, s{S_TOK}, 3")
    a(f"s_add_u32 s{S_T1}, s{S_T1}, {G_BASE}")
    a(f"v_mov_b32 v{GA}, 0")
    a("s_mov_b32 exec_lo, 0")
    a("s_mov_b32 exec_hi, 0x80000000")
    a(f"buffer_store_dwordx2 {vr(G0, 2)}, v{GA}, {WS}, s{S_T1} offen sc1")
    a("s_mov_b64 exec, -1")
    st.stamp(4)


class P3:
    SLOT = 16384
    RED = 65536
    S_W, S_A, S_OUT = 12, 16, 20
    S_MB, S_NB, S_CNT = 40, 41, 42
    S_ASRC, S_WSRC, S_LW, S_KQ, S_TH = 43, 44, 45, 46, 47
    S_T0, S_T1, S_T2 = 48, 49, 50
    S_TOK, S_GOFF = 51, 52
    S_PFO, S_PFS = 53, 54
    S_PF = 56
    AF_ = 128
    WF = [192, 208]
    V_WA = 232
    V_DA = 236
    V_DW = 240
    V_GA = 241
    V_POLL, V_PA = 242, 243
    V_PF, V_PFD = 252, 253
    V_G = 244
    V_T = 224

    @staticmethod
    def wdma(slot):
        out = []
        for i in range(2):
            out.append(f"s_add_u32 m0, s{P3.S_LW}, {slot * P3.SLOT + i * 1024}\n"
                       f"s_add_u32 s{P3.S_T1}, s{P3.S_WSRC}, {i * 16384}\n"
                       f"buffer_load_dwordx4 v{P3.V_DW}, {sr(P3.S_W)}, s{P3.S_T1} offen lds")
        out[1] += f"\ns_add_u32 s{P3.S_WSRC}, s{P3.S_WSRC}, {128 * 2048}"
        return out

    @staticmethod
    def aload(slot, tt):
        s = (f"buffer_load_dwordx4 {vr(P3.AF_ + slot * 16 + tt * 4)}, v{P3.V_DA + tt}, {sr(P3.S_A)}, "
             f"s{P3.S_ASRC} offen sc1")
        if tt == 3:
            s += f"\ns_add_u32 s{P3.S_ASRC}, s{P3.S_ASRC}, 4096"
        return s

    @staticmethod
    def pf():
        return (f"buffer_load_dword v{P3.V_PFD}, v{P3.V_PF}, {sr(P3.S_PF)}, s{P3.S_PFO} offen sc1\n"
                f"s_add_u32 s{P3.S_PFO}, s{P3.S_PFO}, s{P3.S_PFS}")

    @staticmethod
    def batch(slot):
        return P3.wdma(slot) + ([P3.pf()] if 'p3pf' in OPT else []) + [P3.aload(slot, tt) for tt in range(4)]

    @staticmethod
    def wreads(slot, fs):
        out = []
        for q in range(4):
            for t in range(2):
                out.append(f"ds_read_b64_tr_b16 {vr(P3.WF[fs] + q * 4 + t * 2, 2)}, v{P3.V_WA + q} "
                           f"offset:{slot * P3.SLOT + t * 2048}")
        return out

    @staticmethod
    def setup(a):
        p = P3
        L = V_LANE
        T0, T1, T2 = p.V_T, p.V_T + 1, p.V_T + 2
        a(f"s_and_b32 s{p.S_T0}, s2, 7")
        a(f"s_lshr_b32 s{p.S_T1}, s2, 3")
        a(f"s_lshr_b32 s{p.S_MB}, s{p.S_T0}, 1")
        a(f"s_lshl_b32 s{p.S_MB}, s{p.S_MB}, 2")
        a(f"s_and_b32 s{p.S_T2}, s{p.S_T1}, 3")
        a(f"s_add_u32 s{p.S_MB}, s{p.S_MB}, s{p.S_T2}")
        a(f"s_and_b32 s{p.S_NB}, s{p.S_T0}, 1")
        a(f"s_lshl_b32 s{p.S_NB}, s{p.S_NB}, 3")
        a(f"s_lshr_b32 s{p.S_T2}, s{p.S_T1}, 2")
        a(f"s_add_u32 s{p.S_NB}, s{p.S_NB}, s{p.S_T2}")
        a(f"s_and_b32 s{p.S_TH}, s{S_WAVE}, 1")
        a(f"s_lshr_b32 s{p.S_KQ}, s{S_WAVE}, 1")
        a(f"s_lshl_b32 s{p.S_T0}, s{p.S_MB}, 3")
        a(f"s_lshl_b32 s{p.S_T1}, s{p.S_TH}, 2")
        a(f"s_add_u32 s{p.S_T0}, s{p.S_T0}, s{p.S_T1}")
        a(f"s_lshl_b32 s{p.S_TOK}, s{p.S_T0}, 4")
        a(f"s_mul_i32 s{p.S_ASRC}, s{p.S_T0}, {AF_KB}")
        a(f"s_add_u32 s{p.S_ASRC}, s{p.S_ASRC}, s{p.S_KQ}")
        a(f"s_lshl_b32 s{p.S_ASRC}, s{p.S_ASRC}, 10")
        a(f"s_add_u32 s{p.S_ASRC}, s{p.S_ASRC}, {AF_BASE}")
        a(f"v_mov_b32 v{p.V_DA}, v{V_L16}")
        for i in range(1, 4):
            a(f"v_add_u32 v{p.V_DA + i}, {i * AF_KB * 1024}, v{V_L16}")
        a(f"s_lshl_b32 s{p.S_LW}, s{S_WAVE}, 11")
        a(f"s_lshl_b32 s{p.S_WSRC}, s{p.S_NB}, 7")
        a(f"v_lshrrev_b32 v{T2}, 3, v{L}")
        a(f"v_and_b32 v{T0}, 6, v{T2}")
        a(f"v_and_b32 v{T1}, 7, v{L}")
        a(f"v_xor_b32 v{T0}, v{T0}, v{T1}")
        a(f"v_lshlrev_b32 v{T0}, 4, v{T0}")
        a(f"s_lshl_b32 s{p.S_T0}, s{S_WAVE}, 4")
        a(f"v_add_u32 v{T2}, s{p.S_T0}, v{T2}")
        a(f"v_lshlrev_b32 v{T2}, 11, v{T2}")
        a(f"v_add_u32 v{p.V_DW}, v{T2}, v{T0}")
        a(f"v_lshrrev_b32 v{T0}, 2, v{L}")
        a(f"v_lshlrev_b32 v{T0}, 7, v{T0}")
        a(f"v_lshlrev_b32 v{T1}, 2, v{L}")
        a(f"v_and_b32 v{T1}, 0x60, v{T1}")
        a(f"v_add_u32 v{T0}, v{T0}, v{T1}")
        a(f"v_and_b32 v{T1}, 3, v{L}")
        a(f"v_lshlrev_b32 v{T1}, 3, v{T1}")
        a(f"v_add_u32 v{T0}, v{T0}, v{T1}")
        a(f"s_lshl_b32 s{p.S_T0}, s{p.S_KQ}, 12")
        a(f"v_add_u32 v{p.V_WA}, s{p.S_T0}, v{T0}")
        for q in range(1, 4):
            a(f"v_xor_b32 v{p.V_WA + q}, {q << 5}, v{p.V_WA}")
        a(f"s_lshl_b32 s{p.S_GOFF}, s{p.S_TOK}, 3")
        a(f"s_add_u32 s{p.S_GOFF}, s{p.S_GOFF}, {G_BASE}")
        a(f"v_and_b32 v{p.V_GA}, 15, v{L}")
        a(f"v_lshlrev_b32 v{p.V_GA}, 3, v{p.V_GA}")
        a(f"v_mov_b32 v{p.V_PA}, 0")
        srd(a, p.S_W, 66, 3584 * 2048)
        srd(a, p.S_A, S_WS, WS_USED)
        srd(a, p.S_OUT, 68, 2048 * 2048)
        a(f"s_lshl_b32 s{p.S_T0}, s{p.S_MB}, 3")
        a(f"s_lshr_b32 s{p.S_T1}, s2, 5")
        a(f"s_add_u32 s{p.S_T0}, s{p.S_T0}, s{p.S_T1}")
        a(f"s_mul_i32 s{p.S_T0}, s{p.S_T0}, {AF_KB}")
        a(f"s_add_u32 s{p.S_T0}, s{p.S_T0}, s{S_WAVE}")
        a(f"s_lshl_b32 s{p.S_T0}, s{p.S_T0}, 10")
        a(f"s_add_u32 s{p.S_T0}, s{p.S_T0}, {AF_BASE + 4 * 4096}")
        a(f"s_add_u32 s{p.S_T1}, s{p.S_WSRC}, {4 * 128 * 2048}")
        srd(a, p.S_PF, S_WS, WS_USED)
        a(f"s_cmp_gt_u32 s{S_WAVE}, 3")
        a(f"s_cselect_b32 s{p.S_PF}, s66, s{p.S_PF}")
        a(f"s_cselect_b32 s{p.S_PF+1}, s67, s{p.S_PF+1}")
        a(f"s_cselect_b32 s{p.S_PF+2}, {3584 * 2048}, s{p.S_PF+2}")
        a(f"s_cselect_b32 s{p.S_PFO}, s{p.S_T1}, s{p.S_T0}")
        a(f"s_mov_b32 s{p.S_PFS}, 4096")
        a(f"s_cselect_b32 s{p.S_PFS}, {128 * 2048}, s{p.S_PFS}")
        a(f"s_cselect_b32 s{p.S_T2}, 11, 7")
        a(f"s_and_b32 s{p.S_T0}, s{p.S_MB}, 3")
        a(f"s_lshl_b32 s{p.S_T0}, s{p.S_T0}, 2")
        a(f"s_add_u32 s{p.S_T0}, s{p.S_T0}, s{S_WAVE}")
        a(f"s_sub_u32 s{p.S_T0}, s{p.S_T0}, 4")
        a(f"s_lshl_b32 s{p.S_T0}, s{p.S_T0}, 3")
        a(f"s_cmp_gt_u32 s{S_WAVE}, 3")
        a(f"s_cselect_b32 s{p.S_T0}, s{p.S_T0}, 0")
        a(f"v_and_b32 v{p.V_PF}, 7, v{L}")
        a(f"v_add_u32 v{p.V_PF}, s{p.S_T0}, v{p.V_PF}")
        a(f"v_lshlrev_b32 v{p.V_PF}, s{p.S_T2}, v{p.V_PF}")


def phase2(a, st):
    RB = 65536
    STG = 16384
    S_HEAD, S_QBLK, S_SRC, S_LDS, S_CNT = 24, 25, 26, 27, 28
    S_T0, S_T1, S_T2 = 29, 30, 31
    S_TOKB, S_KVB, S_BIG, S_SP = 32, 33, 34, 35
    V_Q, V_K, V_V = 0, 8, 16
    V_G, V_OS, V_GA = 24, 25, 26
    V_S = [32, 48]
    V_C, V_O, V_P, V_L, V_ONE = 64, 80, 96, 104, 108
    V_KA, V_VA = 113, 114
    V_T = 116
    L = V_LANE

    a("s_load_dwordx2 s[64:65], s[0:1], 16")
    a("s_load_dwordx2 s[66:67], s[0:1], 48")
    a("s_load_dwordx2 s[68:69], s[0:1], 64")
    a(f"s_and_b32 s{S_HEAD}, s2, 7")
    a(f"s_lshl_b32 s{S_HEAD}, s{S_HEAD}, 2")
    a(f"s_lshr_b32 s{S_T0}, s2, 3")
    a(f"s_and_b32 s{S_T0}, s{S_T0}, 3")
    a(f"s_add_u32 s{S_HEAD}, s{S_HEAD}, s{S_T0}")
    a(f"s_lshr_b32 s{S_QBLK}, s2, 5")
    a(f"s_lshl_b32 s{S_TOKB}, s{S_QBLK}, 3")
    a(f"s_add_u32 s{S_TOKB}, s{S_TOKB}, s{S_WAVE}")
    a(f"s_lshl_b32 s{S_KVB}, s{S_HEAD}, 18")
    a(f"s_add_u32 s{S_KVB}, s{S_KVB}, {KV_BASE}")
    a(f"s_lshl_b32 s{S_LDS}, s{S_WAVE}, 11")
    a(f"s_add_u32 s{S_SRC}, s{S_KVB}, s{S_LDS}")
    a(f"s_lshr_b32 s{S_T0}, s{S_HEAD}, 1")

    def e_to_id(dst, e):
        a(f"s_mul_i32 s{S_T2}, s{e}, 171")
        a(f"s_lshr_b32 s{S_T2}, s{S_T2}, 9")
        a(f"s_mul_i32 s{dst}, s{S_T2}, 3")
        a(f"s_sub_u32 s{dst}, s{e}, s{dst}")
        a(f"s_lshl_b32 s{dst}, s{dst}, 3")
        a(f"s_add_u32 s{dst}, s{dst}, s{S_T2}")

    e_to_id(36, S_T0)
    a(f"s_lshl_b32 s{S_T1}, s{S_QBLK}, 5")
    a(f"s_add_u32 s36, s36, s{S_T1}")
    a(f"s_add_u32 s{S_T1}, s{S_T0}, 16")
    e_to_id(37, S_T1)
    a(f"s_add_u32 s{S_T1}, s{S_T0}, {24 - 8}")
    a(f"s_cmp_lt_u32 s{S_T0}, 8")
    a(f"s_cselect_b32 s37, s37, s{S_T1}")
    a(f"s_lshr_b32 s38, s{S_T0}, 1")
    a("s_add_u32 s38, s38, 24")
    a(f"v_and_b32 v{V_T}, 7, v{L}")
    a(f"v_lshlrev_b32 v{V_T}, 5, v{V_T}")
    a(f"v_add_u32 v{V_T+1}, s37, v{V_T}")
    a(f"v_add_u32 v{V_T+2}, s38, v{V_T}")
    a(f"v_mov_b32 v{V_T+3}, s36")
    a(f"v_cmp_gt_u32 vcc, 16, v{L}")
    a("s_nop 1")
    a(f"v_cndmask_b32 v{V_T+3}, v{V_T+3}, v{V_T+2}, vcc")
    a(f"v_cmp_gt_u32 vcc, 8, v{L}")
    a("s_nop 1")
    a(f"v_cndmask_b32 v{V_T+3}, v{V_T+3}, v{V_T+1}, vcc")
    a(f"v_lshlrev_b32 v{V_T+3}, 7, v{V_T+3}")
    a(f"v_add_u32 v{V_T+3}, {FLAG_BASE}, v{V_T+3}")
    a(f"v_mov_b32 v{V_T+4}, {C0}")
    a(f"s_cmp_lg_u32 s{S_WAVE}, 0")
    a("s_cbranch_scc1 L_p2_polled")
    ld0 = f"buffer_load_dword v{V_C0}, v{V_T+4}, {DBG}, 0 offen sc1"
    ld1 = f"buffer_load_dword v{V_T+5}, v{V_T+3}, {WS}, 0 offen sc1"
    a(f"v_mov_b32 v{V_T+6}, 0x100")
    spin(a, "L_p2_c0", ld0, V_C0, f"v{V_T+6}", S_SP)
    a(ld1)
    a("s_waitcnt vmcnt(0)")
    spin(a, "L_p2_fl", ld1, V_T + 5, 1, S_SP)
    a.label("L_p2_polled")
    a(f"v_and_b32 v{V_T}, 7, v{L}")
    a(f"v_lshrrev_b32 v{V_T+1}, 1, v{L}")
    a(f"v_and_b32 v{V_T+1}, 8, v{V_T+1}")
    a(f"v_or_b32 v{V_T}, v{V_T}, v{V_T+1}")
    a(f"v_lshrrev_b32 v{V_T+1}, 3, v{L}")
    a(f"v_and_b32 v{V_T+1}, 1, v{V_T+1}")
    a(f"v_lshlrev_b32 v{V_GA}, 4, v{V_T+1}")
    a(f"v_or_b32 v{V_GA}, v{V_GA}, v{V_T}")
    a(f"v_lshlrev_b32 v{V_GA}, 3, v{V_GA}")
    a(f"v_mul_u32_u24 v{V_OS}, {AF_KB * 1024}, v{V_T+1}")
    a(f"v_lshlrev_b32 v{V_T}, 4, v{V_T}")
    a(f"v_add_u32 v{V_OS}, v{V_OS}, v{V_T}")
    a(f"v_lshrrev_b32 v{V_T}, 5, v{L}")
    a(f"v_lshlrev_b32 v{V_T}, 8, v{V_T}")
    a(f"v_add_u32 v{V_OS}, v{V_OS}, v{V_T}")
    a(f"v_lshrrev_b32 v{V_T}, 4, v{L}")
    a(f"v_lshrrev_b32 v{V_T+1}, 2, v{L}")
    a(f"v_xor_b32 v{V_T}, v{V_T}, v{V_T+1}")
    a(f"v_and_b32 v{V_T}, 1, v{V_T}")
    a(f"v_cmp_eq_u32 vcc, 0, v{V_T}")
    a(f"v_mov_b32 v{V_T+1}, 0x3f803f80")
    a("s_nop 1")
    a(f"v_cndmask_b32 v{V_ONE}, 0, v{V_T+1}, vcc")
    for i in range(1, 4):
        a(f"v_mov_b32 v{V_ONE + i}, v{V_ONE}")
    for i in range(16):
        a(f"v_mov_b32 v{V_O + i}, 0")
    for i in range(4):
        a(f"v_mov_b32 v{V_L + i}, 0")
    a(f"v_mov_b32 v{V_KA}, v{V_L16}")
    a(f"v_mov_b32 v{V_VA}, v{V_L16}")
    a(f"s_mov_b32 s{S_BIG}, {f32bits(2.0 ** 60):#x}")
    a("s_waitcnt lgkmcnt(0)")
    P3.setup(a)
    a("s_barrier")
    st.stamp(5)

    a(f"s_lshl_b32 s{S_T0}, s{S_HEAD}, 17")
    a(f"s_lshl_b32 s{S_T1}, s{S_TOKB}, 11")
    a(f"s_add_u32 s{S_T0}, s{S_T0}, s{S_T1}")
    a(f"buffer_load_dwordx4 {vr(V_Q)}, v{V_L16}, {WS}, s{S_T0} offen sc1")
    a(f"buffer_load_dwordx4 {vr(V_Q + 4)}, v{V_L16}, {WS}, s{S_T0} offen offset:1024 sc1")

    def dma_stage():
        s = f"s_add_u32 m0, s{S_LDS}, {RB}\ns_nop 0\n"
        for i in range(2):
            s += f"buffer_load_dwordx4 v{V_L16}, {WS}, s{S_SRC} offen offset:{i * 1024} sc1 lds\n"
        s += f"s_add_u32 s{S_SRC}, s{S_SRC}, {STG}\n"
        s += f"s_add_u32 s{S_LDS}, s{S_LDS}, {STG}\n"
        s += f"s_and_b32 s{S_LDS}, s{S_LDS}, {4 * STG - 1}\n"
        return s

    pad = f"buffer_load_dword v{V_T+8}, v{V_L16}, {DBG}, 0 offen offset:256"
    a(dma_stage())
    a(dma_stage())
    a(pad)
    a(dma_stage())
    a(pad)
    a("s_waitcnt vmcnt(6)")
    a("s_barrier")
    signal(a, C2, V_T, "L_p2_sig2")
    st.stamp(6)

    def rdK(blk):
        o = (blk % 4) * 4096
        return [f"ds_read_b128 {vr(V_K)}, v{V_KA} offset:{o}", f"ds_read_b128 {vr(V_K + 4)}, v{V_KA} offset:{o + 1024}"]

    def rdV(blk):
        o = (blk % 4) * 4096 + 2048
        return [f"ds_read_b128 {vr(V_V)}, v{V_VA} offset:{o}", f"ds_read_b128 {vr(V_V + 4)}, v{V_VA} offset:{o + 1024}"]

    a(f"v_add_u32 v{V_KA}, {RB}, v{V_L16}")
    a(f"v_mov_b32 v{V_VA}, v{V_KA}")
    a(f"s_mov_b32 s{S_T2}, {RB}")
    advK = (f"s_add_u32 s{S_T2}, s{S_T2}, {STG}\ns_and_b32 s{S_T2}, s{S_T2}, {4 * STG - 1}\n"
            f"s_or_b32 s{S_T2}, s{S_T2}, {RB}\nv_add_u32 v{V_KA}, s{S_T2}, v{V_L16}")
    advV = f"v_add_u32 v{V_VA}, s{S_T2}, v{V_L16}"
    srd(a, 60, 66, 3584 * 2048)
    a("s_lshl_b32 s39, s2, 2")
    a(f"s_add_u32 s39, s39, s{S_WAVE}")
    a("s_sub_u32 s39, s39, 1")
    a("s_lshl_b32 s39, s39, 13")
    a(f"s_lshl_b32 s{S_T1}, s2, 13")
    a(f"s_cmp_eq_u32 s{S_WAVE}, 0")
    a("s_cselect_b32 s60, s64, s60")
    a("s_cselect_b32 s61, s65, s61")
    a(f"s_cselect_b32 s62, {1024 * 2048}, s62")
    a(f"s_cselect_b32 s39, s{S_T1}, s39")
    a(f"s_cmp_gt_u32 s{S_WAVE}, 4")
    a("s_cselect_b32 s62, 0, s62")
    a(f"v_lshlrev_b32 v{V_T+7}, 7, v{L}")
    touch = f"buffer_load_dword v{V_T+8}, v{V_T+7}, s[60:63], s39 offen\ns_mov_b32 s62, 0"

    def rowmax(dst, S, init=None):
        if init is None:
            a(f"v_max3_f32 v{dst}, v{S}, v{S+1}, v{S+2}")
            rest = list(range(3, 16))
        else:
            a(f"v_max3_f32 v{dst}, v{init}, v{S}, v{S+1}")
            rest = list(range(2, 16))
        while len(rest) >= 2:
            a(f"v_max3_f32 v{dst}, v{dst}, v{S + rest[0]}, v{S + rest[1]}")
            rest = rest[2:]
        if rest:
            a(f"v_max_f32 v{dst}, v{dst}, v{S + rest[0]}")

    def crosshalf_max(dst, tmp):
        a(f"v_mov_b32 v{tmp}, v{dst}")
        a("s_nop 1")
        a(f"v_permlane32_swap_b32 v{tmp}, v{dst}")
        a("s_nop 1")
        a(f"v_max_f32 v{dst}, v{dst}, v{tmp}")

    for r in rdK(0):
        a(r)
    for i in range(4):
        a(f"v_mov_b32 v{V_P + 4 + i}, 0")
        a(f"v_mov_b32 v{V_V + 4 + i}, 0")
    a("s_waitcnt lgkmcnt(0)")
    S0 = V_S[0]
    a(f"v_mfma_f32_32x32x16_bf16 {vr(S0, 16)}, {vr(V_K)}, {vr(V_Q)}, 0")
    a(f"v_mfma_f32_32x32x16_bf16 {vr(S0, 16)}, {vr(V_K + 4)}, {vr(V_Q + 4)}, {vr(S0, 16)}")
    for r in rdK(1):
        a(r)
    a(rdV(0)[0])
    a("s_nop 15")
    rowmax(V_T, S0)
    crosshalf_max(V_T, V_T + 1)
    for i in range(16):
        a(f"v_sub_f32 v{V_C + i}, 0, v{V_T}")
    for i in range(16):
        a(f"v_sub_f32 v{S0 + i}, v{S0 + i}, v{V_T}")
    a(f"v_mov_b32 v{V_T+4}, {C2}")
    a(f"v_mov_b32 v{V_T+6}, 0x100")
    ldc2 = f"buffer_load_dword v{V_T+5}, v{V_T+4}, {DBG}, 0 offen sc1"
    def block(i, extra=(), last=False):
        extra = list(extra)
        Sc = V_S[i & 1]
        Sn = V_S[(i + 1) & 1]
        ex = [f"v_exp_f32 v{Sc + r}, v{Sc + r}" for r in range(16)]
        cv = [f"v_cvt_pk_bf16_f32 v{V_P + d}, v{Sc + 2*d}, v{Sc + 2*d + 1}" for d in range(8)]
        kr = rdK(i + 2)
        a("s_waitcnt lgkmcnt(1)")
        if not last:
            a(f"v_mfma_f32_32x32x16_bf16 {vr(Sn, 16)}, {vr(V_K)}, {vr(V_Q)}, {vr(V_C, 16)}")
        a(kr[0])
        for e in ex[0:3]:
            a(e)
        if not last:
            a(f"v_mfma_f32_32x32x16_bf16 {vr(Sn, 16)}, {vr(V_K + 4)}, {vr(V_Q + 4)}, {vr(Sn, 16)}")
        a(kr[1])
        for x in extra[:1]:
            a(x)
        for e in ex[3:6]:
            a(e)
        a(f"v_mfma_f32_32x32x16_bf16 {vr(V_O, 16)}, {vr(V_V + 4)}, {vr(V_P + 4)}, {vr(V_O, 16)}")
        a(rdV(i)[1])
        a(ex[6])
        a(ex[7])
        a(cv[0])
        a(cv[1])
        a(f"v_mfma_f32_16x16x32_bf16 {vr(V_L)}, {vr(V_ONE)}, {vr(V_P + 4)}, {vr(V_L)}")
        for x in extra[1:2]:
            a(x)
        a(cv[2])
        a(cv[3])
        a(ex[8])
        a(ex[9])
        if i % 4 == 3:
            a(advV)
        a("s_waitcnt lgkmcnt(3)")
        a(f"v_mfma_f32_32x32x16_bf16 {vr(V_O, 16)}, {vr(V_V)}, {vr(V_P)}, {vr(V_O, 16)}")
        a(rdV(i + 1)[0])
        for e in ex[10:13]:
            a(e)
        a(f"v_mfma_f32_16x16x32_bf16 {vr(V_L)}, {vr(V_ONE)}, {vr(V_P)}, {vr(V_L)}")
        for x in extra[2:]:
            a(x)
        for e in ex[13:16]:
            a(e)
        for c in cv[4:8]:
            a(c)
        if last:
            a("s_waitcnt lgkmcnt(0)")
            a("s_nop 0")
            a(f"v_mfma_f32_32x32x16_bf16 {vr(V_O, 16)}, {vr(V_V + 4)}, {vr(V_P + 4)}, {vr(V_O, 16)}")
            a(f"v_mfma_f32_16x16x32_bf16 {vr(V_L)}, {vr(V_ONE)}, {vr(V_P + 4)}, {vr(V_L)}")

    a(f"s_mov_b32 s{S_CNT}, 0")
    a(".p2align 6")
    a.label("L_p2_loop")
    for i in range(4):
        if i == 2:
            a(f"s_cmp_eq_u32 s{S_CNT}, 13")
            a("s_cbranch_scc1 L_p2_tail")
            a("s_waitcnt vmcnt(4)")
            a("s_barrier")
            a(dma_stage())
            a(touch)
            a(f"s_cmp_eq_u32 s{S_CNT}, 12")
            a("s_cbranch_scc0 L_p2_cont")
            a(ldc2)
            a.label("L_p2_cont")
            a(advK)
        block(i)
    a(f"s_add_u32 s{S_CNT}, s{S_CNT}, 1")
    a(f"s_cmp_lt_u32 s{S_CNT}, 14")
    a("s_cbranch_scc1 L_p2_loop")
    pre = []
    for slot in range(4):
        pre += P3.batch(slot)
    for i in range(8):
        if i == 2:
            a(advK)
        n = 4 if (i < 4 and 'p3pf' in OPT) else 3
        block(i, extra=pre[:n], last=(i == 7))
        pre = pre[n:]
    assert not pre
    a("s_nop 15")
    st.stamp(7)

    a(f"v_max3_f32 v{V_T}, abs(v{V_O}), abs(v{V_O+1}), abs(v{V_O+2})")
    for i in range(3, 15, 2):
        a(f"v_max3_f32 v{V_T}, v{V_T}, abs(v{V_O+i}), abs(v{V_O+i+1})")
    a(f"v_max_f32 v{V_T}, v{V_T}, abs(v{V_O+15})")
    a(f"v_add_f32 v{V_T+1}, v{V_O}, v{V_O+1}")
    for i in range(2, 16):
        a(f"v_add_f32 v{V_T+1}, v{V_T+1}, v{V_O+i}")
    a(f"v_mov_b32 v{V_T+2}, 0x7c000000")
    a(f"v_cmp_lt_f32 vcc, v{V_T}, v{V_T+2}")
    a(f"v_cmp_gt_f32 s[36:37], s{S_BIG}, v{V_L}")
    a(f"v_cmp_o_f32 s[38:39], v{V_T+1}, v{V_T+1}")
    a("s_and_b64 vcc, vcc, s[36:37]")
    a("s_and_b64 vcc, vcc, s[38:39]")
    a("s_cmp_eq_u64 vcc, exec")
    a("s_cbranch_scc0 L_p2_slow")
    a.label("L_p2_fin")
    a(f"v_rcp_f32 v{V_T}, v{V_L}")
    a(f"s_mul_i32 s{S_T0}, s{S_TOKB}, {2 * AF_KB}")
    a(f"s_add_u32 s{S_T0}, s{S_T0}, s{S_HEAD}")
    a(f"s_lshl_b32 s{S_T0}, s{S_T0}, 10")
    a(f"s_add_u32 s{S_T0}, s{S_T0}, {AF_BASE + AF_O * 1024}")
    a(f"s_waitcnt vmcnt({28 if 'p3pf' in OPT else 24})")
    a(f"v_mul_f32 v{V_T}, v{V_T}, v{V_G}")
    for i in range(16):
        a(f"v_mul_f32 v{V_O + i}, v{V_O + i}, v{V_T}")
    for d in range(8):
        a(f"v_cvt_pk_bf16_f32 v{V_P + d}, v{V_O + 2*d}, v{V_O + 2*d + 1}")
    a(f"buffer_store_dwordx4 {vr(V_P)}, v{V_OS}, {WS}, s{S_T0} offen sc1")
    a(f"buffer_store_dwordx4 {vr(V_P + 4)}, v{V_OS}, {WS}, s{S_T0} offen offset:512 sc1")
    st.stamp(8)
    a("s_branch L_p3")

    a.label("L_p2_tail")
    a("s_waitcnt vmcnt(0)")
    a("s_barrier")
    spin(a, "L_p2_c2", ldc2, V_T + 5, f"v{V_T+6}", S_SP)
    a(f"s_lshl_b32 s{S_T0}, s{S_TOKB}, 8")
    a(f"s_add_u32 s{S_T0}, s{S_T0}, {G_BASE}")
    a(f"buffer_load_dword v{V_G}, v{V_GA}, {WS}, s{S_T0} offen sc1")
    a("s_branch L_p2_cont")

    a.label("L_p2_slow")
    a(f"v_mov_b32 v{V_T}, 0xff800000")
    a(f"s_mov_b32 s{S_T0}, s{S_KVB}")
    a(f"s_mov_b32 s{S_CNT}, 0")
    a.label("L_p2_slow_max")
    a(f"buffer_load_dwordx4 {vr(V_K)}, v{V_L16}, {WS}, s{S_T0} offen sc1")
    a(f"buffer_load_dwordx4 {vr(V_K + 4)}, v{V_L16}, {WS}, s{S_T0} offen offset:1024 sc1")
    a("s_waitcnt vmcnt(0)")
    a(f"v_mfma_f32_32x32x16_bf16 {vr(S0, 16)}, {vr(V_K)}, {vr(V_Q)}, 0")
    a(f"v_mfma_f32_32x32x16_bf16 {vr(S0, 16)}, {vr(V_K + 4)}, {vr(V_Q + 4)}, {vr(S0, 16)}")
    a("s_nop 15")
    rowmax(V_T, S0, init=V_T)
    a(f"s_add_u32 s{S_T0}, s{S_T0}, 4096")
    a(f"s_add_u32 s{S_CNT}, s{S_CNT}, 1")
    a(f"s_cmp_lt_u32 s{S_CNT}, 64")
    a("s_cbranch_scc1 L_p2_slow_max")
    crosshalf_max(V_T, V_T + 1)
    for i in range(16):
        a(f"v_sub_f32 v{V_C + i}, 0, v{V_T}")
        a(f"v_mov_b32 v{V_O + i}, 0")
    for i in range(4):
        a(f"v_mov_b32 v{V_L + i}, 0")
    a(f"s_mov_b32 s{S_T0}, s{S_KVB}")
    a(f"s_mov_b32 s{S_CNT}, 0")
    a.label("L_p2_slow_pv")
    a(f"buffer_load_dwordx4 {vr(V_K)}, v{V_L16}, {WS}, s{S_T0} offen sc1")
    a(f"buffer_load_dwordx4 {vr(V_K + 4)}, v{V_L16}, {WS}, s{S_T0} offen offset:1024 sc1")
    a(f"buffer_load_dwordx4 {vr(V_V)}, v{V_L16}, {WS}, s{S_T0} offen offset:2048 sc1")
    a(f"buffer_load_dwordx4 {vr(V_V + 4)}, v{V_L16}, {WS}, s{S_T0} offen offset:3072 sc1")
    a("s_waitcnt vmcnt(0)")
    a(f"v_mfma_f32_32x32x16_bf16 {vr(S0, 16)}, {vr(V_K)}, {vr(V_Q)}, {vr(V_C, 16)}")
    a(f"v_mfma_f32_32x32x16_bf16 {vr(S0, 16)}, {vr(V_K + 4)}, {vr(V_Q + 4)}, {vr(S0, 16)}")
    a("s_nop 15")
    for r in range(16):
        a(f"v_exp_f32 v{S0 + r}, v{S0 + r}")
    a("s_nop 0")
    for d in range(8):
        a(f"v_cvt_pk_bf16_f32 v{V_P + d}, v{S0 + 2*d}, v{S0 + 2*d + 1}")
    a("s_nop 1")
    a(f"v_mfma_f32_32x32x16_bf16 {vr(V_O, 16)}, {vr(V_V)}, {vr(V_P)}, {vr(V_O, 16)}")
    a(f"v_mfma_f32_32x32x16_bf16 {vr(V_O, 16)}, {vr(V_V + 4)}, {vr(V_P + 4)}, {vr(V_O, 16)}")
    a(f"v_mfma_f32_16x16x32_bf16 {vr(V_L)}, {vr(V_ONE)}, {vr(V_P)}, {vr(V_L)}")
    a(f"v_mfma_f32_16x16x32_bf16 {vr(V_L)}, {vr(V_ONE)}, {vr(V_P + 4)}, {vr(V_L)}")
    a("s_nop 15")
    a(f"s_add_u32 s{S_T0}, s{S_T0}, 4096")
    a(f"s_add_u32 s{S_CNT}, s{S_CNT}, 1")
    a(f"s_cmp_lt_u32 s{S_CNT}, 64")
    a("s_cbranch_scc1 L_p2_slow_pv")
    a("s_branch L_p2_fin")


def phase3(a, st):
    p = P3
    L = V_LANE
    T0, T1 = p.V_T, p.V_T + 1
    AF_, WF, V_G = p.AF_, p.WF, p.V_G

    def acc(tt, nt):
        return (tt * 4 + nt) * 4

    a.label("L_p3")
    for i in range(0, 64, 2):
        a(f"v_mov_b64 {vr(i, 2)}, 0")
    a(f"v_mov_b32 v{p.V_PA}, {C3}")
    a(f"v_mov_b32 v{T0}, 0x100")
    ldc3 = f"buffer_load_dword v{p.V_POLL}, v{p.V_PA}, {DBG}, 0 offen sc1"
    a(f"s_waitcnt vmcnt({28 if 'p3pf' in OPT else 24})")
    a("s_barrier")
    for r in p.wreads(0, 0):
        a(r)
    a(f"s_mov_b32 s{p.S_CNT}, 0")
    a(".p2align 6")
    a.label("L_p3_loop")
    a(f"s_cmp_lt_u32 s{p.S_CNT}, 4")
    a("s_cbranch_scc0 L_p3_events")
    a(f"s_cmp_eq_u32 s{p.S_CNT}, 1")
    a("s_cbranch_scc0 L_p3_body")
    signal(a, C3, T1, "L_p3_body")
    for u in range(4):
        a(f"s_waitcnt vmcnt({19 if 'p3pf' in OPT else 16}) lgkmcnt(0)")
        a("s_barrier")
        rd = p.wreads((u + 1) % 4, (u + 1) & 1)
        wd = p.wdma(u) + [p.pf() if 'p3pf' in OPT else ""]
        for tt in range(4):
            for nt in range(4):
                d = vr(acc(tt, nt))
                a(f"v_mfma_f32_16x16x32_bf16 {d}, {vr(WF[u & 1] + nt * 4)}, {vr(AF_ + u * 16 + tt * 4)}, {d}")
                i = tt * 4 + nt
                if i < 3:
                    a(wd[i])
                if 2 <= i < 10:
                    a(rd[i - 2])
            a(p.aload(u, tt))
    a(f"s_add_u32 s{p.S_CNT}, s{p.S_CNT}, 1")
    a(f"s_cmp_lt_u32 s{p.S_CNT}, 9")
    a("s_cbranch_scc1 L_p3_loop")
    st.stamp(9)
    a("s_branch L_p3_red")

    a.label("L_p3_events")
    a(f"s_cmp_eq_u32 s{p.S_CNT}, 4")
    a("s_cbranch_scc0 L_p3_e5")
    a(ldc3)
    for tt in range(4):
        a(f"buffer_load_dwordx2 {vr(V_G + 2 * tt, 2)}, v{p.V_GA}, {WS}, s{p.S_GOFF} offen offset:{tt * 128} sc1")
    a("s_branch L_p3_body")
    a.label("L_p3_e5")
    a(f"s_cmp_eq_u32 s{p.S_CNT}, 5")
    a("s_cbranch_scc0 L_p3_e6")
    spin(a, "L_p3_c3", ldc3, p.V_POLL, f"v{T0}", p.S_T2)
    a(f"s_lshl_b32 s{p.S_T0}, s{p.S_NB}, 7")
    a(f"s_cmp_gt_u32 s{S_WAVE}, 3")
    a(f"s_cselect_b32 s{p.S_PF}, s64, s{p.S_PF}")
    a(f"s_cselect_b32 s{p.S_PF+1}, s65, s{p.S_PF+1}")
    a(f"s_cselect_b32 s{p.S_PF+2}, {1024 * 2048}, s{p.S_PF+2}")
    a(f"s_cselect_b32 s{p.S_PFO}, s{p.S_T0}, s{p.S_PFO}")
    a("s_branch L_p3_body")
    a.label("L_p3_e6")
    a(f"s_cmp_eq_u32 s{p.S_CNT}, 6")
    a("s_cbranch_scc0 L_p3_e7")
    srd(a, p.S_W, 64, 1024 * 2048)
    a(f"s_lshl_b32 s{p.S_WSRC}, s{p.S_NB}, 7")
    a("s_branch L_p3_body")
    a.label("L_p3_e7")
    a(f"s_cmp_eq_u32 s{p.S_CNT}, 7")
    a("s_cbranch_scc0 L_p3_e8")
    a(f"s_mov_b32 s{p.S_PF+2}, 0")
    a("s_nop 7")
    for tt in range(4):
        for i in range(16):
            a(f"v_mul_f32 v{tt * 16 + i}, v{tt * 16 + i}, v{V_G + 2 * tt + 1}")
    a("s_branch L_p3_body")
    a.label("L_p3_e8")
    a(f"s_mov_b32 s{p.S_W+2}, 0")
    a(f"s_mov_b32 s{p.S_A+2}, 0")
    a("s_branch L_p3_body")

    a.label("L_p3_red")
    a("s_waitcnt vmcnt(0)")
    a("s_nop 7")
    a(f"s_mul_i32 s{p.S_T0}, s{p.S_TH}, {3 * 4096}")
    a(f"s_add_u32 s{p.S_T0}, s{p.S_T0}, {p.RED}")
    a(f"v_add_u32 v{T0}, s{p.S_T0}, v{V_L16}")
    a(f"v_add_u32 v{T1}, {2 * 2 * 12288}, v{T0}")
    R = AF_
    for kq in range(4):
        if kq < 3:
            a(f"s_cmp_eq_u32 s{p.S_KQ}, {kq}")
            a(f"s_cbranch_scc0 L_p3_red{kq + 1}")
        for tt in range(4):
            if tt == kq:
                continue
            src = kq if kq < tt else kq - 1
            for nt in range(4):
                base, off = (T0, tt * 24576) if tt < 2 else (T1, (tt - 2) * 24576)
                a(f"ds_write_b128 v{base}, {vr(acc(tt, nt))} offset:{off + src * 4096 + nt * 1024}")
        a("s_waitcnt lgkmcnt(0)")
        a("s_barrier")
        base, off = (T0, kq * 24576) if kq < 2 else (T1, (kq - 2) * 24576)
        for i in range(12):
            a(f"ds_read_b128 {vr(R + 4 * i)}, v{base} offset:{off + i * 1024}")
        a("s_waitcnt lgkmcnt(8)")
        for i in range(0, 16, 2):
            a(f"v_pk_add_f32 {vr(WF[0] + i, 2)}, {vr(kq * 16 + i, 2)}, {vr(R + i, 2)}")
        if kq < 3:
            a("s_branch L_p3_fin")
            a.label(f"L_p3_red{kq + 1}")
    a.label("L_p3_fin")
    for src in (1, 2):
        a(f"s_waitcnt lgkmcnt({8 - 4 * src})")
        for i in range(0, 16, 2):
            a(f"v_pk_add_f32 {vr(WF[0] + i, 2)}, {vr(WF[0] + i, 2)}, {vr(R + 16 * src + i, 2)}")
    S = WF[0]
    P = WF[1]
    for nt in range(4):
        a(f"v_cvt_pk_bf16_f32 v{P + 2*nt}, v{S + 4*nt}, v{S + 4*nt + 1}")
        a(f"v_cvt_pk_bf16_f32 v{P + 2*nt + 1}, v{S + 4*nt + 2}, v{S + 4*nt + 3}")
    a(f"v_and_b32 v{T0}, 15, v{L}")
    a(f"s_lshl_b32 s{p.S_T0}, s{p.S_KQ}, 4")
    a(f"s_add_u32 s{p.S_T0}, s{p.S_T0}, s{p.S_TOK}")
    a(f"v_add_u32 v{T0}, s{p.S_T0}, v{T0}")
    a(f"v_lshlrev_b32 v{T0}, 11, v{T0}")
    a(f"v_lshlrev_b32 v{T1}, 1, v{L}")
    a(f"v_and_b32 v{T1}, 32, v{T1}")
    a(f"v_add_u32 v{T0}, v{T0}, v{T1}")
    a(f"v_lshrrev_b32 v{T1}, 1, v{L}")
    a(f"v_and_b32 v{T1}, 16, v{T1}")
    a(f"v_add_u32 v{T0}, v{T0}, v{T1}")
    a(f"s_lshl_b32 s{p.S_T0}, s{p.S_NB}, 7")
    for m in range(2):
        a(f"v_permlane16_swap_b32 v{P + 4*m}, v{P + 4*m + 2}")
        a(f"v_permlane16_swap_b32 v{P + 4*m + 1}, v{P + 4*m + 3}")
    for m in range(2):
        a(f"buffer_store_dwordx4 {vr(P + 4*m)}, v{T0}, {sr(p.S_OUT)}, s{p.S_T0} offen offset:{64 * m}")
    st.stamp(10)
    if STAMPS:
        a("s_waitcnt vmcnt(0)")
    st.stamp(11)
    st.finish(100)


def main():
    global STAMPS
    if "--stamps" in sys.argv:
        STAMPS = True
        sys.argv.remove("--stamps")
    for x in list(sys.argv):
        if x.startswith("--opt="):
            OPT.update(x[6:].split(","))
            sys.argv.remove(x)
    out = sys.argv[1] if len(sys.argv) > 1 else f"cdna_kernels/{NAME}.s"
    ref = open(f"cdna_kernels/{NAME}.s.ref").read().split("\n")
    head = [ln for ln in ref if ln.startswith(";") and "@launch" not in ln and "Override launch" not in ln
            and "grid=ceil" not in ln]
    a = Asm()
    a(f".globl {KNAME}")
    a(".p2align 8")
    a(f".type {KNAME},@function")
    a.label(KNAME)
    a("s_cmp_ge_u32 s2, 256")
    a("s_cbranch_scc1 L_end")
    st = Stamper(a)
    st.start()
    phase1(a, st)
    phase2(a, st)
    phase3(a, st)
    a.label("L_end")
    a("s_endpgm")
    a.label("L_code_end")
    txt = "\n".join(head) + "\n"
    if "list" in OPT:
        txt += f"; @launch kernel={KNAME} grid=(256,1,1) block=(512,1,1) lds=163840\n"
    else:
        txt += "; @launch grid=(256,1,1) block=(512,1,1) lds=163840\n"
    txt += '.amdgcn_target "amdgcn-amd-amdhsa--gfx950"\n.text\n'
    txt += a.text()
    txt += f""".section .rodata,"a"
.p2align 6
.amdhsa_kernel {KNAME}
  .amdhsa_next_free_vgpr 256
  .amdhsa_next_free_sgpr 102
  .amdhsa_accum_offset 256
  .amdhsa_group_segment_fixed_size 0
  .amdhsa_kernarg_size 88
  .amdhsa_user_sgpr_count 2
  .amdhsa_user_sgpr_kernarg_segment_ptr 1
  .amdhsa_system_sgpr_workgroup_id_x 1
.end_amdhsa_kernel
"""
    open(out, "w").write(txt)


if __name__ == "__main__":
    main()
```

```python
import struct
import sys

NAME = "gated_mix__softmax_full_mha__swiglu_ffn__prompt"
KNAME = NAME + "_kernel"

QF_BASE = 0
KV_BASE = 4 << 20
AF_BASE = 12 << 20
AF_KB = 144
AF_O = 112
G_BASE = AF_BASE + 128 * AF_KB * 1024
FLAG_BASE = G_BASE + 2048 * 8
WP_BASE = FLAG_BASE + 256 * 128
WS_USED = WP_BASE + 16 * AF_KB * 4096
STAMP_BASE = 64 << 20
STAMPS = False
OPT = set()
LOG2E = 1.4426950408889634
QSCALE = (32 ** -0.5) * LOG2E
C0, C2, C3 = 0, 4, 8
SPIN_LIMIT = 1 << 22


def f32bits(x):
    return struct.unpack("<I", struct.pack("<f", x))[0]


class Asm:
    def __init__(self):
        self.lines = []

    def __call__(self, s):
        for ln in s.split("\n"):
            ln = ln.strip()
            if not ln:
                continue
            if ln.endswith(":") or ln.startswith("."):
                self.lines.append(ln)
            else:
                self.lines.append("    " + ln)

    def label(self, name):
        self.lines.append(name + ":")

    def text(self):
        return "\n".join(self.lines) + "\n"


def vr(base, n=4):
    return f"v[{base}:{base + n - 1}]"


def sr(base, n=4):
    return f"s[{base}:{base + n - 1}]"


def srd(a, dst, lo, nbytes):
    a(f"s_mov_b32 s{dst}, s{lo}")
    a(f"s_mov_b32 s{dst + 1}, s{lo + 1}")
    a(f"s_mov_b32 s{dst + 2}, {nbytes}")
    a(f"s_mov_b32 s{dst + 3}, 0x00020000")


class Stamper:
    def __init__(self, a):
        self.a = a

    def start(self):
        self.stamp(-1)

    def stamp(self, idx):
        if not STAMPS:
            return
        self.a("s_memrealtime s[80:81]")
        self.a("s_memtime s[82:83]")
        self.a("s_waitcnt lgkmcnt(0)")
        self.a(f"v_writelane_b32 v255, s80, {2 * (idx + 1)}")
        self.a(f"v_writelane_b32 v255, s82, {2 * (idx + 1) + 1}")

    def loop_stamp(self, base, scnt, mul, add):
        if not STAMPS:
            return
        self.a("s_memtime s[82:83]")
        self.a(f"s_mul_i32 s80, s{scnt}, {mul}")
        self.a(f"s_add_u32 m0, s80, {base + add}")
        self.a("s_waitcnt lgkmcnt(0)")
        self.a("v_writelane_b32 v255, s82, m0")

    def finish(self, vt):
        if not STAMPS:
            return
        a = self.a
        a("s_mov_b64 exec, -1")
        a("s_lshl_b32 s80, s2, 3")
        a(f"s_add_u32 s80, s80, s{S_WAVE}")
        a("s_lshl_b32 s80, s80, 8")
        a(f"s_add_u32 s80, s80, {STAMP_BASE}")
        a(f"s_mov_b32 s{S_WS + 2}, 0x10000000")
        a(f"v_lshlrev_b32 v{vt}, 2, v{V_LANE}")
        a(f"buffer_store_dword v255, v{vt}, {sr(S_WS)}, s80 offen")


S_WAVE = 3
S_WS, S_DBG = 4, 8
V_LANE, V_L16 = 228, 229
V_C0 = 251
V_H = 192
S_H0, S_H1 = 78, 79
FLAG_TP_E, FLAG_TP_O = -1, 1
NEARLY = 9
WS = sr(S_WS)
DBG = sr(S_DBG)


def signal(a, off, vt, label):
    a(f"s_cmp_lg_u32 s{S_WAVE}, 0")
    a(f"s_cbranch_scc1 {label}")
    a(f"v_mov_b32 v{vt}, 1")
    a(f"v_mov_b32 v{vt + 1}, {off}")
    a("s_mov_b64 exec, 1")
    a(f"buffer_atomic_add v{vt}, v{vt + 1}, {DBG}, 0 offen sc1")
    a("s_mov_b64 exec, -1")
    a.label(label)


def spin(a, label, load, vval, expect, scnt):
    a(f"s_mov_b32 s{scnt}, 0")
    a.label(label)
    a(f"v_cmp_{'ne' if expect == 1 else 'gt'}_u32 vcc, {expect}, v{vval}")
    a("s_cmp_eq_u64 vcc, 0")
    a(f"s_cbranch_scc1 {label}_ok")
    a("s_sleep 1")
    a(load)
    a("s_waitcnt vmcnt(0)")
    a(f"s_add_u32 s{scnt}, s{scnt}, 1")
    a(f"s_cmp_lt_u32 s{scnt}, {SPIN_LIMIT}")
    a(f"s_cbranch_scc1 {label}")
    a.label(f"{label}_ok")


def phase1(a, st):
    XBUF = [0, 32768]
    WBASE = 65536
    WSTRIDE = 40960
    S_X, S_QKV, S_G, S_U, S_GW, S_PF = 12, 16, 20, 24, 28, 32
    S_W1024, S_ROWBLK, S_XCD, S_COLSUB, S_KX = 36, 37, 38, 39, 40
    S_WO = 41
    S_CNT = 46
    S_T0, S_T1, S_T2, S_T3 = 47, 48, 49, 50
    S_WN = 51
    S_NL2E, S_ONE, S_QS = 52, 54, 56
    S_FU, S_QKU, S_VU, S_TOK, S_E = 58, 59, 60, 61, 62
    S_PFO, S_PFS = 63, 100
    XF = [160, 176]
    WF = 192
    V_XA = 212
    V_WA, V_WB = 214, 218
    V_DX = 220
    V_DW6, V_DW7 = 224, 225
    V_PF, V_PFD = 226, 227
    V_ST = 230
    V_T = 232
    L = V_LANE
    T0, T1, T2, T3, T4 = V_T, V_T + 1, V_T + 2, V_T + 3, V_T + 4

    def acc(nt, tt):
        return (nt * 4 + tt) * 4

    for dst, off in ((S_X, 0), (S_QKV, 8), (S_G, 32), (S_U, 40), (S_WS, 80), (S_DBG, 72), (64, 56)):
        a(f"s_load_dwordx2 {sr(dst, 2)}, s[0:1], {off}")
    a(f"v_and_b32 v{L}, 63, v0")
    a(f"v_lshrrev_b32 v{T0}, 6, v0")
    a(f"v_lshlrev_b32 v{V_L16}, 4, v{L}")
    a(f"v_readfirstlane_b32 s{S_WAVE}, v{T0}")
    a("s_getpc_b64 s[28:29]")
    a.label("L_p1_pc")
    a(f"s_sub_u32 s28, s28, L_p1_pc-{KNAME}")
    a("s_subb_u32 s29, s29, 0")
    a(f"s_cmp_eq_u32 s{S_WAVE}, 7")
    a(f"s_cselect_b32 s30, L_code_end-{KNAME}, 0")
    a("s_mov_b32 s31, 0x00020000")
    a(f"s_lshr_b32 s{S_COLSUB}, s2, 3")
    a(f"s_and_b32 s{S_COLSUB}, s{S_COLSUB}, 3")
    a(f"s_lshl_b32 s{S_T0}, s{S_COLSUB}, 13")
    a(f"v_lshlrev_b32 v{T1}, 7, v{L}")
    a(f"buffer_load_dword v{V_PFD}, v{T1}, s[28:31], s{S_T0} offen")
    a(f"s_and_b32 s{S_XCD}, s2, 7")
    a(f"s_lshr_b32 s{S_ROWBLK}, s2, 5")
    a(f"s_lshl_b32 s{S_W1024}, s{S_WAVE}, 10")
    a(f"s_and_b32 s{S_WN}, s{S_WAVE}, 1")
    a(f"s_lshl_b32 s{S_T0}, s{S_WN}, 2")
    a(f"v_lshrrev_b32 v{T0}, 4, v{L}")
    a(f"v_add_u32 v{T0}, s{S_T0}, v{T0}")
    a(f"v_and_b32 v{T1}, 7, v{L}")
    a(f"v_xor_b32 v{T0}, v{T0}, v{T1}")
    a(f"v_lshlrev_b32 v{T0}, 4, v{T0}")
    a(f"v_lshrrev_b32 v{T2}, 3, v{L}")
    a(f"s_lshl_b32 s{S_T0}, s{S_ROWBLK}, 8")
    a(f"s_lshl_b32 s{S_T1}, s{S_WAVE}, 3")
    a(f"s_add_u32 s{S_T0}, s{S_T0}, s{S_T1}")
    a(f"v_add_u32 v{T3}, s{S_T0}, v{T2}")
    a(f"v_lshlrev_b32 v{T3}, 11, v{T3}")
    a(f"v_add_u32 v{V_DX}, v{T3}, v{T0}")
    for j in range(1, 4):
        a(f"v_add_u32 v{V_DX + j}, {j * 64 * 2048}, v{V_DX}")
    a(f"v_and_b32 v{T0}, 2, v{T2}")
    a(f"s_lshl_b32 s{S_T0}, s{S_WN}, 2")
    a(f"v_or_b32 v{T0}, s{S_T0}, v{T0}")
    a(f"v_xor_b32 v{T0}, v{T0}, v{T1}")
    a(f"v_lshlrev_b32 v{T0}, 4, v{T0}")
    a(f"v_add_u32 v{T3}, s{S_T1}, v{T2}")
    a(f"v_mul_u32_u24 v{V_DW6}, 6144, v{T3}")
    a(f"v_add_u32 v{V_DW6}, v{V_DW6}, v{T0}")
    a(f"v_mul_u32_u24 v{V_DW7}, 7168, v{T3}")
    a(f"v_add_u32 v{V_DW7}, v{V_DW7}, v{T0}")
    a(f"s_mov_b32 s{S_KX}, 0")
    a(f"s_mul_i32 s{S_E}, s{S_XCD}, 3")
    a(f"s_add_u32 s{S_E}, s{S_E}, s{S_COLSUB}")
    a(f"s_lshl_b32 s{S_T0}, s{S_E}, 8")
    a(f"s_lshl_b32 s{S_T1}, s{S_XCD}, 7")
    a(f"s_add_u32 s{S_T2}, s{S_T1}, 6144")
    a(f"s_cmp_eq_u32 s{S_COLSUB}, 3")
    a(f"s_cselect_b32 s{S_WO}, s{S_T2}, s{S_T0}")
    a(f"s_mov_b32 s{S_WO+1}, s{S_WO}")
    a(f"s_add_u32 s{S_T0}, s{S_T0}, 128")
    a(f"s_lshl_b32 s{S_QKU}, s{S_XCD}, 1")
    a(f"s_and_b32 s{S_T2}, s{S_COLSUB}, 1")
    a(f"s_add_u32 s{S_QKU}, s{S_QKU}, s{S_T2}")
    a(f"s_lshr_b32 s{S_T2}, s{S_COLSUB}, 1")
    a(f"s_lshl_b32 s{S_T2}, s{S_T2}, 4")
    a(f"s_add_u32 s{S_QKU}, s{S_QKU}, s{S_T2}")
    a(f"s_lshl_b32 s{S_T2}, s{S_QKU}, 7")
    a(f"s_lshl_b32 s{S_T1}, s{S_XCD}, 8")
    a(f"s_add_u32 s{S_T1}, s{S_T1}, 4096")
    a(f"s_add_u32 s{S_T3}, s{S_T1}, 128")
    a(f"s_cmp_eq_u32 s{S_COLSUB}, 3")
    a(f"s_cselect_b32 s{S_WO+2}, s{S_T2}, s{S_T0}")
    a(f"s_cselect_b32 s{S_WO+3}, s{S_T1}, s{S_T0}")
    a(f"s_cselect_b32 s{S_WO+4}, s{S_T3}, s{S_T2}")
    a(f"s_lshl_b32 s{S_QKU}, s{S_QKU}, 1")
    a(f"s_add_u32 s{S_QKU}, s{S_QKU}, s{S_WN}")
    a(f"s_and_b32 s{S_T0}, s{S_WAVE}, 1")
    a(f"s_lshl_b32 s{S_T0}, s{S_T0}, 3")
    a(f"s_add_u32 s{S_T0}, s{S_T0}, 32")
    a(f"s_cmp_eq_u32 s{S_COLSUB}, 3")
    a(f"s_cselect_b32 s{S_T1}, 2, 4")
    a(f"s_cmp_ge_u32 s{S_WAVE}, s{S_T1}")
    a(f"s_cselect_b32 s{S_T0}, 8, s{S_T0}")
    a(f"s_mov_b32 s{S_T3}, 7168")
    a(f"s_cselect_b32 s{S_T3}, 6144, s{S_T3}")
    a(f"s_cmp_ge_u32 s{S_WAVE}, 5")
    a(f"s_cselect_b32 s{S_T0}, 0, s{S_T0}")
    a(f"s_cselect_b32 s{S_T3}, 2048, s{S_T3}")
    a(f"s_load_dwordx2 {sr(S_PF, 2)}, s[0:1], s{S_T0}")
    a(f"s_lshl_b32 s{S_PF+2}, s{S_T3}, 10")
    a(f"s_lshl_b32 s{S_PFS}, s{S_T3}, 6")
    a(f"s_mov_b32 s{S_PFO}, 0")
    for p_ in range(5):
        a(f"s_cmp_eq_u32 s{S_WAVE}, {p_}")
        a(f"s_cselect_b32 s{S_PFO}, s{S_WO+p_}, s{S_PFO}")
    a(f"s_cmp_eq_u32 s{S_WAVE}, 5")
    a(f"s_cselect_b32 s{S_PF+2}, {2048 * 2048}, s{S_PF+2}")
    a(f"s_cselect_b32 s{S_PFS}, 128, s{S_PFS}")
    a(f"s_cmp_gt_u32 s{S_WAVE}, 5")
    a(f"s_cselect_b32 s{S_PF+2}, 0, s{S_PF+2}")
    a(f"s_mov_b32 s{S_PF+3}, 0x00020000")
    a(f"s_lshl_b32 s{S_T0}, s{S_ROWBLK}, 3")
    a(f"s_lshl_b32 s{S_T1}, s{S_ROWBLK}, 8")
    a(f"s_lshl_b32 s{S_T2}, s{S_COLSUB}, 6")
    a(f"s_add_u32 s{S_T1}, s{S_T1}, s{S_T2}")
    a(f"s_cmp_lt_u32 s{S_WAVE}, 5")
    a(f"s_cselect_b32 s{S_T0}, s{S_T0}, s{S_T1}")
    a(f"s_cselect_b32 s{S_T1}, 7, 63")
    a(f"v_and_b32 v{V_PF}, s{S_T1}, v{L}")
    a(f"v_add_u32 v{V_PF}, s{S_T0}, v{V_PF}")
    a(f"v_mul_lo_u32 v{V_PF}, v{V_PF}, s{S_T3}")
    for dst, nb in ((S_X, 2048 * 2048), (S_QKV, 1024 * 6144), (S_G, 1024 * 7168), (S_U, 1024 * 7168),
                    (S_WS, WS_USED), (S_DBG, 256)):
        a(f"s_mov_b32 s{dst + 2}, {nb}")
        a(f"s_mov_b32 s{dst + 3}, 0x00020000")
    pf = (f"buffer_load_dword v{V_PFD}, v{V_PF}, {sr(S_PF)}, s{S_PFO} offen\n"
          f"s_add_u32 s{S_PFO}, s{S_PFO}, s{S_PFS}")
    a("s_waitcnt lgkmcnt(0)")
    a(pf)
    a(pf)
    a(f"s_cmp_eq_u32 s{S_COLSUB}, 3")
    a("s_cbranch_scc1 L_p1_O")

    for variant in ("E", "O"):
        a.label(f"L_p1_{variant}")
        if variant == "E":
            blocks = [S_G, S_U, S_G, S_U, S_QKV]
            tiles = [(V_WB + 0, 0, 0), (V_WB + 1, 0, 0),
                     (V_WA + 0, 0, 0), (V_WA + 1, 0, 0), (V_WA + 0, 8192, 0), (V_WA + 1, 8192, 0),
                     (V_WA + 2, 0, 0), (V_WA + 3, 0, 0), (V_WA + 2, 8192, 0), (V_WA + 3, 8192, 0)]
            hunits = [(2, 4), (6, 8)]
            qk_t, v_t = 0, None
            last_order = [(0, 0), (0, 1), (0, 2), (0, 3), (1, 0), (1, 1)] + [(0, n) for n in range(4, 10)] + \
                         [(1, n) for n in range(2, 10)]
        else:
            blocks = [S_G, S_U, S_QKV, S_QKV, S_QKV]
            tiles = [(V_WB + 0, 16384, 0), (V_WB + 1, 16384, 0),
                     (V_WA + 0, 0, 1), (V_WA + 1, 0, 1), (V_WA + 2, 0, 1), (V_WA + 3, 0, 1),
                     (V_WB + 0, 0, 0), (V_WB + 1, 0, 0), (V_WB + 0, 8192, 0), (V_WB + 1, 8192, 0)]
            hunits = [(6, 8)]
            qk_t, v_t = 0, 2
            last_order = [(0, 0), (0, 1), (0, 2), (0, 3), (1, 0), (1, 1), (1, 2), (1, 3), (0, 4), (1, 4),
                          (0, 5), (1, 5)] + [(k, n) for n in range(6, 10) for k in range(2)]

        def dma_list(buf):
            out = []
            for j in range(4):
                out.append(f"s_add_u32 m0, s{S_W1024}, {XBUF[buf] + j * 8192}\ns_nop 0\n"
                           f"buffer_load_dwordx4 v{V_DX + j}, {sr(S_X)}, s{S_KX} offen lds")
            for p in range(5):
                b = blocks[p]
                vd = V_DW6 if b == S_QKV else V_DW7
                pitch = 6144 if b == S_QKV else 7168
                out.append(f"s_add_u32 m0, s{S_W1024}, {WBASE + buf * WSTRIDE + p * 8192}\ns_nop 0\n"
                           f"buffer_load_dwordx4 v{vd}, {sr(b)}, s{S_WO + p} offen lds\n"
                           f"s_add_u32 s{S_WO + p}, s{S_WO + p}, {64 * pitch}")
            out[3] += f"\ns_add_u32 s{S_KX}, s{S_KX}, 128"
            return out

        for d in dma_list(0):
            a(d)
        a(pf)
        a(pf)
        d1 = dma_list(1)
        srd(a, S_GW, 64, 2048)
        a("s_lshr_b32 s65, s2, 6")
        a("s_add_u32 s65, s65, 1")
        a(f"s_lshr_b32 s{S_T0}, s{S_WAVE}, 1")
        a(f"s_lshl_b32 s{S_T0}, s{S_T0}, 13")
        a(f"v_and_b32 v{T1}, 15, v{L}")
        a(f"v_lshlrev_b32 v{T1}, 7, v{T1}")
        a(f"v_add_u32 v{T3}, s{S_T0}, v{T1}")
        a(f"v_lshrrev_b32 v{T1}, 1, v{L}")
        a(f"v_and_b32 v{T1}, 7, v{T1}")
        a(f"v_lshrrev_b32 v{T4}, 4, v{L}")
        a(f"v_xor_b32 v{T1}, v{T1}, v{T4}")
        a(f"v_lshlrev_b32 v{T1}, 4, v{T1}")
        a(f"v_add_u32 v{V_XA}, v{T3}, v{T1}")
        a(f"v_xor_b32 v{V_XA+1}, 64, v{V_XA}")
        a(f"v_lshlrev_b32 v{T4}, 10, v{T4}")
        a(f"v_lshrrev_b32 v{T1}, 2, v{L}")
        a(f"v_and_b32 v{T1}, 3, v{T1}")
        a(f"v_lshlrev_b32 v{T3}, 7, v{T1}")
        a(f"v_add_u32 v{T4}, v{T4}, v{T3}")
        a(f"v_lshlrev_b32 v{T1}, 2, v{L}")
        a(f"v_and_b32 v{T1}, 0x60, v{T1}")
        a(f"v_add_u32 v{T4}, v{T4}, v{T1}")
        a(f"v_and_b32 v{T1}, 3, v{L}")
        a(f"v_lshlrev_b32 v{T1}, 3, v{T1}")
        a(f"v_add_u32 v{T4}, v{T4}, v{T1}")

        if variant == "E":
            a(f"s_lshl_b32 s{S_T0}, s{S_WN}, 14")
            a(f"s_add_u32 s{S_T0}, s{S_T0}, {WBASE}")
            a(f"s_mov_b32 s{S_T1}, {WBASE + 4 * 8192}")
            a(f"s_lshl_b32 s{S_FU}, s{S_E}, 2")
            a(f"s_lshl_b32 s{S_T2}, s{S_WN}, 1")
            a(f"s_add_u32 s{S_FU}, s{S_FU}, s{S_T2}")
        else:
            a(f"s_lshl_b32 s{S_T0}, s{S_WN}, 13")
            a(f"s_add_u32 s{S_T0}, s{S_T0}, {WBASE + 3 * 8192}")
            a(f"s_mov_b32 s{S_T1}, {WBASE}")
            a(f"s_lshl_b32 s{S_FU}, s{S_XCD}, 1")
            a(f"s_add_u32 s{S_FU}, s{S_FU}, 96")
            a(f"s_add_u32 s{S_FU}, s{S_FU}, s{S_WN}")
            a(f"s_lshl_b32 s{S_VU}, s{S_XCD}, 2")
            a(f"s_lshl_b32 s{S_T2}, s{S_WN}, 1")
            a(f"s_add_u32 s{S_VU}, s{S_VU}, s{S_T2}")
        for q in range(4):
            a(f"v_xor_b32 v{V_WA + q}, {q << 5}, v{T4}")
            a(f"v_add_u32 v{V_WA + q}, s{S_T0}, v{V_WA + q}")
        a(f"s_lshl_b32 s{S_T2}, s{S_WN}, 6")
        a(f"v_xor_b32 v{V_WB}, s{S_T2}, v{T4}")
        a(f"v_add_u32 v{V_WB}, s{S_T1}, v{V_WB}")
        a(f"v_xor_b32 v{V_WB+1}, 32, v{V_WB}")
        a(f"v_lshrrev_b32 v{T1}, 3, v{L}")
        a(f"v_lshlrev_b32 v{T1}, 8, v{T1}")
        a(f"v_and_b32 v{T2}, 7, v{L}")
        a(f"v_lshlrev_b32 v{T2}, 4, v{T2}")
        a(f"v_add_u32 v{V_ST}, v{T1}, v{T2}")
        a(f"s_mov_b32 s{S_NL2E}, {f32bits(-LOG2E):#x}")
        a(f"s_mov_b32 s{S_NL2E+1}, {f32bits(-LOG2E):#x}")
        a(f"s_mov_b32 s{S_ONE}, 1.0")
        a(f"s_mov_b32 s{S_ONE+1}, 1.0")
        a(f"s_lshl_b32 s{S_T0}, s2, 3")
        a(f"s_add_u32 s{S_TOK}, s{S_T0}, s{S_WAVE}")
        for i in range(0, 160, 2):
            a(f"v_mov_b64 {vr(i, 2)}, 0")

        normal_order = [divmod(j, 10) for j in range(20)]

        def wread(buf, j, order=normal_order):
            ks, nt = order[j]
            va, imm, _ = tiles[nt]
            F = WF + (j % 5) * 4
            return [f"ds_read_b64_tr_b16 {vr(F + 2 * t, 2)}, v{va} offset:{buf * WSTRIDE + imm + (32 * ks + 4 * t) * 128}"
                    for t in range(2)]

        def xread(buf, ks, tt):
            return f"ds_read_b128 {vr(XF[ks] + 4 * tt)}, v{V_XA + ks} offset:{XBUF[buf] + tt * 2048}"

        def mfma(j, tt, order=normal_order):
            ks, nt = order[j]
            W = vr(WF + (j % 5) * 4)
            X = vr(XF[ks] + 4 * tt)
            A, B = (X, W) if tiles[nt][2] else (W, X)
            d = vr(acc(nt, tt))
            return f"v_mfma_f32_16x16x32_bf16 {d}, {A}, {B}, {d}"

        a(f"s_lshl_b32 s{S_T0}, s2, 7")
        a(f"s_add_u32 s{S_T0}, s{S_T0}, {FLAG_BASE}")
        a(f"v_mov_b32 v{T0}, 0")
        a(f"buffer_store_dword v{T0}, v{T0}, {WS}, s{S_T0} offen sc1")
        st.stamp(0)
        a("s_waitcnt vmcnt(3)")
        a("s_barrier")
        st.stamp(1)
        for tt in range(4):
            a(xread(0, 0, tt))
        for j in range(4):
            for r in wread(0, j):
                a(r)
        for d in d1[:2]:
            a(d)

        def stage(buf, post_barrier=None):
            for j in range(20):
                if j == 16:
                    a("s_waitcnt vmcnt(1) lgkmcnt(0)")
                    a("s_barrier")
                    st.loop_stamp(32, S_CNT, 2, buf)
                    assert not stage.pending
                    stage.pending = dma_list(buf) + [pf]
                    if post_barrier:
                        post_barrier()
                elif j % 2 == 0 and j < 16:
                    a("s_waitcnt lgkmcnt(4)")
                wr = wread(buf, j + 4) if j + 4 < 20 else wread(buf ^ 1, j + 4 - 20)
                xr = []
                if 2 <= j <= 5:
                    xr = [xread(buf, 1, j - 2)]
                if j in (16, 17):
                    xr = [xread(buf ^ 1, 0, 2 * (j - 16)), xread(buf ^ 1, 0, 2 * (j - 16) + 1)]
                dm, dm2 = [], []
                if stage.pending and j not in (16, 17):
                    if 'dma2' in OPT and not xr and j < 16:
                        dm2 = [stage.pending.pop(0)]
                if stage.pending and j not in (16, 17):
                    dm = [stage.pending.pop(0)]
                slots = [wr[:1], wr[1:] + dm2, xr[:1], xr[1:] + dm]
                for tt in range(4):
                    a(mfma(j, tt))
                    for f in slots[tt]:
                        a(f)

        GX, GW_, G0, G1, GA = V_T, V_T + 8, V_T + 16, V_T + 17, V_T + 18

        def events():
            a(f"s_cmp_eq_u32 s{S_CNT}, s65")
            a(f"s_cbranch_scc0 L_p1_{variant}_e0")
            signal(a, C0, G0, f"L_p1_{variant}_e0")
            a(f"s_cmp_eq_u32 s{S_CNT}, 7")
            a(f"s_cbranch_scc0 L_p1_{variant}_e7")
            a(f"v_mov_b32 v{G1}, {C0}")
            a(f"buffer_load_dword v{V_C0}, v{G1}, {DBG}, 0 offen sc1")
            a(f"s_lshl_b32 s{S_T0}, s{S_TOK}, 11")
            a(f"v_lshlrev_b32 v{G0}, 5, v{L}")
            a(f"buffer_load_dwordx4 {vr(GX)}, v{G0}, {sr(S_X)}, s{S_T0} offen")
            a(f"buffer_load_dwordx4 {vr(GX+4)}, v{G0}, {sr(S_X)}, s{S_T0} offen offset:16")
            a(f"buffer_load_dwordx4 {vr(GW_)}, v{G0}, {sr(S_GW)}, 0 offen")
            a(f"buffer_load_dwordx4 {vr(GW_+4)}, v{G0}, {sr(S_GW)}, 0 offen offset:16")
            for s_ in (S_X, S_QKV, S_G, S_U, S_PF):
                a(f"s_mov_b32 s{s_ + 2}, 0")
            a.label(f"L_p1_{variant}_e7")

        stage.pending = d1[2:] + [pf]
        a(f"s_mov_b32 s{S_CNT}, 0")
        a(".p2align 6")
        a.label(f"L_p1_{variant}_loop")
        saved = list(stage.pending)
        stage(0, post_barrier=events)
        a(f"s_cmp_eq_u32 s{S_CNT}, 7")
        a(f"s_cbranch_scc1 L_p1_{variant}_last")
        stage(1)
        assert stage.pending == saved
        a(f"s_add_u32 s{S_CNT}, s{S_CNT}, 1")
        a(f"s_branch L_p1_{variant}_loop")

        a.label(f"L_p1_{variant}_last")
        a(f"s_lshl_b32 s{S_T0}, s{S_ROWBLK}, 3")
        a(f"s_and_b32 s{S_T1}, s{S_WAVE}, 6")
        a(f"s_add_u32 s{S_T0}, s{S_T0}, s{S_T1}")
        TB = S_T0
        S_A0, S_A1, S_A2 = S_WO, S_WO + 1, S_WO + 2
        a(f"s_cmp_lt_u32 s{S_QKU}, 32")
        a(f"s_cselect_b32 s{S_QS}, {f32bits(QSCALE):#x}, 1.0")
        a(f"s_mov_b32 s{S_QS+1}, s{S_QS}")
        a(f"s_lshl_b32 s{S_T1}, s{S_QKU}, 17")
        a(f"s_lshl_b32 s{S_T2}, s{TB}, 11")
        a(f"s_add_u32 s{S_T1}, s{S_T1}, s{S_T2}")
        a(f"s_sub_u32 s{S_T3}, s{S_QKU}, 32")
        a(f"s_lshl_b32 s{S_T3}, s{S_T3}, 18")
        a(f"s_lshl_b32 s{S_T2}, s{TB}, 12")
        a(f"s_add_u32 s{S_T3}, s{S_T3}, s{S_T2}")
        a(f"s_add_u32 s{S_T3}, s{S_T3}, {KV_BASE}")
        a(f"s_cmp_lt_u32 s{S_QKU}, 32")
        a(f"s_cselect_b32 s{S_A0}, s{S_T1}, s{S_T3}")
        a(f"s_cselect_b32 s{S_T1}, 1, 2")
        a(f"s_lshl_b32 s{S_T1}, s{S_T1}, 11")
        a(f"s_add_u32 s{S_A1}, s{S_A0}, s{S_T1}")
        if v_t is not None:
            a(f"s_lshl_b32 s{S_A2}, s{S_VU}, 18")
            a(f"s_add_u32 s{S_A2}, s{S_A2}, s{S_T2}")
            a(f"s_add_u32 s{S_A2}, s{S_A2}, {KV_BASE + 2048}")

        def pack_store(r0, r1, soff, imm, pre=()):
            return list(pre) + [
                f"v_cvt_pk_bf16_f32 v{r0}, v{r0}, v{r0+1}", f"v_cvt_pk_bf16_f32 v{r0+1}, v{r0+2}, v{r0+3}",
                f"v_cvt_pk_bf16_f32 v{r0+2}, v{r1}, v{r1+1}", f"v_cvt_pk_bf16_f32 v{r0+3}, v{r1+2}, v{r1+3}",
                f"buffer_store_dwordx4 {vr(r0)}, v{V_ST}, {WS}, s{soff} offen offset:{imm} sc1"]

        done_at = {}
        for j, (ks, nt) in enumerate(last_order):
            done_at[nt] = j
        jobs = []
        for tt in range(4):
            pre = [f"v_pk_mul_f32 {vr(acc(qk_t + t, tt) + 2*h, 2)}, {vr(acc(qk_t + t, tt) + 2*h, 2)}, {sr(S_QS, 2)}"
                   for t in range(2) for h in range(2)]
            jobs.append((done_at[qk_t + 1] + 3, pack_store(acc(qk_t, tt), acc(qk_t + 1, tt),
                                                           S_A0 if tt < 2 else S_A1, (tt & 1) * 128, pre)))
        if v_t is not None:
            for n in range(4):
                vi, e = divmod(n, 2)
                for m in range(2):
                    pre = [f"s_add_u32 s{S_T1}, s{S_A2}, {vi * 262144 + m * 4096}"]
                    jobs.append((done_at[v_t + n] + 3, pack_store(acc(v_t + n, 2 * m), acc(v_t + n, 2 * m + 1),
                                                                  S_T1, e * 128, pre)))
        fill = []
        for j in range(20):
            if j % 2 == 0:
                a(f"s_waitcnt lgkmcnt({4 if j <= 16 else 0})")
            while jobs and jobs[0][0] <= j:
                fill += jobs.pop(0)[1]
            wr = wread(1, j + 4, last_order) if j + 4 < 20 else []
            xr = [xread(1, 1, 2 * j), xread(1, 1, 2 * j + 1)] if j < 2 else []
            slots = [xr[:1] + wr[:1], xr[1:] + wr[1:], [], []]
            for tt in range(4):
                a(mfma(j, tt, last_order))
                for f in slots[tt]:
                    a(f)
                for _ in range(2):
                    if fill:
                        a(fill.pop(0))
        assert not jobs
        for f in fill:
            a(f)
        st.stamp(2)
        tmp = XF[0]
        a(f"s_lshl_b32 s{S_T1}, s{TB}, 1")
        a(f"s_mul_i32 s{S_T1}, s{S_T1}, {AF_KB}")
        a(f"s_add_u32 s{S_T1}, s{S_T1}, s{S_FU}")
        a(f"s_lshl_b32 s{S_T1}, s{S_T1}, 10")
        a(f"s_add_u32 s{S_H0}, s{S_T1}, {AF_BASE}")
        if variant == "E":
            a(f"s_add_u32 s{S_H1}, s{S_H0}, 1024")
        else:
            a(f"s_mov_b32 s{S_H1}, {WS_USED}")

        def raise_flag():
            a("s_waitcnt vmcnt(0)")
            a("s_barrier")
            a(f"s_cmp_lg_u32 s{S_WAVE}, 0")
            a(f"s_cbranch_scc1 L_p1_{variant}_flag")
            a(f"s_lshl_b32 s{S_T2}, s2, 7")
            a(f"s_add_u32 s{S_T2}, s{S_T2}, {FLAG_BASE}")
            a(f"v_mov_b32 v{G0}, 1")
            a(f"v_mov_b32 v{G1}, 0")
            a("s_mov_b64 exec, 1")
            a(f"buffer_store_dword v{G0}, v{G1}, {WS}, s{S_T2} offen sc1")
            a("s_mov_b64 exec, -1")
            a.label(f"L_p1_{variant}_flag")
            st.stamp(3)

        ftp = FLAG_TP_E if variant == "E" else FLAG_TP_O
        if ftp < 0:
            raise_flag()
        for ui, (gt, ut) in enumerate(hunits):
            for tp in range(2):
                regs = []
                for tt in (2 * tp, 2 * tp + 1):
                    for t in range(2):
                        regs.append((acc(gt + t, tt), acc(ut + t, tt)))
                tb = tmp + tp * 16
                for i, (G, U) in enumerate(regs):
                    for h in range(2):
                        a(f"v_pk_mul_f32 {vr(tb + 4*i + 2*h, 2)}, {vr(G + 2*h, 2)}, {sr(S_NL2E, 2)}")
                for r in range(16):
                    a(f"v_exp_f32 v{tb + r}, v{tb + r}")
                for r in range(8):
                    a(f"v_pk_add_f32 {vr(tb + 2*r, 2)}, {vr(tb + 2*r, 2)}, {sr(S_ONE, 2)}")
                for r in range(16):
                    a(f"v_rcp_f32 v{tb + r}, v{tb + r}")
                for i, (G, U) in enumerate(regs):
                    for h in range(2):
                        a(f"v_pk_mul_f32 {vr(G + 2*h, 2)}, {vr(G + 2*h, 2)}, {vr(tb + 4*i + 2*h, 2)}")
                for i, (G, U) in enumerate(regs):
                    for h in range(2):
                        a(f"v_pk_mul_f32 {vr(G + 2*h, 2)}, {vr(G + 2*h, 2)}, {vr(U + 2*h, 2)}")
                for tt in (2 * tp, 2 * tp + 1):
                    P = V_H + (ui * 4 + tt) * 4
                    r0, r1 = acc(gt, tt), acc(gt + 1, tt)
                    a(f"v_cvt_pk_bf16_f32 v{P}, v{r0}, v{r0+1}")
                    a(f"v_cvt_pk_bf16_f32 v{P+1}, v{r0+2}, v{r0+3}")
                    a(f"v_cvt_pk_bf16_f32 v{P+2}, v{r1}, v{r1+1}")
                    a(f"v_cvt_pk_bf16_f32 v{P+3}, v{r1+2}, v{r1+3}")
                if ui == 0 and tp == ftp:
                    raise_flag()
        if variant == "E":
            a("s_branch L_p1_gate")

    a.label("L_p1_gate")
    a(f"v_mov_b32 v{GA}, 0")
    for i in range(8):
        a(f"v_lshlrev_b32 v{G0}, 16, v{GX+i}")
        a(f"v_lshlrev_b32 v{G1}, 16, v{GW_+i}")
        a(f"v_mul_f32 v{G0}, v{G0}, v{G1}")
        a(f"v_and_b32 v{GX+i}, 0xffff0000, v{GX+i}")
        a(f"v_and_b32 v{GW_+i}, 0xffff0000, v{GW_+i}")
        a(f"v_mul_f32 v{GX+i}, v{GX+i}, v{GW_+i}")
        a(f"v_cvt_pk_bf16_f32 v{G0}, v{G0}, v{GX+i}")
        a(f"v_lshlrev_b32 v{G1}, 16, v{G0}")
        a(f"v_and_b32 v{G0}, 0xffff0000, v{G0}")
        a(f"v_add_f32 v{GA}, v{GA}, v{G1}")
        a(f"v_add_f32 v{GA}, v{GA}, v{G0}")
    for dpp in ("row_shr:1 bound_ctrl:0", "row_shr:2 bound_ctrl:0", "row_shr:4 bound_ctrl:0", "row_shr:8 bound_ctrl:0",
                "row_bcast:15 row_mask:0xa", "row_bcast:31 row_mask:0xc"):
        a("s_nop 1")
        a(f"v_add_f32_dpp v{GA}, v{GA}, v{GA} {dpp}")
    a(f"v_cvt_pk_bf16_f32 v{G0}, v{GA}, v{GA}")
    a(f"v_and_b32 v{G0}, 0xffff0000, v{G0}")
    a(f"v_mul_f32 v{G0}, s{S_NL2E}, v{G0}")
    a(f"v_exp_f32 v{G0}, v{G0}")
    a("s_nop 0")
    a(f"v_add_f32 v{G0}, 1.0, v{G0}")
    a(f"v_rcp_f32 v{G0}, v{G0}")
    a("s_nop 0")
    a(f"v_cvt_pk_bf16_f32 v{G0}, v{G0}, v{G0}")
    a(f"v_and_b32 v{G0}, 0xffff0000, v{G0}")
    a(f"v_sub_f32 v{G1}, 1.0, v{G0}")
    a(f"v_cvt_pk_bf16_f32 v{G1}, v{G1}, v{G1}")
    a(f"v_and_b32 v{G1}, 0xffff0000, v{G1}")
    a(f"s_lshl_b32 s{S_T1}, s{S_TOK}, 3")
    a(f"s_add_u32 s{S_T1}, s{S_T1}, {G_BASE}")
    a(f"v_mov_b32 v{GA}, 0")
    a("s_mov_b32 exec_lo, 0")
    a("s_mov_b32 exec_hi, 0x80000000")
    a(f"buffer_store_dwordx2 {vr(G0, 2)}, v{GA}, {WS}, s{S_T1} offen sc1")
    a("s_mov_b64 exec, -1")
    st.stamp(4)


class P3:
    SLOT = 16384
    RED = 65536
    S_W, S_A, S_OUT = 12, 16, 20
    S_MB, S_NB, S_CNT = 40, 41, 42
    S_ASRC, S_WSRC, S_LW, S_KQ, S_TH = 43, 44, 45, 46, 47
    S_T0, S_T1, S_T2 = 48, 49, 50
    S_TOK, S_GOFF = 51, 52
    S_PFO, S_PFS = 53, 54
    S_PF = 56
    AF_ = 128
    WF = [192, 208]
    V_WA = 232
    V_DA = 236
    V_DW = 240
    V_GA = 241
    V_POLL, V_PA = 242, 243
    V_PF, V_PFD = 252, 253
    V_G = 244
    V_T = 224

    @staticmethod
    def wdma(slot):
        return [f"s_add_u32 m0, s{P3.S_LW}, {slot * P3.SLOT}\ns_nop 0\n"
                f"buffer_load_dwordx4 v{V_L16}, {sr(P3.S_A)}, s{P3.S_WSRC} offen sc1 lds",
                f"buffer_load_dwordx4 v{V_L16}, {sr(P3.S_A)}, s{P3.S_WSRC} offen offset:1024 sc1 lds\n"
                f"s_add_u32 s{P3.S_WSRC}, s{P3.S_WSRC}, {P3.SLOT}"]

    @staticmethod
    def aload(slot, tt):
        s = (f"buffer_load_dwordx4 {vr(P3.AF_ + slot * 16 + tt * 4)}, v{P3.V_DA + tt}, {sr(P3.S_A)}, "
             f"s{P3.S_ASRC} offen{'' if 'nosc1' in OPT else ' sc1'}")
        if tt == 3:
            s += f"\ns_add_u32 s{P3.S_ASRC}, s{P3.S_ASRC}, 4096"
            if 'pina' in OPT:
                s += f"\ns_and_b32 s{P3.S_ASRC}, s{P3.S_ASRC}, 0xffff3fff"
        return s

    @staticmethod
    def batch(slot):
        return P3.wdma(slot) + [P3.aload(slot, tt) for tt in range(4)]

    @staticmethod
    def wreads(slot, fs):
        return [f"ds_read_b128 {vr(P3.WF[fs] + q * 4)}, v{P3.V_WA} offset:{slot * P3.SLOT + q * 1024}" for q in range(4)]

    @staticmethod
    def setup(a):
        p = P3
        L = V_LANE
        T0, T1, T2 = p.V_T, p.V_T + 1, p.V_T + 2
        a(f"s_and_b32 s{p.S_T0}, s2, 7")
        a(f"s_lshr_b32 s{p.S_T1}, s2, 3")
        a(f"s_lshr_b32 s{p.S_MB}, s{p.S_T0}, 1")
        a(f"s_lshl_b32 s{p.S_MB}, s{p.S_MB}, 2")
        a(f"s_and_b32 s{p.S_T2}, s{p.S_T1}, 3")
        a(f"s_add_u32 s{p.S_MB}, s{p.S_MB}, s{p.S_T2}")
        a(f"s_and_b32 s{p.S_NB}, s{p.S_T0}, 1")
        a(f"s_lshl_b32 s{p.S_NB}, s{p.S_NB}, 3")
        a(f"s_lshr_b32 s{p.S_T2}, s{p.S_T1}, 2")
        a(f"s_add_u32 s{p.S_NB}, s{p.S_NB}, s{p.S_T2}")
        a(f"s_and_b32 s{p.S_TH}, s{S_WAVE}, 1")
        a(f"s_lshr_b32 s{p.S_KQ}, s{S_WAVE}, 1")
        a(f"s_lshl_b32 s{p.S_T0}, s{p.S_MB}, 3")
        a(f"s_lshl_b32 s{p.S_T1}, s{p.S_TH}, 2")
        a(f"s_add_u32 s{p.S_T0}, s{p.S_T0}, s{p.S_T1}")
        a(f"s_lshl_b32 s{p.S_TOK}, s{p.S_T0}, 4")
        a(f"s_mul_i32 s{p.S_ASRC}, s{p.S_T0}, {AF_KB}")
        a(f"s_add_u32 s{p.S_ASRC}, s{p.S_ASRC}, s{p.S_KQ}")
        a(f"s_lshl_b32 s{p.S_ASRC}, s{p.S_ASRC}, 10")
        a(f"s_add_u32 s{p.S_ASRC}, s{p.S_ASRC}, {AF_BASE}")
        a(f"v_mov_b32 v{p.V_DA}, v{V_L16}")
        for i in range(1, 4):
            a(f"v_add_u32 v{p.V_DA + i}, {i * AF_KB * 1024}, v{V_L16}")
        a(f"s_lshl_b32 s{p.S_LW}, s{S_WAVE}, 11")
        a(f"s_mul_i32 s{p.S_WSRC}, s{p.S_NB}, {AF_KB * 4096}")
        a(f"s_add_u32 s{p.S_WSRC}, s{p.S_WSRC}, s{p.S_LW}")
        a(f"s_add_u32 s{p.S_WSRC}, s{p.S_WSRC}, {WP_BASE}")
        a(f"s_lshl_b32 s{p.S_T0}, s{p.S_KQ}, 12")
        a(f"v_add_u32 v{p.V_WA}, s{p.S_T0}, v{V_L16}")
        a(f"s_lshl_b32 s{p.S_GOFF}, s{p.S_TOK}, 3")
        a(f"s_add_u32 s{p.S_GOFF}, s{p.S_GOFF}, {G_BASE}")
        a(f"v_and_b32 v{p.V_GA}, 15, v{L}")
        a(f"v_lshlrev_b32 v{p.V_GA}, 3, v{p.V_GA}")
        a(f"v_mov_b32 v{p.V_PA}, 0")
        srd(a, p.S_A, S_WS, WS_USED)
        srd(a, p.S_OUT, 68, 2048 * 2048)


def phase2(a, st):
    RB = 65536
    STG = 32768
    NB = 8
    S_HEAD, S_QBLK, S_SRC, S_LDS, S_CNT = 24, 25, 26, 27, 28
    S_T0, S_T1, S_T2 = 29, 30, 31
    S_TOKB, S_KVB, S_BIG, S_SP = 32, 33, 34, 35
    V_Q, V_K, V_V = 0, 8, 16
    V_G, V_OS, V_GA = 24, 25, 26
    V_S = [32, 48]
    V_C, V_O, V_P, V_L, V_ONE = 64, 80, 96, 104, 108
    V_KA, V_VA = 113, 114
    V_T = 116
    L = V_LANE

    a("s_load_dwordx2 s[64:65], s[0:1], 16")
    a("s_load_dwordx2 s[66:67], s[0:1], 48")
    a("s_load_dwordx2 s[68:69], s[0:1], 64")
    a(f"s_and_b32 s{S_HEAD}, s2, 7")
    a(f"s_lshl_b32 s{S_HEAD}, s{S_HEAD}, 2")
    a(f"s_lshr_b32 s{S_T0}, s2, 3")
    a(f"s_and_b32 s{S_T0}, s{S_T0}, 3")
    a(f"s_add_u32 s{S_HEAD}, s{S_HEAD}, s{S_T0}")
    a(f"s_lshr_b32 s{S_QBLK}, s2, 5")
    a(f"s_lshl_b32 s{S_TOKB}, s{S_QBLK}, 3")
    a(f"s_add_u32 s{S_TOKB}, s{S_TOKB}, s{S_WAVE}")
    a(f"s_lshl_b32 s{S_KVB}, s{S_HEAD}, 18")
    a(f"s_add_u32 s{S_KVB}, s{S_KVB}, {KV_BASE}")
    a(f"s_lshl_b32 s{S_LDS}, s{S_WAVE}, 12")
    a(f"s_add_u32 s{S_SRC}, s{S_KVB}, s{S_LDS}")
    a(f"s_add_u32 s{S_LDS}, s{S_LDS}, {RB}")
    a(f"s_and_b32 s{S_T0}, s2, 7")
    a(f"s_lshl_b32 s{S_T1}, s{S_HEAD}, 2")
    a(f"s_and_b32 s{S_T1}, s{S_T1}, 8")
    a(f"s_add_u32 s36, s{S_T0}, s{S_T1}")
    a("s_add_u32 s37, s36, 16")
    a(f"s_add_u32 s38, s{S_T0}, 24")
    a(f"s_lshl_b32 s{S_T1}, s{S_QBLK}, 5")
    a(f"s_add_u32 s36, s36, s{S_T1}")
    a(f"v_and_b32 v{V_T}, 7, v{L}")
    a(f"v_lshlrev_b32 v{V_T}, 5, v{V_T}")
    a(f"v_add_u32 v{V_T+1}, s37, v{V_T}")
    a(f"v_add_u32 v{V_T+2}, s38, v{V_T}")
    a(f"v_mov_b32 v{V_T+3}, s36")
    a(f"v_cmp_gt_u32 vcc, 16, v{L}")
    a("s_nop 1")
    a(f"v_cndmask_b32 v{V_T+3}, v{V_T+3}, v{V_T+2}, vcc")
    a(f"v_cmp_gt_u32 vcc, 8, v{L}")
    a("s_nop 1")
    a(f"v_cndmask_b32 v{V_T+3}, v{V_T+3}, v{V_T+1}, vcc")
    a(f"v_lshlrev_b32 v{V_T+3}, 7, v{V_T+3}")
    a(f"v_add_u32 v{V_T+3}, {FLAG_BASE}, v{V_T+3}")
    a(f"v_mov_b32 v{V_T+4}, {C0}")
    a(f"s_cmp_lg_u32 s{S_WAVE}, 0")
    a("s_cbranch_scc1 L_p2_polled")
    ld0 = f"buffer_load_dword v{V_C0}, v{V_T+4}, {DBG}, 0 offen sc1"
    ld1 = f"buffer_load_dword v{V_T+5}, v{V_T+3}, {WS}, 0 offen sc1"
    a(f"v_mov_b32 v{V_T+6}, 0x100")
    spin(a, "L_p2_c0", ld0, V_C0, f"v{V_T+6}", S_SP)
    a(ld1)
    a("s_waitcnt vmcnt(0)")
    spin(a, "L_p2_fl", ld1, V_T + 5, 1, S_SP)
    a.label("L_p2_polled")
    a(f"v_and_b32 v{V_T}, 7, v{L}")
    a(f"v_lshrrev_b32 v{V_T+1}, 1, v{L}")
    a(f"v_and_b32 v{V_T+1}, 8, v{V_T+1}")
    a(f"v_or_b32 v{V_T}, v{V_T}, v{V_T+1}")
    a(f"v_lshrrev_b32 v{V_T+1}, 3, v{L}")
    a(f"v_and_b32 v{V_T+1}, 1, v{V_T+1}")
    a(f"v_lshlrev_b32 v{V_GA}, 4, v{V_T+1}")
    a(f"v_or_b32 v{V_GA}, v{V_GA}, v{V_T}")
    a(f"v_lshlrev_b32 v{V_GA}, 3, v{V_GA}")
    a(f"v_mul_u32_u24 v{V_OS}, {AF_KB * 1024}, v{V_T+1}")
    a(f"v_lshlrev_b32 v{V_T}, 4, v{V_T}")
    a(f"v_add_u32 v{V_OS}, v{V_OS}, v{V_T}")
    a(f"v_lshrrev_b32 v{V_T}, 5, v{L}")
    a(f"v_lshlrev_b32 v{V_T}, 8, v{V_T}")
    a(f"v_add_u32 v{V_OS}, v{V_OS}, v{V_T}")
    a(f"v_lshrrev_b32 v{V_T}, 4, v{L}")
    a(f"v_lshrrev_b32 v{V_T+1}, 2, v{L}")
    a(f"v_xor_b32 v{V_T}, v{V_T}, v{V_T+1}")
    a(f"v_and_b32 v{V_T}, 1, v{V_T}")
    a(f"v_cmp_eq_u32 vcc, 0, v{V_T}")
    a(f"v_mov_b32 v{V_T+1}, 0x3f803f80")
    a("s_nop 1")
    a(f"v_cndmask_b32 v{V_ONE}, 0, v{V_T+1}, vcc")
    for i in range(1, 4):
        a(f"v_mov_b32 v{V_ONE + i}, v{V_ONE}")
    for i in range(16):
        a(f"v_mov_b32 v{V_O + i}, 0")
    for i in range(4):
        a(f"v_mov_b32 v{V_L + i}, 0")
    a(f"v_mov_b32 v{V_KA}, v{V_L16}")
    a(f"v_mov_b32 v{V_VA}, v{V_L16}")
    a(f"s_mov_b32 s{S_BIG}, {f32bits(2.0 ** 60):#x}")
    a("s_waitcnt lgkmcnt(0)")
    P3.setup(a)
    S_UD, S_UO = 56, 60
    S_U = [70, 71]
    S_UP = [72, 73]
    V_UA, V_UR = V_T + 9, V_T + 10
    S_KVD = 12
    srd(a, S_KVD, S_WS, WS_USED)
    a(f"s_add_u32 s{S_KVD + 2}, s{S_KVB}, {8 * STG}")
    srd(a, S_UD, 66, 3584 * 2048)
    srd(a, S_UO, 64, 1024 * 2048)
    a(f"s_sub_u32 s{S_T2}, s{S_WAVE}, 1")
    for which, mul in enumerate((7, 2)):
        a(f"s_mul_i32 s{S_T0}, s2, {mul}")
        a(f"s_add_u32 s{S_T0}, s{S_T0}, s{S_T2}")
        a(f"s_lshr_b32 s{S_T1}, s{S_T0}, 4")
        a(f"s_and_b32 s{S_T0}, s{S_T0}, 15")
        a(f"s_mul_i32 s{S_UP[which]}, s{S_T0}, {AF_KB}")
        a(f"s_add_u32 s{S_UP[which]}, s{S_UP[which]}, s{S_T1}")
        a(f"s_lshl_b32 s{S_UP[which]}, s{S_UP[which]}, 12")
        a(f"s_add_u32 s{S_UP[which]}, s{S_UP[which]}, {WP_BASE + which * AF_O * 4096}")
        a(f"s_lshl_b32 s{S_T1}, s{S_T1}, 16")
        a(f"s_lshl_b32 s{S_T0}, s{S_T0}, 7")
        a(f"s_add_u32 s{S_U[which]}, s{S_T0}, s{S_T1}")
        a(f"s_cmp_lt_u32 s{S_T2}, {mul}")
        a(f"s_cselect_b32 s{S_U[which]}, s{S_U[which]}, {3584 * 2048}")
        a(f"s_cselect_b32 s{S_UP[which]}, s{S_UP[which]}, {WS_USED}")
    a(f"v_lshrrev_b32 v{V_T}, 3, v{L}")
    a(f"v_and_b32 v{V_T+1}, 6, v{V_T}")
    a(f"v_and_b32 v{V_T+2}, 7, v{L}")
    a(f"v_xor_b32 v{V_T+1}, v{V_T+1}, v{V_T+2}")
    a(f"v_lshlrev_b32 v{V_T+1}, 4, v{V_T+1}")
    a(f"v_lshlrev_b32 v{V_T}, 11, v{V_T}")
    a(f"v_add_u32 v{V_UA}, v{V_T}, v{V_T+1}")
    a(f"v_lshrrev_b32 v{V_T}, 2, v{L}")
    a(f"v_lshlrev_b32 v{V_T}, 7, v{V_T}")
    a(f"v_lshlrev_b32 v{V_T+1}, 2, v{L}")
    a(f"v_and_b32 v{V_T+1}, 0x60, v{V_T+1}")
    a(f"v_add_u32 v{V_T}, v{V_T}, v{V_T+1}")
    a(f"v_and_b32 v{V_T+1}, 3, v{L}")
    a(f"v_lshlrev_b32 v{V_T+1}, 3, v{V_T+1}")
    a(f"v_add_u32 v{V_T}, v{V_T}, v{V_T+1}")
    a(f"s_lshl_b32 s74, s{S_WAVE}, 13")
    a(f"v_add_u32 v{V_UR}, s74, v{V_T}")
    a("s_barrier")
    st.stamp(5)

    a(f"s_lshl_b32 s{S_T0}, s{S_HEAD}, 17")
    a(f"s_lshl_b32 s{S_T1}, s{S_TOKB}, 11")
    a(f"s_add_u32 s{S_T0}, s{S_T0}, s{S_T1}")
    a(f"buffer_load_dwordx4 {vr(V_Q)}, v{V_L16}, {WS}, s{S_T0} offen sc1")
    a(f"buffer_load_dwordx4 {vr(V_Q + 4)}, v{V_L16}, {WS}, s{S_T0} offen offset:1024 sc1")

    def dma_stage():
        s = f"s_mov_b32 m0, s{S_LDS}\ns_add_u32 s{S_LDS}, s{S_LDS}, {STG}\n"
        for i in range(4):
            s += f"buffer_load_dwordx4 v{V_L16}, {sr(S_KVD)}, s{S_SRC} offen offset:{i * 1024} sc1 lds\n"
        s += f"s_add_u32 s{S_SRC}, s{S_SRC}, {STG}\n"
        s += f"s_sub_u32 s{S_T1}, s{S_LDS}, {3 * STG}\n"
        s += f"s_cmp_ge_u32 s{S_LDS}, {RB + 3 * STG}\n"
        s += f"s_cselect_b32 s{S_LDS}, s{S_T1}, s{S_LDS}\n"
        return s

    a(dma_stage())
    a("s_waitcnt vmcnt(0)")
    a("s_barrier")
    st.stamp(6)

    def rdK(blk):
        o = (blk % NB) * 4096
        return [f"ds_read_b128 {vr(V_K)}, v{V_KA} offset:{o}", f"ds_read_b128 {vr(V_K + 4)}, v{V_KA} offset:{o + 1024}"]

    def rdV(blk):
        o = (blk % NB) * 4096 + 2048
        return [f"ds_read_b128 {vr(V_V)}, v{V_VA} offset:{o}", f"ds_read_b128 {vr(V_V + 4)}, v{V_VA} offset:{o + 1024}"]

    a(f"v_add_u32 v{V_KA}, {RB}, v{V_L16}")
    a(f"v_mov_b32 v{V_VA}, v{V_KA}")
    a(f"s_mov_b32 s{S_T2}, {RB}")
    advK = (f"s_add_u32 s{S_T2}, s{S_T2}, {STG}\ns_cmp_ge_u32 s{S_T2}, {RB + 3 * STG}\n"
            f"s_cselect_b32 s{S_T2}, {RB}, s{S_T2}\nv_add_u32 v{V_KA}, s{S_T2}, v{V_L16}")
    advV = f"v_add_u32 v{V_VA}, s{S_T2}, v{V_L16}"

    def rowmax(dst, S, init=None):
        if init is None:
            a(f"v_max3_f32 v{dst}, v{S}, v{S+1}, v{S+2}")
            rest = list(range(3, 16))
        else:
            a(f"v_max3_f32 v{dst}, v{init}, v{S}, v{S+1}")
            rest = list(range(2, 16))
        while len(rest) >= 2:
            a(f"v_max3_f32 v{dst}, v{dst}, v{S + rest[0]}, v{S + rest[1]}")
            rest = rest[2:]
        if rest:
            a(f"v_max_f32 v{dst}, v{dst}, v{S + rest[0]}")

    def crosshalf_max(dst, tmp):
        a(f"v_mov_b32 v{tmp}, v{dst}")
        a("s_nop 1")
        a(f"v_permlane32_swap_b32 v{tmp}, v{dst}")
        a("s_nop 1")
        a(f"v_max_f32 v{dst}, v{dst}, v{tmp}")

    for r in rdK(0):
        a(r)
    for i in range(4):
        a(f"v_mov_b32 v{V_P + 4 + i}, 0")
        a(f"v_mov_b32 v{V_V + 4 + i}, 0")
    a("s_waitcnt lgkmcnt(0)")
    S0 = V_S[0]
    a(f"v_mfma_f32_32x32x16_bf16 {vr(S0, 16)}, {vr(V_K)}, {vr(V_Q)}, 0")
    a(f"v_mfma_f32_32x32x16_bf16 {vr(S0, 16)}, {vr(V_K + 4)}, {vr(V_Q + 4)}, {vr(S0, 16)}")
    for r in rdK(1):
        a(r)
    a(rdV(0)[0])
    a("s_nop 15")
    a(f"s_cmp_eq_u32 s{S_WAVE}, 0")
    a("s_cselect_b32 s75, 4, 99")
    rowmax(V_T, S0)
    crosshalf_max(V_T, V_T + 1)
    for i in range(16):
        a(f"v_sub_f32 v{V_C + i}, 0, v{V_T}")
    for i in range(16):
        a(f"v_sub_f32 v{S0 + i}, v{S0 + i}, v{V_T}")
    a(f"v_mov_b32 v{V_T+4}, {C2}")
    a(f"v_mov_b32 v{V_T+6}, 0x100")
    ldc2 = f"buffer_load_dword v{V_T+5}, v{V_T+4}, {DBG}, 0 offen sc1"
    def block(i, extra=(), last=False):
        extra = list(extra)
        Sc = V_S[i & 1]
        Sn = V_S[(i + 1) & 1]
        ex = [f"v_exp_f32 v{Sc + r}, v{Sc + r}" for r in range(16)]
        cv = [f"v_cvt_pk_bf16_f32 v{V_P + d}, v{Sc + 2*d}, v{Sc + 2*d + 1}" for d in range(8)]
        kr = rdK(i + 2)
        a("s_waitcnt lgkmcnt(1)")
        if not last:
            a(f"v_mfma_f32_32x32x16_bf16 {vr(Sn, 16)}, {vr(V_K)}, {vr(V_Q)}, {vr(V_C, 16)}")
        a(kr[0])
        for e in ex[0:3]:
            a(e)
        if not last:
            a(f"v_mfma_f32_32x32x16_bf16 {vr(Sn, 16)}, {vr(V_K + 4)}, {vr(V_Q + 4)}, {vr(Sn, 16)}")
        a(kr[1])
        for x in extra[:1]:
            a(x)
        for e in ex[3:6]:
            a(e)
        a(f"v_mfma_f32_32x32x16_bf16 {vr(V_O, 16)}, {vr(V_V + 4)}, {vr(V_P + 4)}, {vr(V_O, 16)}")
        a(rdV(i)[1])
        a(ex[6])
        a(ex[7])
        a(cv[0])
        a(cv[1])
        a(f"v_mfma_f32_16x16x32_bf16 {vr(V_L)}, {vr(V_ONE)}, {vr(V_P + 4)}, {vr(V_L)}")
        for x in extra[1:2]:
            a(x)
        a(cv[2])
        a(cv[3])
        a(ex[8])
        a(ex[9])
        if i % NB == NB - 1:
            a(advV)
        a("s_waitcnt lgkmcnt(3)")
        a(f"v_mfma_f32_32x32x16_bf16 {vr(V_O, 16)}, {vr(V_V)}, {vr(V_P)}, {vr(V_O, 16)}")
        a(rdV(i + 1)[0])
        for e in ex[10:13]:
            a(e)
        a(f"v_mfma_f32_16x16x32_bf16 {vr(V_L)}, {vr(V_ONE)}, {vr(V_P)}, {vr(V_L)}")
        for x in extra[2:]:
            a(x)
        for e in ex[13:16]:
            a(e)
        for c in cv[4:8]:
            a(c)
        if last:
            a("s_waitcnt lgkmcnt(0)")
            a("s_nop 0")
            a(f"v_mfma_f32_32x32x16_bf16 {vr(V_O, 16)}, {vr(V_V + 4)}, {vr(V_P + 4)}, {vr(V_O, 16)}")
            a(f"v_mfma_f32_16x16x32_bf16 {vr(V_L)}, {vr(V_ONE)}, {vr(V_P + 4)}, {vr(V_L)}")

    def hstore(k):
        return f"buffer_store_dwordx4 {vr(V_H + k * 4)}, v{P3.V_DA + k}, {WS}, s{S_H0} offen sc1"
    hrot = "".join(f"v_mov_b64 {vr(V_H + 2 * k, 2)}, {vr(V_H + 8 + 2 * k, 2)}\n" for k in range(12))
    hrot += (f"s_mov_b32 s{S_H0}, s76\ns_mov_b32 s76, s{S_H1}\ns_mov_b32 s{S_H1}, s77\ns_mov_b32 s77, {WS_USED}")
    a("s_mov_b32 s39, 3")
    touch = ""
    if 'touch' in OPT:
        srd(a, 84, 66, 3584 * 2048)
        a("s_lshl_b32 s88, s2, 2")
        a(f"s_add_u32 s88, s88, s{S_WAVE}")
        a("s_sub_u32 s88, s88, 1")
        a(f"s_cmp_eq_u32 s{S_WAVE}, 5")
        a("s_cselect_b32 s84, s64, s84")
        a("s_cselect_b32 s85, s65, s85")
        a(f"s_cselect_b32 s86, {1024 * 2048}, s86")
        a("s_cselect_b32 s88, s2, s88")
        a(f"s_sub_u32 s{S_T0}, s{S_WAVE}, 1")
        a(f"s_cmp_gt_u32 s{S_T0}, 4")
        a("s_cselect_b32 s86, 0, s86")
        a("s_cselect_b32 s88, 0, s88")
        a("s_lshl_b32 s88, s88, 13")
        a(f"v_lshlrev_b32 v{V_T+7}, 7, v{L}")
        touch = f"buffer_load_dword v{V_T+8}, v{V_T+7}, s[84:87], s88 offen"
    a(f"s_add_u32 s76, s{S_H0}, {2 * AF_KB * 1024}")
    a(f"s_add_u32 s77, s{S_H1}, {2 * AF_KB * 1024}")
    def half_stage(h):
        d = dma_stage().strip().split("\n")
        return ["\n".join(d[0:3]), d[3]] if h == 0 else [d[4], "\n".join(d[5:])]

    def udma(k):
        which, j = divmod(k, 4)
        return (f"s_add_u32 m0, s74, {which * 4096 + j * 1024}\ns_add_u32 s{S_T0}, s{S_U[which]}, {j * 16384}\n"
                f"buffer_load_dwordx4 v{V_UA}, {sr((S_UD, S_UO)[which])}, s{S_T0} offen lds")

    for i in range(NB):
        ex = half_stage(i & 1) if i < 4 else [udma(2 * (i - 4)), udma(2 * (i - 4) + 1)]
        hs = hstore(i // 3) if i in (0, 3) else ""
        if i == 1:
            hs = touch
        if i == NB - 2:
            a(f"s_waitcnt vmcnt({10 if touch else 9})")
            a("s_barrier")
            a(advK)
        if i == NB - 1:
            a(hrot)
        block(i, extra=ex + [hs])
    a(f"s_mov_b32 s{S_CNT}, 1")
    a(".p2align 6")
    a.label("L_p2_loop")
    for i in range(NB):
        if i == 1:
            a(f"s_cmp_eq_u32 s{S_CNT}, s39")
            a("s_cbranch_scc1 L_p2_pack")
            a.label("L_p2_pack_ret")
        if i == 0:
            a(f"s_cmp_eq_u32 s{S_CNT}, s75")
            a("s_cbranch_scc1 L_p2_sig")
            a.label("L_p2_sig_ret")
        if i == NB - 1:
            a(f"s_cmp_gt_u32 s{S_CNT}, 3")
            a("s_cbranch_scc1 L_p2_norot")
            a(hrot)
            a.label("L_p2_norot")
        if i == NB - 2:
            a(f"s_cmp_eq_u32 s{S_CNT}, 1")
            a("s_cbranch_scc1 L_p2_lenient")
            a("s_waitcnt vmcnt(0)")
            a.label("L_p2_lenient")
            a("s_waitcnt vmcnt(11)")
            a("s_barrier")
            a(dma_stage())
            a(f"s_cmp_eq_u32 s{S_CNT}, 6")
            a("s_cbranch_scc1 L_p2_events")
            a.label("L_p2_cont")
            st.loop_stamp(48, S_CNT, 1, 0)
            a(advK)
        block(i, extra=["", "", hstore(i // 2) if i in (0, 2) else ""])
    a(f"s_add_u32 s{S_CNT}, s{S_CNT}, 1")
    a(f"s_cmp_lt_u32 s{S_CNT}, 7")
    a("s_cbranch_scc1 L_p2_loop")
    pre = []
    for slot in range(4):
        pre += P3.batch(slot)
    for i in range(NB):
        block(i, extra=pre[:3], last=(i == NB - 1))
        pre = pre[3:]
    assert not pre
    a("s_nop 15")
    st.stamp(7)

    a(f"v_max3_f32 v{V_T}, abs(v{V_O}), abs(v{V_O+1}), abs(v{V_O+2})")
    for i in range(3, 15, 2):
        a(f"v_max3_f32 v{V_T}, v{V_T}, abs(v{V_O+i}), abs(v{V_O+i+1})")
    a(f"v_max_f32 v{V_T}, v{V_T}, abs(v{V_O+15})")
    a(f"v_add_f32 v{V_T+1}, v{V_O}, v{V_O+1}")
    for i in range(2, 16):
        a(f"v_add_f32 v{V_T+1}, v{V_T+1}, v{V_O+i}")
    a(f"v_mov_b32 v{V_T+2}, 0x7c000000")
    a(f"v_cmp_lt_f32 vcc, v{V_T}, v{V_T+2}")
    a(f"v_cmp_gt_f32 s[36:37], s{S_BIG}, v{V_L}")
    a(f"v_cmp_o_f32 s[38:39], v{V_T+1}, v{V_T+1}")
    a("s_and_b64 vcc, vcc, s[36:37]")
    a("s_and_b64 vcc, vcc, s[38:39]")
    a("s_cmp_eq_u64 vcc, exec")
    a("s_cbranch_scc0 L_p2_slow")
    a.label("L_p2_fin")
    a(f"v_rcp_f32 v{V_T}, v{V_L}")
    a(f"s_mul_i32 s{S_T0}, s{S_TOKB}, {2 * AF_KB}")
    a(f"s_add_u32 s{S_T0}, s{S_T0}, s{S_HEAD}")
    a(f"s_lshl_b32 s{S_T0}, s{S_T0}, 10")
    a(f"s_add_u32 s{S_T0}, s{S_T0}, {AF_BASE + AF_O * 1024}")
    a(f"s_waitcnt vmcnt(24)")
    a(f"v_mul_f32 v{V_T}, v{V_T}, v{V_G}")
    for i in range(16):
        a(f"v_mul_f32 v{V_O + i}, v{V_O + i}, v{V_T}")
    for d in range(8):
        a(f"v_cvt_pk_bf16_f32 v{V_P + d}, v{V_O + 2*d}, v{V_O + 2*d + 1}")
    a(f"buffer_store_dwordx4 {vr(V_P)}, v{V_OS}, {WS}, s{S_T0} offen sc1")
    a(f"buffer_store_dwordx4 {vr(V_P + 4)}, v{V_OS}, {WS}, s{S_T0} offen offset:512 sc1")
    st.stamp(8)
    a("s_branch L_p3")

    a.label("L_p2_pack")
    a(f"s_cmp_eq_u32 s{S_CNT}, 3")
    a("s_cbranch_scc1 L_p2_pack1")
    a(ldc2)
    a("s_branch L_p2_pack_ret")
    a.label("L_p2_pack1")
    a("s_mov_b32 s39, 6")
    for which in range(2):
        for q in range(4):
            a(f"v_xor_b32 v{V_T + 8}, {q << 5}, v{V_UR}")
            for t in range(2):
                a(f"ds_read_b64_tr_b16 {vr(P3.AF_ + which * 16 + q * 4 + t * 2, 2)}, v{V_T + 8} "
                  f"offset:{which * 4096 + t * 2048}")
        a("s_waitcnt lgkmcnt(0)")
        for q in range(4):
            a(f"buffer_store_dwordx4 {vr(P3.AF_ + which * 16 + q * 4)}, v{V_L16}, {WS}, s{S_UP[which]} "
              f"offen offset:{q * 1024} sc1")
        if which == 0:
            a(f"s_sub_u32 s{S_T0}, s{S_WAVE}, 1")
            a(f"s_cmp_gt_u32 s{S_T0}, 1")
            a("s_cbranch_scc1 L_p2_pack_ret")
    a("s_branch L_p2_pack_ret")
    a.label("L_p2_events")
    spin(a, "L_p2_c2", ldc2, V_T + 5, f"v{V_T+6}", S_SP)
    a(f"s_lshl_b32 s{S_T0}, s{S_TOKB}, 8")
    a(f"s_add_u32 s{S_T0}, s{S_T0}, {G_BASE}")
    a(f"buffer_load_dword v{V_G}, v{V_GA}, {WS}, s{S_T0} offen sc1")
    a("s_branch L_p2_cont")
    a.label("L_p2_sig")
    signal(a, C2, V_T + 8, "L_p2_sig2")
    a("s_branch L_p2_sig_ret")

    a.label("L_p2_slow")
    a(f"v_mov_b32 v{V_T}, 0xff800000")
    a(f"s_mov_b32 s{S_T0}, s{S_KVB}")
    a(f"s_mov_b32 s{S_CNT}, 0")
    a.label("L_p2_slow_max")
    a(f"buffer_load_dwordx4 {vr(V_K)}, v{V_L16}, {WS}, s{S_T0} offen sc1")
    a(f"buffer_load_dwordx4 {vr(V_K + 4)}, v{V_L16}, {WS}, s{S_T0} offen offset:1024 sc1")
    a("s_waitcnt vmcnt(0)")
    a(f"v_mfma_f32_32x32x16_bf16 {vr(S0, 16)}, {vr(V_K)}, {vr(V_Q)}, 0")
    a(f"v_mfma_f32_32x32x16_bf16 {vr(S0, 16)}, {vr(V_K + 4)}, {vr(V_Q + 4)}, {vr(S0, 16)}")
    a("s_nop 15")
    rowmax(V_T, S0, init=V_T)
    a(f"s_add_u32 s{S_T0}, s{S_T0}, 4096")
    a(f"s_add_u32 s{S_CNT}, s{S_CNT}, 1")
    a(f"s_cmp_lt_u32 s{S_CNT}, 64")
    a("s_cbranch_scc1 L_p2_slow_max")
    crosshalf_max(V_T, V_T + 1)
    for i in range(16):
        a(f"v_sub_f32 v{V_C + i}, 0, v{V_T}")
        a(f"v_mov_b32 v{V_O + i}, 0")
    for i in range(4):
        a(f"v_mov_b32 v{V_L + i}, 0")
    a(f"s_mov_b32 s{S_T0}, s{S_KVB}")
    a(f"s_mov_b32 s{S_CNT}, 0")
    a.label("L_p2_slow_pv")
    a(f"buffer_load_dwordx4 {vr(V_K)}, v{V_L16}, {WS}, s{S_T0} offen sc1")
    a(f"buffer_load_dwordx4 {vr(V_K + 4)}, v{V_L16}, {WS}, s{S_T0} offen offset:1024 sc1")
    a(f"buffer_load_dwordx4 {vr(V_V)}, v{V_L16}, {WS}, s{S_T0} offen offset:2048 sc1")
    a(f"buffer_load_dwordx4 {vr(V_V + 4)}, v{V_L16}, {WS}, s{S_T0} offen offset:3072 sc1")
    a("s_waitcnt vmcnt(0)")
    a(f"v_mfma_f32_32x32x16_bf16 {vr(S0, 16)}, {vr(V_K)}, {vr(V_Q)}, {vr(V_C, 16)}")
    a(f"v_mfma_f32_32x32x16_bf16 {vr(S0, 16)}, {vr(V_K + 4)}, {vr(V_Q + 4)}, {vr(S0, 16)}")
    a("s_nop 15")
    for r in range(16):
        a(f"v_exp_f32 v{S0 + r}, v{S0 + r}")
    a("s_nop 0")
    for d in range(8):
        a(f"v_cvt_pk_bf16_f32 v{V_P + d}, v{S0 + 2*d}, v{S0 + 2*d + 1}")
    a("s_nop 1")
    a(f"v_mfma_f32_32x32x16_bf16 {vr(V_O, 16)}, {vr(V_V)}, {vr(V_P)}, {vr(V_O, 16)}")
    a(f"v_mfma_f32_32x32x16_bf16 {vr(V_O, 16)}, {vr(V_V + 4)}, {vr(V_P + 4)}, {vr(V_O, 16)}")
    a(f"v_mfma_f32_16x16x32_bf16 {vr(V_L)}, {vr(V_ONE)}, {vr(V_P)}, {vr(V_L)}")
    a(f"v_mfma_f32_16x16x32_bf16 {vr(V_L)}, {vr(V_ONE)}, {vr(V_P + 4)}, {vr(V_L)}")
    a("s_nop 15")
    a(f"s_add_u32 s{S_T0}, s{S_T0}, 4096")
    a(f"s_add_u32 s{S_CNT}, s{S_CNT}, 1")
    a(f"s_cmp_lt_u32 s{S_CNT}, 64")
    a("s_cbranch_scc1 L_p2_slow_pv")
    a("s_branch L_p2_fin")


def phase3(a, st):
    p = P3
    L = V_LANE
    T0, T1 = p.V_T, p.V_T + 1
    AF_, WF, V_G = p.AF_, p.WF, p.V_G

    def acc(tt, nt):
        return (tt * 4 + nt) * 4

    a.label("L_p3")
    for o in OPT:
        if o.startswith("idle"):
            a("s_memrealtime s[80:81]")
            a("s_waitcnt lgkmcnt(0)")
            a(f"s_add_u32 s84, s80, {int(o[4:]) * 100}")
            a.label("L_idle")
            a("s_sleep 4")
            a("s_memrealtime s[80:81]")
            a("s_waitcnt lgkmcnt(0)")
            a("s_cmp_lt_u32 s80, s84")
            a("s_cbranch_scc1 L_idle")
    for i in range(0, 64, 2):
        a(f"v_mov_b64 {vr(i, 2)}, 0")
    a(f"v_mov_b32 v{p.V_PA}, {C3}")
    a(f"v_mov_b32 v{T0}, 0x100")
    ldc3 = f"buffer_load_dword v{p.V_POLL}, v{p.V_PA}, {DBG}, 0 offen sc1"
    a(f"s_waitcnt vmcnt(24)")
    a("s_barrier")
    for r in p.wreads(0, 0):
        a(r)
    a(f"s_mov_b32 s{p.S_CNT}, 0")
    a(".p2align 6")
    a.label("L_p3_loop")
    a(f"s_cmp_lt_u32 s{p.S_CNT}, 5")
    a("s_cbranch_scc0 L_p3_events")
    a(f"s_cmp_eq_u32 s{p.S_CNT}, 1")
    a("s_cbranch_scc0 L_p3_body")
    signal(a, C3, T1, "L_p3_body")
    for u in range(4):
        a(f"s_waitcnt vmcnt(16) lgkmcnt(0)")
        a("s_barrier")
        rd = p.wreads((u + 1) % 4, (u + 1) & 1)
        wd = p.wdma(u)
        for tt in range(4):
            for nt in range(4):
                d = vr(acc(tt, nt))
                a(f"v_mfma_f32_16x16x32_bf16 {d}, {vr(WF[u & 1] + nt * 4)}, {vr(AF_ + u * 16 + tt * 4)}, {d}")
                i = tt * 4 + nt
                if i < 2:
                    a(wd[i])
                if i in (4, 6, 8, 10):
                    a(rd[(i - 4) // 2])
            a(p.aload(u, tt))
    a(f"s_add_u32 s{p.S_CNT}, s{p.S_CNT}, 1")
    a(f"s_cmp_lt_u32 s{p.S_CNT}, 9")
    a("s_cbranch_scc1 L_p3_loop")
    st.stamp(9)
    a("s_branch L_p3_red")

    a.label("L_p3_events")
    a(f"s_cmp_eq_u32 s{p.S_CNT}, 5")
    a("s_cbranch_scc0 L_p3_e6")
    a(ldc3)
    for tt in range(4):
        a(f"buffer_load_dwordx2 {vr(V_G + 2 * tt, 2)}, v{p.V_GA}, {WS}, s{p.S_GOFF} offen offset:{tt * 128} sc1")
    a("s_branch L_p3_body")
    a.label("L_p3_e6")
    a(f"s_cmp_eq_u32 s{p.S_CNT}, 6")
    a("s_cbranch_scc0 L_p3_e7")
    spin(a, "L_p3_c3", ldc3, p.V_POLL, f"v{T0}", p.S_T2)
    a("s_branch L_p3_body")
    a.label("L_p3_e7")
    a(f"s_cmp_eq_u32 s{p.S_CNT}, 7")
    a("s_cbranch_scc0 L_p3_e8")
    a("s_nop 7")
    for tt in range(4):
        for i in range(16):
            a(f"v_mul_f32 v{tt * 16 + i}, v{tt * 16 + i}, v{V_G + 2 * tt + 1}")
    a("s_branch L_p3_body")
    a.label("L_p3_e8")
    a(f"s_mov_b32 s{p.S_A+2}, 0")
    a("s_branch L_p3_body")

    a.label("L_p3_red")
    a("s_waitcnt vmcnt(0)")
    a("s_nop 7")
    a(f"s_mul_i32 s{p.S_T0}, s{p.S_TH}, {3 * 4096}")
    a(f"s_add_u32 s{p.S_T0}, s{p.S_T0}, {p.RED}")
    a(f"v_add_u32 v{T0}, s{p.S_T0}, v{V_L16}")
    a(f"v_add_u32 v{T1}, {2 * 2 * 12288}, v{T0}")
    R = AF_
    for kq in range(4):
        if kq < 3:
            a(f"s_cmp_eq_u32 s{p.S_KQ}, {kq}")
            a(f"s_cbranch_scc0 L_p3_red{kq + 1}")
        for tt in range(4):
            if tt == kq:
                continue
            src = kq if kq < tt else kq - 1
            for nt in range(4):
                base, off = (T0, tt * 24576) if tt < 2 else (T1, (tt - 2) * 24576)
                a(f"ds_write_b128 v{base}, {vr(acc(tt, nt))} offset:{off + src * 4096 + nt * 1024}")
        a("s_waitcnt lgkmcnt(0)")
        a("s_barrier")
        base, off = (T0, kq * 24576) if kq < 2 else (T1, (kq - 2) * 24576)
        for i in range(12):
            a(f"ds_read_b128 {vr(R + 4 * i)}, v{base} offset:{off + i * 1024}")
        a("s_waitcnt lgkmcnt(8)")
        for i in range(0, 16, 2):
            a(f"v_pk_add_f32 {vr(WF[0] + i, 2)}, {vr(kq * 16 + i, 2)}, {vr(R + i, 2)}")
        if kq < 3:
            a("s_branch L_p3_fin")
            a.label(f"L_p3_red{kq + 1}")
    a.label("L_p3_fin")
    for src in (1, 2):
        a(f"s_waitcnt lgkmcnt({8 - 4 * src})")
        for i in range(0, 16, 2):
            a(f"v_pk_add_f32 {vr(WF[0] + i, 2)}, {vr(WF[0] + i, 2)}, {vr(R + 16 * src + i, 2)}")
    S = WF[0]
    P = WF[1]
    for nt in range(4):
        a(f"v_cvt_pk_bf16_f32 v{P + 2*nt}, v{S + 4*nt}, v{S + 4*nt + 1}")
        a(f"v_cvt_pk_bf16_f32 v{P + 2*nt + 1}, v{S + 4*nt + 2}, v{S + 4*nt + 3}")
    a(f"v_and_b32 v{T0}, 15, v{L}")
    a(f"s_lshl_b32 s{p.S_T0}, s{p.S_KQ}, 4")
    a(f"s_add_u32 s{p.S_T0}, s{p.S_T0}, s{p.S_TOK}")
    a(f"v_add_u32 v{T0}, s{p.S_T0}, v{T0}")
    a(f"v_lshlrev_b32 v{T0}, 11, v{T0}")
    a(f"v_lshlrev_b32 v{T1}, 1, v{L}")
    a(f"v_and_b32 v{T1}, 32, v{T1}")
    a(f"v_add_u32 v{T0}, v{T0}, v{T1}")
    a(f"v_lshrrev_b32 v{T1}, 1, v{L}")
    a(f"v_and_b32 v{T1}, 16, v{T1}")
    a(f"v_add_u32 v{T0}, v{T0}, v{T1}")
    a(f"s_lshl_b32 s{p.S_T0}, s{p.S_NB}, 7")
    for m in range(2):
        a(f"v_permlane16_swap_b32 v{P + 4*m}, v{P + 4*m + 2}")
        a(f"v_permlane16_swap_b32 v{P + 4*m + 1}, v{P + 4*m + 3}")
    for m in range(2):
        a(f"buffer_store_dwordx4 {vr(P + 4*m)}, v{T0}, {sr(p.S_OUT)}, s{p.S_T0} offen offset:{64 * m}")
    st.stamp(10)
    if STAMPS:
        a("s_waitcnt vmcnt(0)")
    st.stamp(11)
    st.finish(100)


def main():
    global STAMPS
    if "--stamps" in sys.argv:
        STAMPS = True
        sys.argv.remove("--stamps")
    for x in list(sys.argv):
        if x.startswith("--opt="):
            OPT.update(x[6:].split(","))
            sys.argv.remove(x)
    global FLAG_TP_O
    if 'fo1' in OPT:
        FLAG_TP_O = 1
    if 'fom' in OPT:
        FLAG_TP_O = -1
    out = sys.argv[1] if len(sys.argv) > 1 else f"cdna_kernels/{NAME}.s"
    ref = open(f"cdna_kernels/{NAME}.s.ref").read().split("\n")
    head = [ln for ln in ref if ln.startswith(";") and "@launch" not in ln and "Override launch" not in ln
            and "grid=ceil" not in ln]
    a = Asm()
    a(f".globl {KNAME}")
    a(".p2align 8")
    a(f".type {KNAME},@function")
    a.label(KNAME)
    a("s_cmp_ge_u32 s2, 256")
    a("s_cbranch_scc1 L_end")
    st = Stamper(a)
    st.start()
    phase1(a, st)
    phase2(a, st)
    phase3(a, st)
    a.label("L_end")
    a("s_endpgm")
    a.label("L_code_end")
    txt = "\n".join(head) + "\n"
    if "list" in OPT:
        txt += f"; @launch kernel={KNAME} grid=(256,1,1) block=(512,1,1) lds=163840\n"
    else:
        txt += "; @launch grid=(256,1,1) block=(512,1,1) lds=163840\n"
    txt += '.amdgcn_target "amdgcn-amd-amdhsa--gfx950"\n.text\n'
    txt += a.text()
    txt += f""".section .rodata,"a"
.p2align 6
.amdhsa_kernel {KNAME}
  .amdhsa_next_free_vgpr 256
  .amdhsa_next_free_sgpr 102
  .amdhsa_accum_offset 256
  .amdhsa_group_segment_fixed_size 0
  .amdhsa_kernarg_size 88
  .amdhsa_user_sgpr_count 2
  .amdhsa_user_sgpr_kernarg_segment_ptr 1
  .amdhsa_system_sgpr_workgroup_id_x 1
.end_amdhsa_kernel
"""
    open(out, "w").write(txt)


if __name__ == "__main__":
    main()
```

```python
import struct
import sys

NAME = "gated_mix__softmax_full_mha__swiglu_ffn__prompt"
KNAME = NAME + "_kernel"

QF_BASE = 0
KV_BASE = 4 << 20
AF_BASE = 12 << 20
AF_KB = 144
AF_O = 112
G_BASE = AF_BASE + 128 * AF_KB * 1024
FLAG_BASE = G_BASE + 2048 * 8
WS_USED = FLAG_BASE + 256 * 128
STAMP_BASE = 64 << 20
STAMPS = False
OPT = set()
LOG2E = 1.4426950408889634
QSCALE = (32 ** -0.5) * LOG2E
C0, C2, C3 = 0, 4, 8
SPIN_LIMIT = 1 << 22


def f32bits(x):
    return struct.unpack("<I", struct.pack("<f", x))[0]


class Asm:
    def __init__(self):
        self.lines = []

    def __call__(self, s):
        for ln in s.split("\n"):
            ln = ln.strip()
            if not ln:
                continue
            if ln.endswith(":") or ln.startswith("."):
                self.lines.append(ln)
            else:
                self.lines.append("    " + ln)

    def label(self, name):
        self.lines.append(name + ":")

    def text(self):
        return "\n".join(self.lines) + "\n"


def vr(base, n=4):
    return f"v[{base}:{base + n - 1}]"


def sr(base, n=4):
    return f"s[{base}:{base + n - 1}]"


def srd(a, dst, lo, nbytes):
    a(f"s_mov_b32 s{dst}, s{lo}")
    a(f"s_mov_b32 s{dst + 1}, s{lo + 1}")
    a(f"s_mov_b32 s{dst + 2}, {nbytes}")
    a(f"s_mov_b32 s{dst + 3}, 0x00020000")


class Stamper:
    def __init__(self, a):
        self.a = a

    def start(self):
        self.stamp(-1)

    def stamp(self, idx):
        if not STAMPS:
            return
        self.a("s_memrealtime s[80:81]")
        self.a("s_memtime s[82:83]")
        self.a("s_waitcnt lgkmcnt(0)")
        self.a(f"v_writelane_b32 v255, s80, {2 * (idx + 1)}")
        self.a(f"v_writelane_b32 v255, s82, {2 * (idx + 1) + 1}")

    def loop_stamp(self, base, scnt, mul, add):
        if not STAMPS:
            return
        self.a("s_memtime s[82:83]")
        self.a(f"s_mul_i32 s80, s{scnt}, {mul}")
        self.a(f"s_add_u32 m0, s80, {base + add}")
        self.a("s_waitcnt lgkmcnt(0)")
        self.a("v_writelane_b32 v255, s82, m0")

    def finish(self, vt):
        if not STAMPS:
            return
        a = self.a
        a("s_mov_b64 exec, -1")
        a("s_lshl_b32 s80, s2, 3")
        a(f"s_add_u32 s80, s80, s{S_WAVE}")
        a("s_lshl_b32 s80, s80, 8")
        a(f"s_add_u32 s80, s80, {STAMP_BASE}")
        a(f"s_mov_b32 s{S_WS + 2}, 0x10000000")
        a(f"v_lshlrev_b32 v{vt}, 2, v{V_LANE}")
        a(f"buffer_store_dword v255, v{vt}, {sr(S_WS)}, s80 offen")


S_WAVE = 3
S_WS, S_DBG = 4, 8
V_LANE, V_L16 = 228, 229
V_C0 = 251
V_H = 192
S_H0, S_H1 = 78, 79
FLAG_TP_E, FLAG_TP_O = -1, 1
NEARLY = 9
WS = sr(S_WS)
DBG = sr(S_DBG)


def signal(a, off, vt, label):
    a(f"s_cmp_lg_u32 s{S_WAVE}, 0")
    a(f"s_cbranch_scc1 {label}")
    a(f"v_mov_b32 v{vt}, 1")
    a(f"v_mov_b32 v{vt + 1}, {off}")
    a("s_mov_b64 exec, 1")
    a(f"buffer_atomic_add v{vt}, v{vt + 1}, {DBG}, 0 offen sc1")
    a("s_mov_b64 exec, -1")
    a.label(label)


def spin(a, label, load, vval, expect, scnt):
    a(f"s_mov_b32 s{scnt}, 0")
    a.label(label)
    a(f"v_cmp_{'ne' if expect == 1 else 'gt'}_u32 vcc, {expect}, v{vval}")
    a("s_cmp_eq_u64 vcc, 0")
    a(f"s_cbranch_scc1 {label}_ok")
    a("s_sleep 1")
    a(load)
    a("s_waitcnt vmcnt(0)")
    a(f"s_add_u32 s{scnt}, s{scnt}, 1")
    a(f"s_cmp_lt_u32 s{scnt}, {SPIN_LIMIT}")
    a(f"s_cbranch_scc1 {label}")
    a.label(f"{label}_ok")


def phase1(a, st):
    XBUF = [0, 32768]
    WBASE = 65536
    WSTRIDE = 40960
    S_X, S_QKV, S_G, S_U, S_GW, S_PF = 12, 16, 20, 24, 28, 32
    S_W1024, S_ROWBLK, S_XCD, S_COLSUB, S_KX = 36, 37, 38, 39, 40
    S_WO = 41
    S_CNT = 46
    S_T0, S_T1, S_T2, S_T3 = 47, 48, 49, 50
    S_WN = 51
    S_NL2E, S_ONE, S_QS = 52, 54, 56
    S_FU, S_QKU, S_VU, S_TOK, S_E = 58, 59, 60, 61, 62
    S_PFO, S_PFS = 63, 100
    XF = [160, 176]
    WF = 192
    V_XA = 212
    V_WA, V_WB = 214, 218
    V_DX = 220
    V_DW6, V_DW7 = 224, 225
    V_PF, V_PFD = 226, 227
    V_ST = 230
    V_T = 232
    L = V_LANE
    T0, T1, T2, T3, T4 = V_T, V_T + 1, V_T + 2, V_T + 3, V_T + 4

    def acc(nt, tt):
        return (nt * 4 + tt) * 4

    for dst, off in ((S_X, 0), (S_QKV, 8), (S_G, 32), (S_U, 40), (S_WS, 80), (S_DBG, 72), (64, 56)):
        a(f"s_load_dwordx2 {sr(dst, 2)}, s[0:1], {off}")
    a(f"v_and_b32 v{L}, 63, v0")
    a(f"v_lshrrev_b32 v{T0}, 6, v0")
    a(f"v_lshlrev_b32 v{V_L16}, 4, v{L}")
    a(f"v_readfirstlane_b32 s{S_WAVE}, v{T0}")
    a("s_getpc_b64 s[28:29]")
    a.label("L_p1_pc")
    a(f"s_sub_u32 s28, s28, L_p1_pc-{KNAME}")
    a("s_subb_u32 s29, s29, 0")
    a(f"s_cmp_eq_u32 s{S_WAVE}, 7")
    a(f"s_cselect_b32 s30, L_code_end-{KNAME}, 0")
    a("s_mov_b32 s31, 0x00020000")
    a(f"s_lshr_b32 s{S_COLSUB}, s2, 3")
    a(f"s_and_b32 s{S_COLSUB}, s{S_COLSUB}, 3")
    a(f"s_lshl_b32 s{S_T0}, s{S_COLSUB}, 13")
    a(f"v_lshlrev_b32 v{T1}, 7, v{L}")
    a(f"buffer_load_dword v{V_PFD}, v{T1}, s[28:31], s{S_T0} offen")
    a(f"s_and_b32 s{S_XCD}, s2, 7")
    a(f"s_lshr_b32 s{S_ROWBLK}, s2, 5")
    a(f"s_lshl_b32 s{S_W1024}, s{S_WAVE}, 10")
    a(f"s_and_b32 s{S_WN}, s{S_WAVE}, 1")
    a(f"s_lshl_b32 s{S_T0}, s{S_WN}, 2")
    a(f"v_lshrrev_b32 v{T0}, 4, v{L}")
    a(f"v_add_u32 v{T0}, s{S_T0}, v{T0}")
    a(f"v_and_b32 v{T1}, 7, v{L}")
    a(f"v_xor_b32 v{T0}, v{T0}, v{T1}")
    a(f"v_lshlrev_b32 v{T0}, 4, v{T0}")
    a(f"v_lshrrev_b32 v{T2}, 3, v{L}")
    a(f"s_lshl_b32 s{S_T0}, s{S_ROWBLK}, 8")
    a(f"s_lshl_b32 s{S_T1}, s{S_WAVE}, 3")
    a(f"s_add_u32 s{S_T0}, s{S_T0}, s{S_T1}")
    a(f"v_add_u32 v{T3}, s{S_T0}, v{T2}")
    a(f"v_lshlrev_b32 v{T3}, 11, v{T3}")
    a(f"v_add_u32 v{V_DX}, v{T3}, v{T0}")
    for j in range(1, 4):
        a(f"v_add_u32 v{V_DX + j}, {j * 64 * 2048}, v{V_DX}")
    a(f"v_and_b32 v{T0}, 2, v{T2}")
    a(f"s_lshl_b32 s{S_T0}, s{S_WN}, 2")
    a(f"v_or_b32 v{T0}, s{S_T0}, v{T0}")
    a(f"v_xor_b32 v{T0}, v{T0}, v{T1}")
    a(f"v_lshlrev_b32 v{T0}, 4, v{T0}")
    a(f"v_add_u32 v{T3}, s{S_T1}, v{T2}")
    a(f"v_mul_u32_u24 v{V_DW6}, 6144, v{T3}")
    a(f"v_add_u32 v{V_DW6}, v{V_DW6}, v{T0}")
    a(f"v_mul_u32_u24 v{V_DW7}, 7168, v{T3}")
    a(f"v_add_u32 v{V_DW7}, v{V_DW7}, v{T0}")
    a(f"s_mov_b32 s{S_KX}, 0")
    a(f"s_mul_i32 s{S_E}, s{S_XCD}, 3")
    a(f"s_add_u32 s{S_E}, s{S_E}, s{S_COLSUB}")
    a(f"s_lshl_b32 s{S_T0}, s{S_E}, 8")
    a(f"s_lshl_b32 s{S_T1}, s{S_XCD}, 7")
    a(f"s_add_u32 s{S_T2}, s{S_T1}, 6144")
    a(f"s_cmp_eq_u32 s{S_COLSUB}, 3")
    a(f"s_cselect_b32 s{S_WO}, s{S_T2}, s{S_T0}")
    a(f"s_mov_b32 s{S_WO+1}, s{S_WO}")
    a(f"s_add_u32 s{S_T0}, s{S_T0}, 128")
    a(f"s_lshl_b32 s{S_QKU}, s{S_XCD}, 1")
    a(f"s_and_b32 s{S_T2}, s{S_COLSUB}, 1")
    a(f"s_add_u32 s{S_QKU}, s{S_QKU}, s{S_T2}")
    a(f"s_lshr_b32 s{S_T2}, s{S_COLSUB}, 1")
    a(f"s_lshl_b32 s{S_T2}, s{S_T2}, 4")
    a(f"s_add_u32 s{S_QKU}, s{S_QKU}, s{S_T2}")
    a(f"s_lshl_b32 s{S_T2}, s{S_QKU}, 7")
    a(f"s_lshl_b32 s{S_T1}, s{S_XCD}, 8")
    a(f"s_add_u32 s{S_T1}, s{S_T1}, 4096")
    a(f"s_add_u32 s{S_T3}, s{S_T1}, 128")
    a(f"s_cmp_eq_u32 s{S_COLSUB}, 3")
    a(f"s_cselect_b32 s{S_WO+2}, s{S_T2}, s{S_T0}")
    a(f"s_cselect_b32 s{S_WO+3}, s{S_T1}, s{S_T0}")
    a(f"s_cselect_b32 s{S_WO+4}, s{S_T3}, s{S_T2}")
    a(f"s_lshl_b32 s{S_QKU}, s{S_QKU}, 1")
    a(f"s_add_u32 s{S_QKU}, s{S_QKU}, s{S_WN}")
    a(f"s_and_b32 s{S_T0}, s{S_WAVE}, 1")
    a(f"s_lshl_b32 s{S_T0}, s{S_T0}, 3")
    a(f"s_add_u32 s{S_T0}, s{S_T0}, 32")
    a(f"s_cmp_eq_u32 s{S_COLSUB}, 3")
    a(f"s_cselect_b32 s{S_T1}, 2, 4")
    a(f"s_cmp_ge_u32 s{S_WAVE}, s{S_T1}")
    a(f"s_cselect_b32 s{S_T0}, 8, s{S_T0}")
    a(f"s_mov_b32 s{S_T3}, 7168")
    a(f"s_cselect_b32 s{S_T3}, 6144, s{S_T3}")
    a(f"s_cmp_ge_u32 s{S_WAVE}, 5")
    a(f"s_cselect_b32 s{S_T0}, 0, s{S_T0}")
    a(f"s_cselect_b32 s{S_T3}, 2048, s{S_T3}")
    a(f"s_cmp_eq_u32 s{S_WAVE}, 6")
    a(f"s_cselect_b32 s{S_T0}, 48, s{S_T0}")
    a(f"s_cmp_eq_u32 s{S_WAVE}, 7")
    a(f"s_cselect_b32 s{S_T0}, 16, s{S_T0}")
    a(f"s_load_dwordx2 {sr(S_PF, 2)}, s[0:1], s{S_T0}")
    a(f"s_lshl_b32 s{S_PF+2}, s{S_T3}, 10")
    a(f"s_lshl_b32 s{S_PFS}, s{S_T3}, 6")
    a(f"s_mov_b32 s{S_PFO}, 0")
    for p_ in range(5):
        a(f"s_cmp_eq_u32 s{S_WAVE}, {p_}")
        a(f"s_cselect_b32 s{S_PFO}, s{S_WO+p_}, s{S_PFO}")
    a(f"s_cmp_eq_u32 s{S_WAVE}, 5")
    a(f"s_cselect_b32 s{S_PF+2}, {2048 * 2048}, s{S_PF+2}")
    a(f"s_cselect_b32 s{S_PFS}, 128, s{S_PFS}")
    a(f"s_cmp_gt_u32 s{S_WAVE}, 5")
    a(f"s_cselect_b32 s{S_PF+2}, 0, s{S_PF+2}")
    a(f"s_mov_b32 s{S_PF+3}, 0x00020000")
    a(f"s_lshl_b32 s{S_T0}, s{S_ROWBLK}, 3")
    a(f"s_lshl_b32 s{S_T1}, s{S_ROWBLK}, 8")
    a(f"s_lshl_b32 s{S_T2}, s{S_COLSUB}, 6")
    a(f"s_add_u32 s{S_T1}, s{S_T1}, s{S_T2}")
    a(f"s_cmp_lt_u32 s{S_WAVE}, 5")
    a(f"s_cselect_b32 s{S_T0}, s{S_T0}, s{S_T1}")
    a(f"s_cselect_b32 s{S_T1}, 7, 63")
    a(f"v_and_b32 v{V_PF}, s{S_T1}, v{L}")
    a(f"v_add_u32 v{V_PF}, s{S_T0}, v{V_PF}")
    a(f"v_mul_lo_u32 v{V_PF}, v{V_PF}, s{S_T3}")
    for dst, nb in ((S_X, 2048 * 2048), (S_QKV, 1024 * 6144), (S_G, 1024 * 7168), (S_U, 1024 * 7168),
                    (S_WS, WS_USED), (S_DBG, 256)):
        a(f"s_mov_b32 s{dst + 2}, {nb}")
        a(f"s_mov_b32 s{dst + 3}, 0x00020000")
    pf = (f"buffer_load_dword v{V_PFD}, v{V_PF}, {sr(S_PF)}, s{S_PFO} offen\n"
          f"s_add_u32 s{S_PFO}, s{S_PFO}, s{S_PFS}")
    a("s_waitcnt lgkmcnt(0)")
    a(pf)
    a(pf)
    a(f"s_cmp_eq_u32 s{S_COLSUB}, 3")
    a("s_cbranch_scc1 L_p1_O")

    for variant in ("E", "O"):
        a.label(f"L_p1_{variant}")
        if variant == "E":
            blocks = [S_G, S_U, S_G, S_U, S_QKV]
            tiles = [(V_WB + 0, 0, 0), (V_WB + 1, 0, 0),
                     (V_WA + 0, 0, 0), (V_WA + 1, 0, 0), (V_WA + 0, 8192, 0), (V_WA + 1, 8192, 0),
                     (V_WA + 2, 0, 0), (V_WA + 3, 0, 0), (V_WA + 2, 8192, 0), (V_WA + 3, 8192, 0)]
            hunits = [(2, 4), (6, 8)]
            qk_t, v_t = 0, None
            last_order = [(0, 0), (0, 1), (0, 2), (0, 3), (1, 0), (1, 1)] + [(0, n) for n in range(4, 10)] + \
                         [(1, n) for n in range(2, 10)]
        else:
            blocks = [S_G, S_U, S_QKV, S_QKV, S_QKV]
            tiles = [(V_WB + 0, 16384, 0), (V_WB + 1, 16384, 0),
                     (V_WA + 0, 0, 1), (V_WA + 1, 0, 1), (V_WA + 2, 0, 1), (V_WA + 3, 0, 1),
                     (V_WB + 0, 0, 0), (V_WB + 1, 0, 0), (V_WB + 0, 8192, 0), (V_WB + 1, 8192, 0)]
            hunits = [(6, 8)]
            qk_t, v_t = 0, 2
            last_order = [(0, 0), (0, 1), (0, 2), (0, 3), (1, 0), (1, 1), (1, 2), (1, 3), (0, 4), (1, 4),
                          (0, 5), (1, 5)] + [(k, n) for n in range(6, 10) for k in range(2)]

        def dma_list(buf):
            out = []
            for j in range(4):
                out.append(f"s_add_u32 m0, s{S_W1024}, {XBUF[buf] + j * 8192}\ns_nop 0\n"
                           f"buffer_load_dwordx4 v{V_DX + j}, {sr(S_X)}, s{S_KX} offen lds")
            for p in range(5):
                b = blocks[p]
                vd = V_DW6 if b == S_QKV else V_DW7
                pitch = 6144 if b == S_QKV else 7168
                out.append(f"s_add_u32 m0, s{S_W1024}, {WBASE + buf * WSTRIDE + p * 8192}\ns_nop 0\n"
                           f"buffer_load_dwordx4 v{vd}, {sr(b)}, s{S_WO + p} offen lds\n"
                           f"s_add_u32 s{S_WO + p}, s{S_WO + p}, {64 * pitch}")
            out[3] += f"\ns_add_u32 s{S_KX}, s{S_KX}, 128"
            return out

        for d in dma_list(0):
            a(d)
        a(pf)
        a(pf)
        d1 = dma_list(1)
        srd(a, S_GW, 64, 2048)
        if 'nowarm' not in OPT:
            a(f"s_cmp_eq_u32 s{S_WAVE}, 6")
            a(f"s_cselect_b32 s{S_T0}, 14, 4")
            a(f"s_lshl_b32 s{S_T0}, s{S_T0}, 11")
            a(f"s_mul_i32 s{S_T1}, s{S_T0}, s2")
            a(f"s_add_u32 s{S_T0}, s{S_T0}, s{S_T1}")
            a(f"v_and_b32 v{T0}, 15, v{L}")
            a(f"v_lshlrev_b32 v{T0}, 7, v{T0}")
            a(f"s_cmp_gt_u32 s{S_WAVE}, 5")
            a(f"s_cselect_b32 s{S_PF+2}, s{S_T0}, s{S_PF+2}")
            a(f"s_cselect_b32 s{S_PFO}, s{S_T1}, s{S_PFO}")
            a(f"s_cselect_b32 s{S_PFS}, 2048, s{S_PFS}")
            a("s_cselect_b64 vcc, -1, 0")
            a("s_nop 1")
            a(f"v_cndmask_b32 v{V_PF}, v{V_PF}, v{T0}, vcc")
        a("s_lshr_b32 s65, s2, 6")
        a("s_add_u32 s65, s65, 1")
        a(f"s_lshr_b32 s{S_T0}, s{S_WAVE}, 1")
        a(f"s_lshl_b32 s{S_T0}, s{S_T0}, 13")
        a(f"v_and_b32 v{T1}, 15, v{L}")
        a(f"v_lshlrev_b32 v{T1}, 7, v{T1}")
        a(f"v_add_u32 v{T3}, s{S_T0}, v{T1}")
        a(f"v_lshrrev_b32 v{T1}, 1, v{L}")
        a(f"v_and_b32 v{T1}, 7, v{T1}")
        a(f"v_lshrrev_b32 v{T4}, 4, v{L}")
        a(f"v_xor_b32 v{T1}, v{T1}, v{T4}")
        a(f"v_lshlrev_b32 v{T1}, 4, v{T1}")
        a(f"v_add_u32 v{V_XA}, v{T3}, v{T1}")
        a(f"v_xor_b32 v{V_XA+1}, 64, v{V_XA}")
        a(f"v_lshlrev_b32 v{T4}, 10, v{T4}")
        a(f"v_lshrrev_b32 v{T1}, 2, v{L}")
        a(f"v_and_b32 v{T1}, 3, v{T1}")
        a(f"v_lshlrev_b32 v{T3}, 7, v{T1}")
        a(f"v_add_u32 v{T4}, v{T4}, v{T3}")
        a(f"v_lshlrev_b32 v{T1}, 2, v{L}")
        a(f"v_and_b32 v{T1}, 0x60, v{T1}")
        a(f"v_add_u32 v{T4}, v{T4}, v{T1}")
        a(f"v_and_b32 v{T1}, 3, v{L}")
        a(f"v_lshlrev_b32 v{T1}, 3, v{T1}")
        a(f"v_add_u32 v{T4}, v{T4}, v{T1}")

        if variant == "E":
            a(f"s_lshl_b32 s{S_T0}, s{S_WN}, 14")
            a(f"s_add_u32 s{S_T0}, s{S_T0}, {WBASE}")
            a(f"s_mov_b32 s{S_T1}, {WBASE + 4 * 8192}")
            a(f"s_lshl_b32 s{S_FU}, s{S_E}, 2")
            a(f"s_lshl_b32 s{S_T2}, s{S_WN}, 1")
            a(f"s_add_u32 s{S_FU}, s{S_FU}, s{S_T2}")
        else:
            a(f"s_lshl_b32 s{S_T0}, s{S_WN}, 13")
            a(f"s_add_u32 s{S_T0}, s{S_T0}, {WBASE + 3 * 8192}")
            a(f"s_mov_b32 s{S_T1}, {WBASE}")
            a(f"s_lshl_b32 s{S_FU}, s{S_XCD}, 1")
            a(f"s_add_u32 s{S_FU}, s{S_FU}, 96")
            a(f"s_add_u32 s{S_FU}, s{S_FU}, s{S_WN}")
            a(f"s_lshl_b32 s{S_VU}, s{S_XCD}, 2")
            a(f"s_lshl_b32 s{S_T2}, s{S_WN}, 1")
            a(f"s_add_u32 s{S_VU}, s{S_VU}, s{S_T2}")
        for q in range(4):
            a(f"v_xor_b32 v{V_WA + q}, {q << 5}, v{T4}")
            a(f"v_add_u32 v{V_WA + q}, s{S_T0}, v{V_WA + q}")
        a(f"s_lshl_b32 s{S_T2}, s{S_WN}, 6")
        a(f"v_xor_b32 v{V_WB}, s{S_T2}, v{T4}")
        a(f"v_add_u32 v{V_WB}, s{S_T1}, v{V_WB}")
        a(f"v_xor_b32 v{V_WB+1}, 32, v{V_WB}")
        a(f"v_lshrrev_b32 v{T1}, 3, v{L}")
        a(f"v_lshlrev_b32 v{T1}, 8, v{T1}")
        a(f"v_and_b32 v{T2}, 7, v{L}")
        a(f"v_lshlrev_b32 v{T2}, 4, v{T2}")
        a(f"v_add_u32 v{V_ST}, v{T1}, v{T2}")
        a(f"s_mov_b32 s{S_NL2E}, {f32bits(-LOG2E):#x}")
        a(f"s_mov_b32 s{S_NL2E+1}, {f32bits(-LOG2E):#x}")
        a(f"s_mov_b32 s{S_ONE}, 1.0")
        a(f"s_mov_b32 s{S_ONE+1}, 1.0")
        a(f"s_lshl_b32 s{S_T0}, s2, 3")
        a(f"s_add_u32 s{S_TOK}, s{S_T0}, s{S_WAVE}")
        for i in range(0, 160, 2):
            a(f"v_mov_b64 {vr(i, 2)}, 0")

        normal_order = [divmod(j, 10) for j in range(20)]

        def wread(buf, j, order=normal_order):
            ks, nt = order[j]
            va, imm, _ = tiles[nt]
            F = WF + (j % 5) * 4
            return [f"ds_read_b64_tr_b16 {vr(F + 2 * t, 2)}, v{va} offset:{buf * WSTRIDE + imm + (32 * ks + 4 * t) * 128}"
                    for t in range(2)]

        def xread(buf, ks, tt):
            return f"ds_read_b128 {vr(XF[ks] + 4 * tt)}, v{V_XA + ks} offset:{XBUF[buf] + tt * 2048}"

        def mfma(j, tt, order=normal_order):
            ks, nt = order[j]
            W = vr(WF + (j % 5) * 4)
            X = vr(XF[ks] + 4 * tt)
            A, B = (X, W) if tiles[nt][2] else (W, X)
            d = vr(acc(nt, tt))
            return f"v_mfma_f32_16x16x32_bf16 {d}, {A}, {B}, {d}"

        a(f"s_lshl_b32 s{S_T0}, s2, 7")
        a(f"s_add_u32 s{S_T0}, s{S_T0}, {FLAG_BASE}")
        a(f"v_mov_b32 v{T0}, 0")
        a(f"buffer_store_dword v{T0}, v{T0}, {WS}, s{S_T0} offen sc1")
        st.stamp(0)
        a("s_waitcnt vmcnt(3)")
        a("s_barrier")
        st.stamp(1)
        for tt in range(4):
            a(xread(0, 0, tt))
        for j in range(4):
            for r in wread(0, j):
                a(r)
        for d in d1[:2]:
            a(d)

        def stage(buf, post_barrier=None):
            for j in range(20):
                if j == 16:
                    a("s_waitcnt vmcnt(1) lgkmcnt(0)")
                    a("s_barrier")
                    st.loop_stamp(32, S_CNT, 2, buf)
                    assert not stage.pending
                    stage.pending = dma_list(buf) + [pf]
                    if post_barrier:
                        post_barrier()
                elif j % 2 == 0 and j < 16:
                    a("s_waitcnt lgkmcnt(4)")
                wr = wread(buf, j + 4) if j + 4 < 20 else wread(buf ^ 1, j + 4 - 20)
                xr = []
                if 2 <= j <= 5:
                    xr = [xread(buf, 1, j - 2)]
                if j in (16, 17):
                    xr = [xread(buf ^ 1, 0, 2 * (j - 16)), xread(buf ^ 1, 0, 2 * (j - 16) + 1)]
                dm, dm2 = [], []
                if stage.pending and j not in (16, 17):
                    if 'dma2' in OPT and not xr and j < 16:
                        dm2 = [stage.pending.pop(0)]
                if stage.pending and j not in (16, 17):
                    dm = [stage.pending.pop(0)]
                slots = [wr[:1], wr[1:] + dm2, xr[:1], xr[1:] + dm]
                for tt in range(4):
                    a(mfma(j, tt))
                    for f in slots[tt]:
                        a(f)

        GX, GW_, G0, G1, GA = V_T, V_T + 8, V_T + 16, V_T + 17, V_T + 18

        def events():
            a(f"s_cmp_eq_u32 s{S_CNT}, s65")
            a(f"s_cbranch_scc0 L_p1_{variant}_e0")
            signal(a, C0, G0, f"L_p1_{variant}_e0")
            a(f"s_cmp_eq_u32 s{S_CNT}, 7")
            a(f"s_cbranch_scc0 L_p1_{variant}_e7")
            a(f"v_mov_b32 v{G1}, {C0}")
            a(f"buffer_load_dword v{V_C0}, v{G1}, {DBG}, 0 offen sc1")
            a(f"s_lshl_b32 s{S_T0}, s{S_TOK}, 11")
            a(f"v_lshlrev_b32 v{G0}, 5, v{L}")
            a(f"buffer_load_dwordx4 {vr(GX)}, v{G0}, {sr(S_X)}, s{S_T0} offen")
            a(f"buffer_load_dwordx4 {vr(GX+4)}, v{G0}, {sr(S_X)}, s{S_T0} offen offset:16")
            a(f"buffer_load_dwordx4 {vr(GW_)}, v{G0}, {sr(S_GW)}, 0 offen")
            a(f"buffer_load_dwordx4 {vr(GW_+4)}, v{G0}, {sr(S_GW)}, 0 offen offset:16")
            for s_ in (S_X, S_QKV, S_G, S_U, S_PF):
                a(f"s_mov_b32 s{s_ + 2}, 0")
            a.label(f"L_p1_{variant}_e7")

        stage.pending = d1[2:] + [pf]
        a(f"s_mov_b32 s{S_CNT}, 0")
        a(".p2align 6")
        a.label(f"L_p1_{variant}_loop")
        saved = list(stage.pending)
        stage(0, post_barrier=events)
        a(f"s_cmp_eq_u32 s{S_CNT}, 7")
        a(f"s_cbranch_scc1 L_p1_{variant}_last")
        stage(1)
        assert stage.pending == saved
        a(f"s_add_u32 s{S_CNT}, s{S_CNT}, 1")
        a(f"s_branch L_p1_{variant}_loop")

        a.label(f"L_p1_{variant}_last")
        a(f"s_lshl_b32 s{S_T0}, s{S_ROWBLK}, 3")
        a(f"s_and_b32 s{S_T1}, s{S_WAVE}, 6")
        a(f"s_add_u32 s{S_T0}, s{S_T0}, s{S_T1}")
        TB = S_T0
        S_A0, S_A1, S_A2 = S_WO, S_WO + 1, S_WO + 2
        a(f"s_cmp_lt_u32 s{S_QKU}, 32")
        a(f"s_cselect_b32 s{S_QS}, {f32bits(QSCALE):#x}, 1.0")
        a(f"s_mov_b32 s{S_QS+1}, s{S_QS}")
        a(f"s_lshl_b32 s{S_T1}, s{S_QKU}, 17")
        a(f"s_lshl_b32 s{S_T2}, s{TB}, 11")
        a(f"s_add_u32 s{S_T1}, s{S_T1}, s{S_T2}")
        a(f"s_sub_u32 s{S_T3}, s{S_QKU}, 32")
        a(f"s_lshl_b32 s{S_T3}, s{S_T3}, 18")
        a(f"s_lshl_b32 s{S_T2}, s{TB}, 12")
        a(f"s_add_u32 s{S_T3}, s{S_T3}, s{S_T2}")
        a(f"s_add_u32 s{S_T3}, s{S_T3}, {KV_BASE}")
        a(f"s_cmp_lt_u32 s{S_QKU}, 32")
        a(f"s_cselect_b32 s{S_A0}, s{S_T1}, s{S_T3}")
        a(f"s_cselect_b32 s{S_T1}, 1, 2")
        a(f"s_lshl_b32 s{S_T1}, s{S_T1}, 11")
        a(f"s_add_u32 s{S_A1}, s{S_A0}, s{S_T1}")
        if v_t is not None:
            a(f"s_lshl_b32 s{S_A2}, s{S_VU}, 18")
            a(f"s_add_u32 s{S_A2}, s{S_A2}, s{S_T2}")
            a(f"s_add_u32 s{S_A2}, s{S_A2}, {KV_BASE + 2048}")

        def pack_store(r0, r1, soff, imm, pre=()):
            return list(pre) + [
                f"v_cvt_pk_bf16_f32 v{r0}, v{r0}, v{r0+1}", f"v_cvt_pk_bf16_f32 v{r0+1}, v{r0+2}, v{r0+3}",
                f"v_cvt_pk_bf16_f32 v{r0+2}, v{r1}, v{r1+1}", f"v_cvt_pk_bf16_f32 v{r0+3}, v{r1+2}, v{r1+3}",
                f"buffer_store_dwordx4 {vr(r0)}, v{V_ST}, {WS}, s{soff} offen offset:{imm} sc1"]

        done_at = {}
        for j, (ks, nt) in enumerate(last_order):
            done_at[nt] = j
        jobs = []
        for tt in range(4):
            pre = [f"v_pk_mul_f32 {vr(acc(qk_t + t, tt) + 2*h, 2)}, {vr(acc(qk_t + t, tt) + 2*h, 2)}, {sr(S_QS, 2)}"
                   for t in range(2) for h in range(2)]
            jobs.append((done_at[qk_t + 1] + 3, pack_store(acc(qk_t, tt), acc(qk_t + 1, tt),
                                                           S_A0 if tt < 2 else S_A1, (tt & 1) * 128, pre)))
        if v_t is not None:
            for n in range(4):
                vi, e = divmod(n, 2)
                for m in range(2):
                    pre = [f"s_add_u32 s{S_T1}, s{S_A2}, {vi * 262144 + m * 4096}"]
                    jobs.append((done_at[v_t + n] + 3, pack_store(acc(v_t + n, 2 * m), acc(v_t + n, 2 * m + 1),
                                                                  S_T1, e * 128, pre)))
        fill = []
        for j in range(20):
            if j % 2 == 0:
                a(f"s_waitcnt lgkmcnt({4 if j <= 16 else 0})")
            while jobs and jobs[0][0] <= j:
                fill += jobs.pop(0)[1]
            wr = wread(1, j + 4, last_order) if j + 4 < 20 else []
            xr = [xread(1, 1, 2 * j), xread(1, 1, 2 * j + 1)] if j < 2 else []
            slots = [xr[:1] + wr[:1], xr[1:] + wr[1:], [], []]
            for tt in range(4):
                a(mfma(j, tt, last_order))
                for f in slots[tt]:
                    a(f)
                for _ in range(2):
                    if fill:
                        a(fill.pop(0))
        assert not jobs
        for f in fill:
            a(f)
        st.stamp(2)
        tmp = XF[0]
        a(f"s_lshr_b32 s{S_T1}, s{TB}, 2")
        a(f"s_mul_i32 s{S_T1}, s{S_T1}, {AF_KB}")
        a(f"s_add_u32 s{S_T1}, s{S_T1}, s{S_FU}")
        a(f"s_lshl_b32 s{S_T1}, s{S_T1}, 13")
        a(f"s_and_b32 s{S_T2}, s{TB}, 2")
        a(f"s_lshl_b32 s{S_T2}, s{S_T2}, 11")
        a(f"s_add_u32 s{S_T1}, s{S_T1}, s{S_T2}")
        a(f"s_add_u32 s{S_H0}, s{S_T1}, {AF_BASE}")
        if variant == "E":
            a(f"s_add_u32 s{S_H1}, s{S_H0}, 8192")
        else:
            a(f"s_mov_b32 s{S_H1}, 0x7f000000")

        def raise_flag():
            a("s_waitcnt vmcnt(0)")
            a("s_barrier")
            a(f"s_cmp_lg_u32 s{S_WAVE}, 0")
            a(f"s_cbranch_scc1 L_p1_{variant}_flag")
            a(f"s_lshl_b32 s{S_T2}, s2, 7")
            a(f"s_add_u32 s{S_T2}, s{S_T2}, {FLAG_BASE}")
            a(f"v_mov_b32 v{G0}, 1")
            a(f"v_mov_b32 v{G1}, 0")
            a("s_mov_b64 exec, 1")
            a(f"buffer_store_dword v{G0}, v{G1}, {WS}, s{S_T2} offen sc1")
            a("s_mov_b64 exec, -1")
            a.label(f"L_p1_{variant}_flag")
            st.stamp(3)

        ftp = FLAG_TP_E if variant == "E" else FLAG_TP_O
        if ftp < 0:
            raise_flag()
        for ui, (gt, ut) in enumerate(hunits):
            for tp in range(2):
                regs = []
                for tt in (2 * tp, 2 * tp + 1):
                    for t in range(2):
                        regs.append((acc(gt + t, tt), acc(ut + t, tt)))
                tb = tmp + tp * 16
                for i, (G, U) in enumerate(regs):
                    for h in range(2):
                        a(f"v_pk_mul_f32 {vr(tb + 4*i + 2*h, 2)}, {vr(G + 2*h, 2)}, {sr(S_NL2E, 2)}")
                for r in range(16):
                    a(f"v_exp_f32 v{tb + r}, v{tb + r}")
                for r in range(8):
                    a(f"v_pk_add_f32 {vr(tb + 2*r, 2)}, {vr(tb + 2*r, 2)}, {sr(S_ONE, 2)}")
                for r in range(16):
                    a(f"v_rcp_f32 v{tb + r}, v{tb + r}")
                for i, (G, U) in enumerate(regs):
                    for h in range(2):
                        a(f"v_pk_mul_f32 {vr(G + 2*h, 2)}, {vr(G + 2*h, 2)}, {vr(tb + 4*i + 2*h, 2)}")
                for i, (G, U) in enumerate(regs):
                    for h in range(2):
                        a(f"v_pk_mul_f32 {vr(G + 2*h, 2)}, {vr(G + 2*h, 2)}, {vr(U + 2*h, 2)}")
                for tt in (2 * tp, 2 * tp + 1):
                    P = V_H + (ui * 4 + tt) * 4
                    r0, r1 = acc(gt, tt), acc(gt + 1, tt)
                    a(f"v_cvt_pk_bf16_f32 v{P}, v{r0}, v{r0+1}")
                    a(f"v_cvt_pk_bf16_f32 v{P+1}, v{r0+2}, v{r0+3}")
                    a(f"v_cvt_pk_bf16_f32 v{P+2}, v{r1}, v{r1+1}")
                    a(f"v_cvt_pk_bf16_f32 v{P+3}, v{r1+2}, v{r1+3}")
                if ui == 0 and tp == ftp:
                    raise_flag()
        if variant == "E":
            a("s_branch L_p1_gate")

    a.label("L_p1_gate")
    a(f"v_mov_b32 v{GA}, 0")
    for i in range(8):
        a(f"v_lshlrev_b32 v{G0}, 16, v{GX+i}")
        a(f"v_lshlrev_b32 v{G1}, 16, v{GW_+i}")
        a(f"v_mul_f32 v{G0}, v{G0}, v{G1}")
        a(f"v_and_b32 v{GX+i}, 0xffff0000, v{GX+i}")
        a(f"v_and_b32 v{GW_+i}, 0xffff0000, v{GW_+i}")
        a(f"v_mul_f32 v{GX+i}, v{GX+i}, v{GW_+i}")
        a(f"v_cvt_pk_bf16_f32 v{G0}, v{G0}, v{GX+i}")
        a(f"v_lshlrev_b32 v{G1}, 16, v{G0}")
        a(f"v_and_b32 v{G0}, 0xffff0000, v{G0}")
        a(f"v_add_f32 v{GA}, v{GA}, v{G1}")
        a(f"v_add_f32 v{GA}, v{GA}, v{G0}")
    for dpp in ("row_shr:1 bound_ctrl:0", "row_shr:2 bound_ctrl:0", "row_shr:4 bound_ctrl:0", "row_shr:8 bound_ctrl:0",
                "row_bcast:15 row_mask:0xa", "row_bcast:31 row_mask:0xc"):
        a("s_nop 1")
        a(f"v_add_f32_dpp v{GA}, v{GA}, v{GA} {dpp}")
    a(f"v_cvt_pk_bf16_f32 v{G0}, v{GA}, v{GA}")
    a(f"v_and_b32 v{G0}, 0xffff0000, v{G0}")
    a(f"v_mul_f32 v{G0}, s{S_NL2E}, v{G0}")
    a(f"v_exp_f32 v{G0}, v{G0}")
    a("s_nop 0")
    a(f"v_add_f32 v{G0}, 1.0, v{G0}")
    a(f"v_rcp_f32 v{G0}, v{G0}")
    a("s_nop 0")
    a(f"v_cvt_pk_bf16_f32 v{G0}, v{G0}, v{G0}")
    a(f"v_and_b32 v{G0}, 0xffff0000, v{G0}")
    a(f"v_sub_f32 v{G1}, 1.0, v{G0}")
    a(f"v_cvt_pk_bf16_f32 v{G1}, v{G1}, v{G1}")
    a(f"v_and_b32 v{G1}, 0xffff0000, v{G1}")
    a(f"s_lshl_b32 s{S_T1}, s{S_TOK}, 3")
    a(f"s_add_u32 s{S_T1}, s{S_T1}, {G_BASE}")
    a(f"v_mov_b32 v{GA}, 0")
    a("s_mov_b32 exec_lo, 0")
    a("s_mov_b32 exec_hi, 0x80000000")
    a(f"buffer_store_dwordx2 {vr(G0, 2)}, v{GA}, {WS}, s{S_T1} offen sc1")
    a("s_mov_b64 exec, -1")
    st.stamp(4)


RB, STG, NB = 65536, 32768, 8
SW = 61440
SW_G, SW_A, SW_R = SW + 32, SW + 36, SW + 40
PART = [65536, 98304, 131072, 0]


def lds_arrive(a, word, vt, label):
    a(f"v_mov_b32 v{vt}, {word}")
    a(f"v_mov_b32 v{vt + 1}, 1")
    a("s_mov_b64 exec, 1")
    a(f"ds_add_rtn_u32 v{vt + 1}, v{vt}, v{vt + 1}")
    a("s_waitcnt lgkmcnt(0)")
    a(f"v_readfirstlane_b32 s80, v{vt + 1}")
    a("s_mov_b64 exec, -1")
    a("s_cmp_eq_u32 s80, 3")
    a(f"s_cbranch_scc0 {label}")


def global_arrive(a, off, vt, label):
    a(f"v_mov_b32 v{vt}, 1")
    a(f"v_mov_b32 v{vt + 1}, {off}")
    a("s_mov_b64 exec, 1")
    a(f"buffer_atomic_add v{vt}, v{vt + 1}, {DBG}, 0 offen sc0 sc1")
    a("s_waitcnt vmcnt(0)")
    a(f"v_readfirstlane_b32 s80, v{vt}")
    a("s_mov_b64 exec, -1")
    a("s_cmp_eq_u32 s80, 255")
    a(f"s_cbranch_scc0 {label}")
    a(f"v_mov_b32 v{vt}, 1")
    a("s_mov_b64 exec, 1")
    a(f"buffer_store_dword v{vt}, v{vt + 1}, {DBG}, 0 offen offset:128 sc1")
    a("s_mov_b64 exec, -1")


def lds_wait(a, label, word, value, vt, scnt):
    a(f"v_mov_b32 v{vt}, {word}")
    a(f"s_mov_b32 s{scnt}, 0")
    a.label(label)
    a(f"ds_read_b32 v{vt + 1}, v{vt}")
    a("s_waitcnt lgkmcnt(0)")
    a(f"v_cmp_gt_u32 vcc, {value}, v{vt + 1}")
    a("s_cmp_eq_u64 vcc, 0")
    a(f"s_cbranch_scc1 {label}_ok")
    a("s_sleep 2")
    a(f"s_add_u32 s{scnt}, s{scnt}, 1")
    a(f"s_cmp_lt_u32 s{scnt}, {SPIN_LIMIT * 8}")
    a(f"s_cbranch_scc1 {label}")
    a.label(f"{label}_ok")


def phase23(a, st):
    L = V_LANE
    S_KVD, S_OUT, S_UW = 12, 16, 20
    S_HEAD, S_QBLK, S_SRC, S_LDS, S_CNT = 24, 25, 26, 27, 28
    S_T0, S_T1, S_T2 = 29, 30, 31
    S_TOKB, S_KVB, S_BIG, S_SP = 32, 33, 34, 35
    S_MB, S_NB, S_KQ, S_ASRC, S_WSRC, S_STEPS, S_GOFF = 40, 41, 42, 43, 44, 45, 46
    S_RD = 47
    S_WL = 48
    V_DA, V_UA, V_UR = 232, 233, 234
    V_G = 240
    V_X = 248
    BUF = [128, 176]

    a(f"s_cmp_lt_u32 s{S_WAVE}, 4")
    a(f"s_cselect_b32 s{S_T0}, 16, 48")
    a(f"s_load_dwordx2 {sr(S_UW, 2)}, s[0:1], s{S_T0}")
    a(f"s_mov_b32 s{S_UW + 2}, {3584 * 2048}")
    a(f"s_cselect_b32 s{S_UW + 2}, {1024 * 2048}, s{S_UW + 2}")
    a(f"s_mov_b32 s{S_UW + 3}, 0x00020000")
    a("s_load_dwordx2 s[52:53], s[0:1], 16")
    a(f"s_load_dwordx2 {sr(S_OUT, 2)}, s[0:1], 64")
    a(f"s_and_b32 s{S_T0}, s2, 7")
    a(f"s_lshl_b32 s{S_HEAD}, s{S_T0}, 2")
    a(f"s_lshr_b32 s{S_T1}, s2, 3")
    a(f"s_and_b32 s{S_T2}, s{S_T1}, 3")
    a(f"s_add_u32 s{S_HEAD}, s{S_HEAD}, s{S_T2}")
    a(f"s_lshr_b32 s{S_QBLK}, s2, 5")
    a(f"s_lshl_b32 s36, s{S_HEAD}, 2")
    a("s_and_b32 s36, s36, 8")
    a(f"s_add_u32 s36, s36, s{S_T0}")
    a("s_add_u32 s37, s36, 16")
    a(f"s_add_u32 s38, s{S_T0}, 24")
    a(f"s_lshl_b32 s39, s{S_QBLK}, 5")
    a("s_add_u32 s36, s36, s39")
    X0, X1, X2, X3, X4, X5 = (V_X + i for i in range(6))
    a(f"s_cmp_lg_u32 s{S_WAVE}, 4")
    a("s_cbranch_scc1 L_p2_polled")
    a(f"v_and_b32 v{X0}, 7, v{L}")
    a(f"v_lshlrev_b32 v{X0}, 5, v{X0}")
    a(f"v_add_u32 v{X1}, s37, v{X0}")
    a(f"v_add_u32 v{X2}, s38, v{X0}")
    a(f"v_mov_b32 v{X4}, s36")
    a(f"v_cmp_gt_u32 vcc, 16, v{L}")
    a("s_nop 1")
    a(f"v_cndmask_b32 v{X4}, v{X4}, v{X2}, vcc")
    a(f"v_cmp_gt_u32 vcc, 8, v{L}")
    a("s_nop 1")
    a(f"v_cndmask_b32 v{X4}, v{X4}, v{X1}, vcc")
    a(f"v_lshlrev_b32 v{X4}, 7, v{X4}")
    a(f"v_add_u32 v{X4}, {FLAG_BASE}, v{X4}")
    a(f"v_mov_b32 v{X0}, {C0}")
    a(f"v_mov_b32 v{X1}, 0x100")
    ld0 = f"buffer_load_dword v{V_C0}, v{X0}, {DBG}, 0 offen sc1"
    ld1 = f"buffer_load_dword v{X2}, v{X4}, {WS}, 0 offen sc1"
    spin(a, "L_p2_c0", ld0, V_C0, f"v{X1}", S_SP)
    a(ld1)
    a("s_waitcnt vmcnt(0)")
    spin(a, "L_p2_fl", ld1, X2, 1, S_SP)
    a.label("L_p2_polled")
    a(f"s_lshr_b32 s{S_MB}, s{S_T0}, 1")
    a(f"s_lshl_b32 s{S_MB}, s{S_MB}, 2")
    a(f"s_add_u32 s{S_MB}, s{S_MB}, s{S_T2}")
    a(f"s_and_b32 s{S_NB}, s{S_T0}, 1")
    a(f"s_lshl_b32 s{S_NB}, s{S_NB}, 3")
    a(f"s_add_u32 s{S_NB}, s{S_NB}, s{S_QBLK}")
    a(f"s_and_b32 s{S_KQ}, s{S_WAVE}, 3")
    a(f"s_cmp_lt_u32 s{S_WAVE}, 4")
    a(f"s_cselect_b32 s{S_T1}, {AF_O}, 0")
    a(f"s_cselect_b32 s{S_STEPS}, 4, 14")
    a(f"s_cselect_b32 s{S_GOFF}, 0, 4")
    a(f"s_add_u32 s{S_T1}, s{S_T1}, s{S_KQ}")
    a(f"s_mul_i32 s{S_ASRC}, s{S_MB}, {AF_KB}")
    a(f"s_add_u32 s{S_ASRC}, s{S_ASRC}, s{S_T1}")
    a(f"s_lshl_b32 s{S_ASRC}, s{S_ASRC}, 13")
    a(f"s_add_u32 s{S_ASRC}, s{S_ASRC}, {AF_BASE}")
    a(f"s_lshl_b32 s{S_WSRC}, s{S_KQ}, 16")
    a(f"s_lshl_b32 s{S_T1}, s{S_NB}, 7")
    a(f"s_add_u32 s{S_WSRC}, s{S_WSRC}, s{S_T1}")
    a(f"s_lshl_b32 s{S_WL}, s{S_KQ}, 13")
    a(f"s_add_u32 s{S_T1}, s{S_WL}, {RB}")
    a(f"s_cmp_lt_u32 s{S_WAVE}, 4")
    a(f"s_cselect_b32 s{S_WL}, s{S_T1}, s{S_WL}")
    a(f"v_lshrrev_b32 v{X0}, 3, v{L}")
    a(f"v_and_b32 v{X1}, 6, v{X0}")
    a(f"v_and_b32 v{X2}, 7, v{L}")
    a(f"v_xor_b32 v{X1}, v{X1}, v{X2}")
    a(f"v_lshlrev_b32 v{X1}, 4, v{X1}")
    a(f"v_lshlrev_b32 v{X0}, 11, v{X0}")
    a(f"v_add_u32 v{V_UA}, v{X0}, v{X1}")
    a(f"v_lshrrev_b32 v{X0}, 2, v{L}")
    a(f"v_lshlrev_b32 v{X0}, 7, v{X0}")
    a(f"v_lshlrev_b32 v{X1}, 2, v{L}")
    a(f"v_and_b32 v{X1}, 0x60, v{X1}")
    a(f"v_add_u32 v{X0}, v{X0}, v{X1}")
    a(f"v_and_b32 v{X1}, 3, v{L}")
    a(f"v_lshlrev_b32 v{X1}, 3, v{X1}")
    a(f"v_add_u32 v{X0}, v{X0}, v{X1}")
    a(f"v_add_u32 v{V_UR}, s{S_WL}, v{X0}")
    for q in range(1, 4):
        a(f"v_xor_b32 v{V_UR + q}, {q << 5}, v{V_UR}")
    a(f"s_lshl_b32 s{S_T1}, s{S_MB}, 10")
    a(f"s_add_u32 s{S_GOFF}, s{S_GOFF}, s{S_T1}")
    a(f"s_add_u32 s{S_GOFF}, s{S_GOFF}, {G_BASE}")
    a(f"v_add_u32 v{V_DA}, 4096, v{V_L16}")
    a(f"s_mov_b32 s{S_OUT + 2}, {2048 * 2048}")
    a(f"s_mov_b32 s{S_OUT + 3}, 0x00020000")
    a(f"s_lshl_b32 s{S_KVB}, s{S_HEAD}, 18")
    a(f"s_add_u32 s{S_KVB}, s{S_KVB}, {KV_BASE}")
    a(f"s_lshl_b32 s{S_LDS}, s{S_KQ}, 13")
    a(f"s_add_u32 s{S_SRC}, s{S_KVB}, s{S_LDS}")
    a(f"s_add_u32 s{S_LDS}, s{S_LDS}, {RB}")
    srd(a, S_KVD, S_WS, WS_USED)
    a(f"s_add_u32 s{S_KVD + 2}, s{S_KVB}, {8 * STG}")
    a(f"s_lshl_b32 s{S_T1}, s{S_KQ}, 13")
    a(f"v_add_u32 v{X5}, s{S_T1}, v{V_L16}")
    a(f"s_cmp_lt_u32 s{S_WAVE}, 4")
    a("s_cbranch_scc0 L_g_start")

    V_K, V_V, V_ONE = 0, 8, 16
    V_OS, V_KA, V_VA, V_PG, V_PW = 20, 21, 22, 23, 24
    V_PR = 28

    def R(q):
        b = 32 + q * 88
        return dict(Q=b, S=[b + 8, b + 24], C=b + 40, O=b + 56, P=b + 72, L=b + 80, M=b + 84)
    V_T = 208

    for k in range(8):
        a(f"ds_write_b128 v{X5}, {vr(V_H + 4 * k)} offset:{k * 1024}")
    a(f"v_mov_b32 v{V_PW}, {SW}")
    for i in range(4):
        a(f"v_mov_b32 v{V_PR + i}, 0")
    a(f"ds_write_b128 v{V_PW}, {vr(V_PR)}")
    a(f"ds_write_b128 v{V_PW}, {vr(V_PR)} offset:16")
    a(f"ds_write_b128 v{V_PW}, {vr(V_PR)} offset:32")
    a(f"s_lshl_b32 s{S_TOKB}, s{S_QBLK}, 3")
    a(f"s_lshl_b32 s{S_T1}, s{S_WAVE}, 1")
    a(f"s_add_u32 s{S_TOKB}, s{S_TOKB}, s{S_T1}")
    a(f"v_and_b32 v{X0}, 7, v{L}")
    a(f"v_lshrrev_b32 v{X1}, 1, v{L}")
    a(f"v_and_b32 v{X1}, 8, v{X1}")
    a(f"v_or_b32 v{X0}, v{X0}, v{X1}")
    a(f"v_lshrrev_b32 v{X1}, 3, v{L}")
    a(f"v_and_b32 v{X1}, 1, v{X1}")
    a(f"v_lshlrev_b32 v{V_OS}, 10, v{X1}")
    a(f"v_lshlrev_b32 v{X0}, 4, v{X0}")
    a(f"v_add_u32 v{V_OS}, v{V_OS}, v{X0}")
    a(f"v_lshrrev_b32 v{X0}, 5, v{L}")
    a(f"v_lshlrev_b32 v{X0}, 8, v{X0}")
    a(f"v_add_u32 v{V_OS}, v{V_OS}, v{X0}")
    a(f"v_lshrrev_b32 v{X0}, 4, v{L}")
    a(f"v_lshrrev_b32 v{X1}, 2, v{L}")
    a(f"v_xor_b32 v{X0}, v{X0}, v{X1}")
    a(f"v_and_b32 v{X0}, 1, v{X0}")
    a(f"v_cmp_eq_u32 vcc, 0, v{X0}")
    a(f"v_mov_b32 v{X1}, 0x3f803f80")
    a("s_nop 1")
    a(f"v_cndmask_b32 v{V_ONE}, 0, v{X1}, vcc")
    for i in range(1, 4):
        a(f"v_mov_b32 v{V_ONE + i}, v{V_ONE}")
    a("s_waitcnt lgkmcnt(0)")
    for q in range(2):
        r = R(q)
        for i in range(0, 16, 2):
            a(f"v_mov_b64 {vr(r['O'] + i, 2)}, 0")
        for i in range(0, 4, 2):
            a(f"v_mov_b64 {vr(r['L'] + i, 2)}, 0")
            a(f"v_mov_b64 {vr(r['P'] + 4 + i, 2)}, 0")
    a(f"v_mov_b64 {vr(V_V + 4, 2)}, 0")
    a(f"v_mov_b64 {vr(V_V + 6, 2)}, 0")
    a(f"v_add_u32 v{V_KA}, {RB}, v{V_L16}")
    a(f"v_mov_b32 v{V_VA}, v{V_KA}")
    a(f"s_mov_b32 s{S_RD}, {RB}")
    a(f"s_lshl_b32 s{S_T1}, s{S_WAVE}, 2")
    a(f"s_add_u32 s{S_T1}, s{S_T1}, {SW}")
    a(f"v_mov_b32 v{V_PW + 1}, s{S_T1}")
    a(f"v_mov_b32 v{V_PG}, 0")
    a(f"s_mov_b32 s{S_BIG}, {f32bits(2.0 ** 60):#x}")
    a(f"s_mov_b32 s{S_SP}, 0")
    a(f"s_lshl_b32 s{S_T0}, s{S_HEAD}, 17")
    a(f"s_lshl_b32 s{S_T1}, s{S_TOKB}, 11")
    a(f"s_add_u32 s{S_T0}, s{S_T0}, s{S_T1}")
    a("s_barrier")
    st.stamp(5)
    a("s_setprio 2")

    def dma_half(h):
        out = [f"s_add_u32 m0, s{S_LDS}, {h * 4096}\ns_add_u32 s{S_T1}, s{S_SRC}, {h * 4096}\n"
               f"buffer_load_dwordx4 v{V_L16}, {sr(S_KVD)}, s{S_T1} offen sc1 lds"]
        for i in range(1, 4):
            out.append(f"buffer_load_dwordx4 v{V_L16}, {sr(S_KVD)}, s{S_T1} offen offset:{i * 1024} sc1 lds")
        if h == 1:
            out[3] += (f"\ns_add_u32 s{S_SRC}, s{S_SRC}, {STG}\ns_add_u32 s{S_LDS}, s{S_LDS}, {STG}\n"
                       f"s_sub_u32 s{S_T1}, s{S_LDS}, {3 * STG}\ns_cmp_ge_u32 s{S_LDS}, {RB + 3 * STG}\n"
                       f"s_cselect_b32 s{S_LDS}, s{S_T1}, s{S_LDS}")
        return out

    for q in range(2):
        a(f"buffer_load_dwordx4 {vr(R(q)['Q'])}, v{V_L16}, {WS}, s{S_T0} offen offset:{q * 2048} sc1")
        a(f"buffer_load_dwordx4 {vr(R(q)['Q'] + 4)}, v{V_L16}, {WS}, s{S_T0} offen offset:{q * 2048 + 1024} sc1")
    for x in dma_half(0) + dma_half(1):
        a(x)
    a("s_waitcnt vmcnt(0)")
    a("s_barrier")
    st.stamp(6)

    def rdK(blk):
        o = (blk % NB) * 4096
        return [f"ds_read_b128 {vr(V_K)}, v{V_KA} offset:{o}", f"ds_read_b128 {vr(V_K + 4)}, v{V_KA} offset:{o + 1024}"]

    def rdV(blk):
        o = (blk % NB) * 4096 + 2048
        return [f"ds_read_b128 {vr(V_V)}, v{V_VA} offset:{o}", f"ds_read_b128 {vr(V_V + 4)}, v{V_VA} offset:{o + 1024}"]

    advK = (f"s_add_u32 s{S_RD}, s{S_RD}, {STG}\ns_cmp_ge_u32 s{S_RD}, {RB + 3 * STG}\n"
            f"s_cselect_b32 s{S_RD}, {RB}, s{S_RD}\nv_add_u32 v{V_KA}, s{S_RD}, v{V_L16}")
    advV = f"v_add_u32 v{V_VA}, s{S_RD}, v{V_L16}"

    def rowmax(dst, S, init=None):
        if init is None:
            a(f"v_max3_f32 v{dst}, v{S}, v{S+1}, v{S+2}")
            rest = list(range(3, 16))
        else:
            a(f"v_max3_f32 v{dst}, v{init}, v{S}, v{S+1}")
            rest = list(range(2, 16))
        while len(rest) >= 2:
            a(f"v_max3_f32 v{dst}, v{dst}, v{S + rest[0]}, v{S + rest[1]}")
            rest = rest[2:]
        if rest:
            a(f"v_max_f32 v{dst}, v{dst}, v{S + rest[0]}")

    def crosshalf_max(dst, tmp):
        a(f"v_mov_b32 v{tmp}, v{dst}")
        a("s_nop 1")
        a(f"v_permlane32_swap_b32 v{tmp}, v{dst}")
        a("s_nop 1")
        a(f"v_max_f32 v{dst}, v{dst}, v{tmp}")

    for x in rdK(0):
        a(x)
    a("s_waitcnt lgkmcnt(0)")
    for q in range(2):
        r = R(q)
        a(f"v_mfma_f32_32x32x16_bf16 {vr(r['S'][0], 16)}, {vr(V_K)}, {vr(r['Q'])}, 0")
        a(f"v_mfma_f32_32x32x16_bf16 {vr(r['S'][0], 16)}, {vr(V_K + 4)}, {vr(r['Q'] + 4)}, {vr(r['S'][0], 16)}")
    for x in rdK(1):
        a(x)
    a(rdV(0)[0])
    a(f"s_add_u32 s{S_SRC}, s{S_SRC}, {STG}")
    a(f"s_add_u32 s{S_LDS}, s{S_LDS}, {STG}")
    a("s_nop 12")
    for q in range(2):
        r = R(q)
        rowmax(r['M'], r['S'][0])
        crosshalf_max(r['M'], r['M'] + 1)
        for i in range(16):
            a(f"v_sub_f32 v{r['C'] + i}, 0, v{r['M']}")
        for i in range(16):
            a(f"v_sub_f32 v{r['S'][0] + i}, v{r['S'][0] + i}, v{r['M']}")

    def half_block(i, q, extra):
        extra = list(extra) + ["", "", ""]
        r = R(q)
        Sc, Sn = r['S'][i & 1], r['S'][(i + 1) & 1]
        P, O, Lr = r['P'], r['O'], r['L']
        ex = [f"v_exp_f32 v{Sc + k}, v{Sc + k}" for k in range(16)]
        cv = [f"v_cvt_pk_bf16_f32 v{P + d}, v{Sc + 2*d}, v{Sc + 2*d + 1}" for d in range(8)]
        kr = rdK(i + 2) if q == 1 else ["", ""]
        if q == 0:
            a("s_waitcnt lgkmcnt(1)")
        a(f"v_mfma_f32_32x32x16_bf16 {vr(Sn, 16)}, {vr(V_K)}, {vr(r['Q'])}, {vr(r['C'], 16)}")
        a(kr[0])
        for e in ex[0:3]:
            a(e)
        a(f"v_mfma_f32_32x32x16_bf16 {vr(Sn, 16)}, {vr(V_K + 4)}, {vr(r['Q'] + 4)}, {vr(Sn, 16)}")
        a(kr[1])
        a(extra[0])
        for e in ex[3:6]:
            a(e)
        a(f"v_mfma_f32_32x32x16_bf16 {vr(O, 16)}, {vr(V_V + 4)}, {vr(P + 4)}, {vr(O, 16)}")
        if q == 1:
            a(rdV(i)[1])
        a(ex[6])
        a(ex[7])
        a(cv[0])
        a(cv[1])
        a(f"v_mfma_f32_16x16x32_bf16 {vr(Lr)}, {vr(V_ONE)}, {vr(P + 4)}, {vr(Lr)}")
        a(cv[2])
        a(cv[3])
        a(ex[8])
        a(ex[9])
        if q == 0:
            a("s_waitcnt lgkmcnt(0)")
        if q == 1 and i % NB == NB - 1:
            a(advV)
        a(f"v_mfma_f32_32x32x16_bf16 {vr(O, 16)}, {vr(V_V)}, {vr(P)}, {vr(O, 16)}")
        if q == 1:
            a(rdV(i + 1)[0])
        a(extra[1])
        for e in ex[10:13]:
            a(e)
        a(f"v_mfma_f32_16x16x32_bf16 {vr(Lr)}, {vr(V_ONE)}, {vr(P)}, {vr(Lr)}")
        a(extra[2])
        for e in ex[13:16]:
            a(e)
        for c in cv[4:8]:
            a(c)

    V_PR2 = V_T
    rdprog = f"ds_read_b128 {vr(V_PR)}, v{V_PW}\nds_read_b128 {vr(V_PR2)}, v{V_PW} offset:16"
    a(f"s_mov_b32 s{S_CNT}, 0")
    a(".p2align 6")
    a.label("L_p2_loop")
    dq = dma_half(0) + dma_half(1)
    for i in range(NB):
        ex0, ex1 = [], []
        if i == 1:
            ex0 = ["", f"v_add_u32 v{V_PG}, 1, v{V_PG}\ns_waitcnt vmcnt(0)\nds_write_b32 v{V_PW + 1}, v{V_PG}"]
        if i == 3:
            ex0 = ["", rdprog]
        if i == 4:
            a("s_waitcnt lgkmcnt(1)")
            a.label("L_p2_chk")
            a(f"v_min3_u32 v{V_PR}, v{V_PR}, v{V_PR+1}, v{V_PR+2}")
            a(f"v_min3_u32 v{V_PR}, v{V_PR}, v{V_PR+3}, v{V_PR2}")
            a(f"v_min3_u32 v{V_PR}, v{V_PR}, v{V_PR2+1}, v{V_PR2+2}")
            a(f"v_min_u32 v{V_PR}, v{V_PR}, v{V_PR2+3}")
            a(f"v_cmp_gt_u32 vcc, v{V_PG}, v{V_PR}")
            a("s_cmp_eq_u64 vcc, 0")
            a("s_cbranch_scc0 L_p2_wait")
            a.label("L_p2_go")
            a(f"s_sub_u32 s{S_T0}, s{S_CNT}, 1")
            a(f"s_cmp_lt_u32 s{S_T0}, 5")
            a("s_cselect_b64 vcc, -1, 0")
            st.loop_stamp(48, S_CNT, 1, 0)
        if i >= 4:
            def guard(x, k):
                body = x.split("\n")
                j = [n for n, ln in enumerate(body) if ln.startswith("buffer_load")][0]
                return "\n".join(body[:j] + [f"s_cbranch_vccz L_p2_skip{k}", body[j], f"L_p2_skip{k}:"] + body[j + 1:])
            ex0 = [guard(dq[2 * (i - 4)], 2 * (i - 4))]
            ex1 = [guard(dq[2 * (i - 4) + 1], 2 * (i - 4) + 1)]
        if i == NB - 2:
            a(advK)
        half_block(i, 0, ex0)
        half_block(i, 1, ex1)
    a(f"s_add_u32 s{S_CNT}, s{S_CNT}, 1")
    a(f"s_cmp_lt_u32 s{S_CNT}, 8")
    a("s_cbranch_scc1 L_p2_loop")
    a("s_waitcnt lgkmcnt(0)")
    a("s_nop 0")
    for q in range(2):
        r = R(q)
        a(f"v_mfma_f32_32x32x16_bf16 {vr(r['O'], 16)}, {vr(V_V + 4)}, {vr(r['P'] + 4)}, {vr(r['O'], 16)}")
        a(f"v_mfma_f32_16x16x32_bf16 {vr(r['L'])}, {vr(V_ONE)}, {vr(r['P'] + 4)}, {vr(r['L'])}")
    a("s_nop 15")
    st.stamp(7)
    a(f"s_lshr_b32 s{S_T2}, s{S_TOKB}, 2")
    a(f"s_mul_i32 s{S_T2}, s{S_T2}, {AF_KB}")
    a(f"s_add_u32 s{S_T2}, s{S_T2}, s{S_HEAD}")
    a(f"s_lshl_b32 s{S_T2}, s{S_T2}, 13")
    a(f"s_and_b32 s{S_T1}, s{S_TOKB}, 2")
    a(f"s_lshl_b32 s{S_T1}, s{S_T1}, 11")
    a(f"s_add_u32 s{S_T2}, s{S_T2}, s{S_T1}")
    a(f"s_add_u32 s{S_T2}, s{S_T2}, {AF_BASE + AF_O * 8192}")
    for q in range(2):
        r = R(q)
        O, P = r['O'], r['P']
        a(f"v_max3_f32 v{V_T}, abs(v{O}), abs(v{O+1}), abs(v{O+2})")
        for i in range(3, 15, 2):
            a(f"v_max3_f32 v{V_T}, v{V_T}, abs(v{O+i}), abs(v{O+i+1})")
        a(f"v_max_f32 v{V_T}, v{V_T}, abs(v{O+15})")
        a(f"v_add_f32 v{V_T+1}, v{O}, v{O+1}")
        for i in range(2, 16):
            a(f"v_add_f32 v{V_T+1}, v{V_T+1}, v{O+i}")
        a(f"v_mov_b32 v{V_T+2}, 0x7c000000")
        a(f"v_cmp_lt_f32 vcc, v{V_T}, v{V_T+2}")
        a(f"v_cmp_gt_f32 s[36:37], s{S_BIG}, v{r['L']}")
        a(f"v_cmp_o_f32 s[38:39], v{V_T+1}, v{V_T+1}")
        a("s_and_b64 vcc, vcc, s[36:37]")
        a("s_and_b64 vcc, vcc, s[38:39]")
        a("s_cmp_eq_u64 vcc, exec")
        a(f"s_cbranch_scc0 L_p2_slow{q}")
        a.label(f"L_p2_fin{q}")
        a(f"v_rcp_f32 v{V_T}, v{r['L']}")
        a("s_nop 0")
        for i in range(16):
            a(f"v_mul_f32 v{O + i}, v{O + i}, v{V_T}")
        for d in range(8):
            a(f"v_cvt_pk_bf16_f32 v{P + d}, v{O + 2*d}, v{O + 2*d + 1}")
        a(f"buffer_store_dwordx4 {vr(P)}, v{V_OS}, {WS}, s{S_T2} offen sc1")
        a(f"buffer_store_dwordx4 {vr(P + 4)}, v{V_OS}, {WS}, s{S_T2} offen offset:512 sc1")
        if q == 0:
            a(f"s_add_u32 s{S_T2}, s{S_T2}, 2048")
    a("s_setprio 0")
    a("s_waitcnt vmcnt(0)")
    lds_arrive(a, SW_A, X0, "L_a_sig")
    global_arrive(a, C3, X0, "L_a_sig")
    a.label("L_a_sig")
    st.stamp(8)
    a(f"v_and_b32 v{X0}, 1, v{L}")
    a(f"v_lshlrev_b32 v{X0}, 2, v{X0}")
    a(f"v_add_u32 v{X0}, {C2}, v{X0}")
    a("s_branch L_gemm")

    a.label("L_p2_wait")
    a(f"s_add_u32 s{S_SP}, s{S_SP}, 1")
    a(f"s_cmp_gt_u32 s{S_SP}, {SPIN_LIMIT * 8}")
    a("s_cbranch_scc1 L_p2_go")
    a("s_sleep 1")
    a(rdprog)
    a("s_waitcnt lgkmcnt(0)")
    a("s_branch L_p2_chk")

    for q in range(2):
        r = R(q)
        S0, Q = r['S'][0], r['Q']
        a.label(f"L_p2_slow{q}")
        a(f"v_mov_b32 v{V_T}, 0xff800000")
        a(f"s_mov_b32 s{S_T0}, s{S_KVB}")
        a(f"s_mov_b32 s{S_CNT}, 0")
        a.label(f"L_p2_slow_max{q}")
        a(f"buffer_load_dwordx4 {vr(V_K)}, v{V_L16}, {WS}, s{S_T0} offen sc1")
        a(f"buffer_load_dwordx4 {vr(V_K + 4)}, v{V_L16}, {WS}, s{S_T0} offen offset:1024 sc1")
        a("s_waitcnt vmcnt(0)")
        a(f"v_mfma_f32_32x32x16_bf16 {vr(S0, 16)}, {vr(V_K)}, {vr(Q)}, 0")
        a(f"v_mfma_f32_32x32x16_bf16 {vr(S0, 16)}, {vr(V_K + 4)}, {vr(Q + 4)}, {vr(S0, 16)}")
        a("s_nop 15")
        rowmax(V_T, S0, init=V_T)
        a(f"s_add_u32 s{S_T0}, s{S_T0}, 4096")
        a(f"s_add_u32 s{S_CNT}, s{S_CNT}, 1")
        a(f"s_cmp_lt_u32 s{S_CNT}, 64")
        a(f"s_cbranch_scc1 L_p2_slow_max{q}")
        crosshalf_max(V_T, V_T + 1)
        for i in range(16):
            a(f"v_sub_f32 v{r['C'] + i}, 0, v{V_T}")
            a(f"v_mov_b32 v{r['O'] + i}, 0")
        for i in range(4):
            a(f"v_mov_b32 v{r['L'] + i}, 0")
        a(f"s_mov_b32 s{S_T0}, s{S_KVB}")
        a(f"s_mov_b32 s{S_CNT}, 0")
        a.label(f"L_p2_slow_pv{q}")
        a(f"buffer_load_dwordx4 {vr(V_K)}, v{V_L16}, {WS}, s{S_T0} offen sc1")
        a(f"buffer_load_dwordx4 {vr(V_K + 4)}, v{V_L16}, {WS}, s{S_T0} offen offset:1024 sc1")
        a(f"buffer_load_dwordx4 {vr(V_V)}, v{V_L16}, {WS}, s{S_T0} offen offset:2048 sc1")
        a(f"buffer_load_dwordx4 {vr(V_V + 4)}, v{V_L16}, {WS}, s{S_T0} offen offset:3072 sc1")
        a("s_waitcnt vmcnt(0)")
        a(f"v_mfma_f32_32x32x16_bf16 {vr(S0, 16)}, {vr(V_K)}, {vr(Q)}, {vr(r['C'], 16)}")
        a(f"v_mfma_f32_32x32x16_bf16 {vr(S0, 16)}, {vr(V_K + 4)}, {vr(Q + 4)}, {vr(S0, 16)}")
        a("s_nop 15")
        for k in range(16):
            a(f"v_exp_f32 v{S0 + k}, v{S0 + k}")
        a("s_nop 0")
        for d in range(8):
            a(f"v_cvt_pk_bf16_f32 v{r['P'] + d}, v{S0 + 2*d}, v{S0 + 2*d + 1}")
        a("s_nop 1")
        a(f"v_mfma_f32_32x32x16_bf16 {vr(r['O'], 16)}, {vr(V_V)}, {vr(r['P'])}, {vr(r['O'], 16)}")
        a(f"v_mfma_f32_32x32x16_bf16 {vr(r['O'], 16)}, {vr(V_V + 4)}, {vr(r['P'] + 4)}, {vr(r['O'], 16)}")
        a(f"v_mfma_f32_16x16x32_bf16 {vr(r['L'])}, {vr(V_ONE)}, {vr(r['P'])}, {vr(r['L'])}")
        a(f"v_mfma_f32_16x16x32_bf16 {vr(r['L'])}, {vr(V_ONE)}, {vr(r['P'] + 4)}, {vr(r['L'])}")
        a("s_nop 15")
        a(f"s_add_u32 s{S_T0}, s{S_T0}, 4096")
        a(f"s_add_u32 s{S_CNT}, s{S_CNT}, 1")
        a(f"s_cmp_lt_u32 s{S_CNT}, 64")
        a(f"s_cbranch_scc1 L_p2_slow_pv{q}")
        a(f"s_branch L_p2_fin{q}")

    a.label("L_g_start")
    a(f"s_mov_b32 s54, {1024 * 2048}")
    a("s_mov_b32 s55, 0x00020000")
    a(f"v_lshlrev_b32 v64, 7, v{L}")
    a("s_waitcnt lgkmcnt(0)")
    a("s_barrier")
    st.stamp(5)
    for k in range(8):
        a(f"ds_read_b128 {vr(4 * k)}, v{X5} offset:{k * 1024}")
    a(f"s_add_u32 s{S_SRC}, s{S_SRC}, {STG}")
    a(f"s_add_u32 s{S_LDS}, s{S_LDS}, {STG}")
    a("s_waitcnt vmcnt(0) lgkmcnt(0)")
    for x in dma_half(0) + dma_half(1):
        a(x)
    a("s_barrier")
    st.stamp(6)
    for x in dma_half(0) + dma_half(1):
        a(x)
    ntouch = 0
    if 'nowarm' in OPT:
        ntouch = 2
        a(f"s_lshl_b32 s{S_T0}, s2, 2")
        a(f"s_add_u32 s{S_T0}, s{S_T0}, s{S_KQ}")
        a(f"s_lshl_b32 s{S_T0}, s{S_T0}, 13")
        a(f"buffer_load_dword v65, v64, {sr(S_UW)}, s{S_T0} offen")
        a(f"s_lshl_b32 s{S_T0}, s2, 13")
        a(f"s_cmp_eq_u32 s{S_KQ}, 3")
        a("s_cselect_b32 s54, s54, 0")
        a(f"buffer_load_dword v65, v64, s[52:55], s{S_T0} offen")
    TH = int(([o[2:] for o in OPT if o.startswith("th")] or ["8"])[0])
    a(f"s_lshl_b32 s{S_T1}, s{S_WAVE}, 2")
    a(f"s_add_u32 s{S_T1}, s{S_T1}, {SW}")
    a(f"v_mov_b32 v{X0}, s{S_T1}")
    a(f"v_mov_b32 v{X1}, 99")
    st.stamp(12)
    a(f"s_waitcnt vmcnt({ntouch})")
    a(f"ds_write_b32 v{X0}, v{X1}")
    st.stamp(13)
    if 'sj' in OPT:
        a("s_waitcnt vmcnt(0)")
        st.stamp(14)
    for k in range(8):
        a(f"buffer_store_dwordx4 {vr(V_H + 4 * k)}, v{V_L16}, {WS}, s{(S_H0, S_H1)[k // 4]} offen offset:{(k % 4) * 1024} sc1")
        a(f"s_waitcnt vmcnt({TH})")
    a(f"s_sub_u32 s{S_H0}, s{S_H0}, {8 * AF_KB * 1024}")
    a(f"s_sub_u32 s{S_H1}, s{S_H1}, {8 * AF_KB * 1024}")
    for k in range(8):
        a(f"buffer_store_dwordx4 {vr(4 * k)}, v{V_L16}, {WS}, s{(S_H0, S_H1)[k // 4]} offen offset:{(k % 4) * 1024} sc1")
        a(f"s_waitcnt vmcnt({TH})")
    st.stamp(27)
    st.stamp(28)
    a("s_waitcnt vmcnt(0)")
    st.stamp(29)
    lds_arrive(a, SW_G, X0, "L_g_sig")
    global_arrive(a, C2, X0, "L_g_sig")
    a.label("L_g_sig")
    st.stamp(7)
    for o in OPT:
        if o.startswith("hold"):
            lds_wait(a, "L_g_hold", SW, int(o[4:]), X0, S_SP)
    st.stamp(8)
    a(f"v_mov_b32 v{X0}, {C2}")

    a.label("L_gemm")

    def wdma(slot, i):
        x = (f"s_add_u32 m0, s{S_WL}, {slot * 4096 + i * 1024}\ns_add_u32 s{S_T1}, s{S_WSRC}, {i * 16384}\n"
             f"buffer_load_dwordx4 v{V_UA}, {sr(S_UW)}, s{S_T1} offen lds")
        if i == 3:
            x += f"\ns_add_u32 s{S_WSRC}, s{S_WSRC}, {128 * 2048}"
        return x

    def wreads(slot):
        return [f"ds_read_b64_tr_b16 {vr(BUF[slot] + 32 + q * 4 + t * 2, 2)}, v{V_UR + q} offset:{slot * 4096 + t * 2048}"
                for q in range(4) for t in range(2)]

    for slot in range(2):
        for i in range(4):
            a(wdma(slot, i))
    for i in range(0, 128, 2):
        a(f"v_mov_b64 {vr(i, 2)}, 0")
    a("s_waitcnt vmcnt(4)")
    for x in wreads(0):
        a(x)
    a("s_waitcnt lgkmcnt(0)")
    for i in range(4):
        a(wdma(0, i))
    ldc = f"buffer_load_dword v{X2}, v{X0}, {DBG}, 0 offen offset:128 sc1"
    a(ldc)
    a("s_waitcnt vmcnt(0)")
    spin(a, "L_gemm_c", "s_sleep 8\n" + ldc, X2, 1, S_SP)
    st.stamp(9)
    srd(a, S_KVD, S_WS, WS_USED)
    GA = sr(S_KVD)

    def aload(u, tt):
        x = (f"buffer_load_dwordx4 {vr(BUF[u] + tt * 4)}, v{V_L16 if tt < 4 else V_DA}, {GA}, s{S_ASRC} "
             f"offen offset:{(tt & 3) * 1024} sc1")
        if tt == 7:
            x += f"\ns_add_u32 s{S_ASRC}, s{S_ASRC}, 32768"
        return x

    a(f"v_and_b32 v{X0}, 15, v{L}")
    a(f"v_lshlrev_b32 v{X0}, 3, v{X0}")
    for tt in range(4, 8):
        a(f"buffer_load_dword v{V_G + tt}, v{X0}, {WS}, s{S_GOFF} offen offset:{tt * 128} sc1")
    for tt in range(8):
        a(aload(0, tt))
    for tt in range(4):
        a(f"buffer_load_dword v{V_G + tt}, v{X0}, {WS}, s{S_GOFF} offen offset:{tt * 128} sc1")
    for tt in range(8):
        a(aload(1, tt))
    a(".p2align 6")
    a.label("L_gemm_loop")
    a(f"s_cmp_eq_u32 s{S_STEPS}, 1")
    a(f"s_cselect_b32 s{S_KVD + 2}, 0, s{S_KVD + 2}")
    for u in range(2):
        a("s_waitcnt vmcnt(12) lgkmcnt(0)")
        rd = wreads(u ^ 1)
        for tt in range(8):
            if tt == 3:
                a("s_waitcnt lgkmcnt(0)")
            for nt in range(4):
                d = vr((tt * 4 + nt) * 4)
                a(f"v_mfma_f32_16x16x32_bf16 {d}, {vr(BUF[u] + 32 + nt * 4)}, {vr(BUF[u] + tt * 4)}, {d}")
                if tt < 2:
                    a(rd[tt * 4 + nt])
                if 3 <= tt < 7 and nt == 1:
                    a(wdma(u ^ 1, tt - 3))
            a(aload(u, tt))
    a(f"s_sub_u32 s{S_STEPS}, s{S_STEPS}, 1")
    a(f"s_cmp_lg_u32 s{S_STEPS}, 0")
    a("s_cbranch_scc1 L_gemm_loop")
    a("s_waitcnt vmcnt(0) lgkmcnt(0)")
    st.stamp(10)
    for tt in range(8):
        for i in range(16):
            a(f"v_mul_f32 v{tt * 16 + i}, v{tt * 16 + i}, v{V_G + tt}")
    a(f"s_add_u32 s{S_T0}, s{S_KQ}, 2")
    a(f"s_lshl_b32 s{S_T0}, s{S_T0}, 15")
    a(f"s_cmp_eq_u32 s{S_KQ}, 3")
    a(f"s_cselect_b32 s{S_T0}, 0, s{S_T0}")
    a(f"v_add_u32 v{X3}, s{S_T0}, v{V_L16}")
    a(f"s_lshl_b32 s{S_T0}, s{S_KQ}, 13")
    a(f"v_add_u32 v{X4}, s{S_T0}, v{V_L16}")
    a(f"v_add_u32 v{X5}, {PART[0]}, v{X4}")
    a(f"v_add_u32 v{X2}, {PART[2]}, v{X4}")

    def write_partial():
        for i in range(32):
            a(f"ds_write_b128 v{X3}, {vr(4 * i)} offset:{i * 1024}")

    def gather(dst_acc, first):
        src = [(X5, 0), (X5, 32768), (X2, 0), (X4, 0)]
        for p in range(4):
            for i in range(8):
                a(f"ds_read_b128 {vr(32 * p + 4 * i)}, v{src[p][0]} offset:{src[p][1] + i * 1024}")
            if p in (1, 3):
                a("s_waitcnt lgkmcnt(0)")
                for i in range(0, 32, 2):
                    a(f"v_pk_add_f32 {vr(32 * p + i, 2)}, {vr(32 * p + i, 2)}, {vr(32 * (p - 1) + i, 2)}")
        for i in range(0, 32, 2):
            if first:
                a(f"v_pk_add_f32 {vr(dst_acc + i, 2)}, {vr(32 + i, 2)}, {vr(96 + i, 2)}")
            else:
                a(f"v_pk_add_f32 {vr(32 + i, 2)}, {vr(32 + i, 2)}, {vr(96 + i, 2)}")
                a(f"v_pk_add_f32 {vr(dst_acc + i, 2)}, {vr(dst_acc + i, 2)}, {vr(32 + i, 2)}")

    a(f"s_cmp_lt_u32 s{S_WAVE}, 4")
    a("s_cbranch_scc0 L_g_red")
    a("s_barrier")
    write_partial()
    a("s_waitcnt lgkmcnt(0)")
    a("s_barrier")
    st.stamp(11)
    st.finish(100)
    a("s_endpgm")

    a.label("L_g_red")
    SUM = 128
    lds_wait(a, "L_g_wa", SW_A, 4, X0, S_SP)

    def slice_addr(dst, src, j):
        a(f"s_cmp_gt_u32 {j}, {src}")
        a(f"s_cselect_b32 s{S_T1}, 1, 0")
        a(f"s_sub_u32 s{S_T1}, {j}, s{S_T1}")
        a(f"s_lshl_b32 s{S_T2}, {src}, 1")
        a(f"s_add_u32 s{S_T2}, s{S_T2}, s{S_T1}")
        a(f"s_add_u32 s{S_T2}, s{S_T2}, 11")
        a(f"s_cmp_eq_u32 s{S_T1}, 0")
        a(f"s_cselect_b32 s{S_T2}, {src}, s{S_T2}")
        a(f"s_lshl_b32 s{S_T2}, s{S_T2}, 13")
        a(f"v_add_u32 v{dst}, s{S_T2}, v{V_L16}")

    for j in range(4):
        slice_addr(X0, f"s{S_KQ}", j)
        a(f"s_cmp_eq_u32 s{S_KQ}, {j}")
        a(f"s_cbranch_scc1 L_g_own{j}")
        for i in range(8):
            a(f"ds_write_b128 v{X0}, {vr(32 * j + 4 * i)} offset:{i * 1024}")
        a(f"s_branch L_g_nxt{j}")
        a.label(f"L_g_own{j}")
        for i in range(0, 32, 2):
            a(f"v_mov_b64 {vr(SUM + i, 2)}, {vr(32 * j + i, 2)}")
        a.label(f"L_g_nxt{j}")
    a("s_waitcnt lgkmcnt(0)")
    lds_arrive(a, SW_R, X0, "L_g_arr")
    a.label("L_g_arr")
    lds_wait(a, "L_g_wr", SW_R, 4, X0, S_SP)
    for p in range(4):
        a(f"s_cmp_eq_u32 s{S_KQ}, {p}")
        a(f"s_cbranch_scc1 L_g_skip{p}")
        slice_addr(X0, p, f"s{S_KQ}")
        for i in range(8):
            a(f"ds_read_b128 {vr(4 * i)}, v{X0} offset:{i * 1024}")
        a("s_waitcnt lgkmcnt(0)")
        for i in range(0, 32, 2):
            a(f"v_pk_add_f32 {vr(SUM + i, 2)}, {vr(SUM + i, 2)}, {vr(i, 2)}")
        a.label(f"L_g_skip{p}")
    a("s_barrier")
    a(f"v_and_b32 v{X0}, 15, v{L}")
    a(f"s_lshl_b32 s{S_T0}, s{S_MB}, 7")
    a(f"s_lshl_b32 s{S_T1}, s{S_KQ}, 5")
    a(f"s_add_u32 s{S_T0}, s{S_T0}, s{S_T1}")
    a(f"v_add_u32 v{X0}, s{S_T0}, v{X0}")
    a(f"v_lshlrev_b32 v{X0}, 11, v{X0}")
    a(f"v_lshlrev_b32 v{X1}, 1, v{L}")
    a(f"v_and_b32 v{X1}, 32, v{X1}")
    a(f"v_add_u32 v{X0}, v{X0}, v{X1}")
    a(f"v_lshrrev_b32 v{X1}, 1, v{L}")
    a(f"v_and_b32 v{X1}, 16, v{X1}")
    a(f"v_add_u32 v{X0}, v{X0}, v{X1}")
    a(f"s_lshl_b32 s{S_T0}, s{S_NB}, 7")
    a(f"s_add_u32 s{S_T1}, s{S_T0}, {16 * 2048}")
    a("s_barrier")
    gather(SUM, False)
    P = 160
    for i in range(16):
        a(f"v_cvt_pk_bf16_f32 v{P + i}, v{SUM + 2*i}, v{SUM + 2*i + 1}")
    a("s_nop 1")
    for m in range(4):
        a(f"v_permlane16_swap_b32 v{P + 4*m}, v{P + 4*m + 2}")
        a(f"v_permlane16_swap_b32 v{P + 4*m + 1}, v{P + 4*m + 3}")
    for m in range(4):
        a(f"buffer_store_dwordx4 {vr(P + 4*m)}, v{X0}, {sr(S_OUT)}, s{S_T0 if m < 2 else S_T1} offen offset:{64 * (m & 1)}")
    if STAMPS:
        a("s_waitcnt vmcnt(0)")
    st.stamp(11)
    st.finish(100)


def main():
    global STAMPS
    if "--stamps" in sys.argv:
        STAMPS = True
        sys.argv.remove("--stamps")
    for x in list(sys.argv):
        if x.startswith("--opt="):
            OPT.update(x[6:].split(","))
            sys.argv.remove(x)
    global FLAG_TP_O
    if 'fo1' in OPT:
        FLAG_TP_O = 1
    if 'fom' in OPT:
        FLAG_TP_O = -1
    out = sys.argv[1] if len(sys.argv) > 1 else f"cdna_kernels/{NAME}.s"
    ref = open(f"cdna_kernels/{NAME}.s.ref").read().split("\n")
    head = [ln for ln in ref if ln.startswith(";") and "@launch" not in ln and "Override launch" not in ln
            and "grid=ceil" not in ln]
    a = Asm()
    a(f".globl {KNAME}")
    a(".p2align 8")
    a(f".type {KNAME},@function")
    a.label(KNAME)
    a("s_cmp_ge_u32 s2, 256")
    a("s_cbranch_scc1 L_end")
    st = Stamper(a)
    st.start()
    phase1(a, st)
    phase23(a, st)
    a.label("L_end")
    a("s_endpgm")
    a.label("L_code_end")
    txt = "\n".join(head) + "\n"
    if "list" in OPT:
        txt += f"; @launch kernel={KNAME} grid=(256,1,1) block=(512,1,1) lds=163840\n"
    else:
        txt += "; @launch grid=(256,1,1) block=(512,1,1) lds=163840\n"
    txt += '.amdgcn_target "amdgcn-amd-amdhsa--gfx950"\n.text\n'
    txt += a.text()
    txt += f""".section .rodata,"a"
.p2align 6
.amdhsa_kernel {KNAME}
  .amdhsa_next_free_vgpr 256
  .amdhsa_next_free_sgpr 102
  .amdhsa_accum_offset 256
  .amdhsa_group_segment_fixed_size 0
  .amdhsa_kernarg_size 88
  .amdhsa_user_sgpr_count 2
  .amdhsa_user_sgpr_kernarg_segment_ptr 1
  .amdhsa_system_sgpr_workgroup_id_x 1
.end_amdhsa_kernel
"""
    open(out, "w").write(txt)


if __name__ == "__main__":
    main()
```

```python
import struct
import sys

NAME = "gated_mix__softmax_full_mha__swiglu_ffn__prompt"
KNAME = NAME + "_kernel"

QF_BASE = 0
KV_BASE = 4 << 20
AF_BASE = 12 << 20
AF_KB = 144
AF_O = 112
G_BASE = AF_BASE + 128 * AF_KB * 1024
FLAG_BASE = G_BASE + 2048 * 8
WS_USED = FLAG_BASE + 256 * 128
STAMP_BASE = 64 << 20
STAMPS = False
OPT = set()
LOG2E = 1.4426950408889634
QSCALE = (32 ** -0.5) * LOG2E
C0, C2, C3 = 0, 4, 8
SPIN_LIMIT = 1 << 22


def f32bits(x):
    return struct.unpack("<I", struct.pack("<f", x))[0]


class Asm:
    def __init__(self):
        self.lines = []

    def __call__(self, s):
        for ln in s.split("\n"):
            ln = ln.strip()
            if not ln:
                continue
            if ln.endswith(":") or ln.startswith("."):
                self.lines.append(ln)
            else:
                self.lines.append("    " + ln)

    def label(self, name):
        self.lines.append(name + ":")

    def text(self):
        return "\n".join(self.lines) + "\n"


def vr(base, n=4):
    return f"v[{base}:{base + n - 1}]"


def sr(base, n=4):
    return f"s[{base}:{base + n - 1}]"


def srd(a, dst, lo, nbytes):
    a(f"s_mov_b32 s{dst}, s{lo}")
    a(f"s_mov_b32 s{dst + 1}, s{lo + 1}")
    a(f"s_mov_b32 s{dst + 2}, {nbytes}")
    a(f"s_mov_b32 s{dst + 3}, 0x00020000")


class Stamper:
    def __init__(self, a):
        self.a = a

    def start(self):
        self.stamp(-1)

    def stamp(self, idx):
        if not STAMPS:
            return
        self.a("s_memrealtime s[80:81]")
        self.a("s_memtime s[82:83]")
        self.a("s_waitcnt lgkmcnt(0)")
        self.a(f"v_writelane_b32 v255, s80, {2 * (idx + 1)}")
        self.a(f"v_writelane_b32 v255, s82, {2 * (idx + 1) + 1}")

    def loop_stamp(self, base, scnt, mul, add):
        if not STAMPS:
            return
        self.a("s_memtime s[82:83]")
        self.a(f"s_mul_i32 s80, s{scnt}, {mul}")
        self.a(f"s_add_u32 m0, s80, {base + add}")
        self.a("s_waitcnt lgkmcnt(0)")
        self.a("v_writelane_b32 v255, s82, m0")

    def finish(self, vt):
        if not STAMPS:
            return
        a = self.a
        a("s_mov_b64 exec, -1")
        a("s_lshl_b32 s80, s2, 3")
        a(f"s_add_u32 s80, s80, s{S_WAVE}")
        a("s_lshl_b32 s80, s80, 8")
        a(f"s_add_u32 s80, s80, {STAMP_BASE}")
        a(f"s_mov_b32 s{S_WS + 2}, 0x10000000")
        a(f"v_lshlrev_b32 v{vt}, 2, v{V_LANE}")
        a(f"buffer_store_dword v255, v{vt}, {sr(S_WS)}, s80 offen")


S_WAVE = 3
S_WS, S_DBG = 4, 8
V_LANE, V_L16 = 228, 229
V_C0 = 251
V_H = 192
S_H0, S_H1 = 78, 79
FLAG_TP_E, FLAG_TP_O = -1, 1
NEARLY = 9
WS = sr(S_WS)
DBG = sr(S_DBG)


def signal(a, off, vt, label):
    a(f"s_cmp_lg_u32 s{S_WAVE}, 0")
    a(f"s_cbranch_scc1 {label}")
    a(f"v_mov_b32 v{vt}, 1")
    a(f"v_mov_b32 v{vt + 1}, {off}")
    a("s_mov_b64 exec, 1")
    a(f"buffer_atomic_add v{vt}, v{vt + 1}, {DBG}, 0 offen sc1")
    a("s_mov_b64 exec, -1")
    a.label(label)


def spin(a, label, load, vval, expect, scnt):
    a(f"s_mov_b32 s{scnt}, 0")
    a.label(label)
    a(f"v_cmp_{'ne' if expect == 1 else 'gt'}_u32 vcc, {expect}, v{vval}")
    a("s_cmp_eq_u64 vcc, 0")
    a(f"s_cbranch_scc1 {label}_ok")
    a("s_sleep 1")
    a(load)
    a("s_waitcnt vmcnt(0)")
    a(f"s_add_u32 s{scnt}, s{scnt}, 1")
    a(f"s_cmp_lt_u32 s{scnt}, {SPIN_LIMIT}")
    a(f"s_cbranch_scc1 {label}")
    a.label(f"{label}_ok")


def phase1(a, st):
    XBUF = [0, 32768]
    WBASE = 65536
    WSTRIDE = 40960
    S_X, S_QKV, S_G, S_U, S_GW, S_PF = 12, 16, 20, 24, 28, 32
    S_W1024, S_ROWBLK, S_XCD, S_COLSUB, S_KX = 36, 37, 38, 39, 40
    S_WO = 41
    S_CNT = 46
    S_T0, S_T1, S_T2, S_T3 = 47, 48, 49, 50
    S_WN = 51
    S_NL2E, S_ONE, S_QS = 52, 54, 56
    S_FU, S_QKU, S_VU, S_TOK, S_E = 58, 59, 60, 61, 62
    S_PFO, S_PFS = 63, 100
    XF = [160, 176]
    WF = 192
    V_XA = 212
    V_WA, V_WB = 214, 218
    V_DX = 220
    V_DW6, V_DW7 = 224, 225
    V_PF, V_PFD = 226, 227
    V_ST = 230
    V_T = 232
    L = V_LANE
    T0, T1, T2, T3, T4 = V_T, V_T + 1, V_T + 2, V_T + 3, V_T + 4

    def acc(nt, tt):
        return (nt * 4 + tt) * 4

    for dst, off in ((S_X, 0), (S_QKV, 8), (S_G, 32), (S_U, 40), (S_WS, 80), (S_DBG, 72), (64, 56)):
        a(f"s_load_dwordx2 {sr(dst, 2)}, s[0:1], {off}")
    a(f"v_and_b32 v{L}, 63, v0")
    a(f"v_lshrrev_b32 v{T0}, 6, v0")
    a(f"v_lshlrev_b32 v{V_L16}, 4, v{L}")
    a(f"v_readfirstlane_b32 s{S_WAVE}, v{T0}")
    a("s_getpc_b64 s[28:29]")
    a.label("L_p1_pc")
    a(f"s_sub_u32 s28, s28, L_p1_pc-{KNAME}")
    a("s_subb_u32 s29, s29, 0")
    a(f"s_cmp_eq_u32 s{S_WAVE}, 7")
    a(f"s_cselect_b32 s30, L_code_end-{KNAME}, 0")
    a("s_mov_b32 s31, 0x00020000")
    a(f"s_lshr_b32 s{S_COLSUB}, s2, 3")
    a(f"s_and_b32 s{S_COLSUB}, s{S_COLSUB}, 3")
    a(f"s_lshl_b32 s{S_T0}, s{S_COLSUB}, 13")
    a(f"v_lshlrev_b32 v{T1}, 7, v{L}")
    a(f"buffer_load_dword v{V_PFD}, v{T1}, s[28:31], s{S_T0} offen")
    a(f"s_and_b32 s{S_XCD}, s2, 7")
    a(f"s_lshr_b32 s{S_ROWBLK}, s2, 5")
    a(f"s_lshl_b32 s{S_W1024}, s{S_WAVE}, 10")
    a(f"s_and_b32 s{S_WN}, s{S_WAVE}, 1")
    a(f"s_lshl_b32 s{S_T0}, s{S_WN}, 2")
    a(f"v_lshrrev_b32 v{T0}, 4, v{L}")
    a(f"v_add_u32 v{T0}, s{S_T0}, v{T0}")
    a(f"v_and_b32 v{T1}, 7, v{L}")
    a(f"v_xor_b32 v{T0}, v{T0}, v{T1}")
    a(f"v_lshlrev_b32 v{T0}, 4, v{T0}")
    a(f"v_lshrrev_b32 v{T2}, 3, v{L}")
    a(f"s_lshl_b32 s{S_T0}, s{S_ROWBLK}, 8")
    a(f"s_lshl_b32 s{S_T1}, s{S_WAVE}, 3")
    a(f"s_add_u32 s{S_T0}, s{S_T0}, s{S_T1}")
    a(f"v_add_u32 v{T3}, s{S_T0}, v{T2}")
    a(f"v_lshlrev_b32 v{T3}, 11, v{T3}")
    a(f"v_add_u32 v{V_DX}, v{T3}, v{T0}")
    for j in range(1, 4):
        a(f"v_add_u32 v{V_DX + j}, {j * 64 * 2048}, v{V_DX}")
    a(f"v_and_b32 v{T0}, 2, v{T2}")
    a(f"s_lshl_b32 s{S_T0}, s{S_WN}, 2")
    a(f"v_or_b32 v{T0}, s{S_T0}, v{T0}")
    a(f"v_xor_b32 v{T0}, v{T0}, v{T1}")
    a(f"v_lshlrev_b32 v{T0}, 4, v{T0}")
    a(f"v_add_u32 v{T3}, s{S_T1}, v{T2}")
    a(f"v_mul_u32_u24 v{V_DW6}, 6144, v{T3}")
    a(f"v_add_u32 v{V_DW6}, v{V_DW6}, v{T0}")
    a(f"v_mul_u32_u24 v{V_DW7}, 7168, v{T3}")
    a(f"v_add_u32 v{V_DW7}, v{V_DW7}, v{T0}")
    a(f"s_mov_b32 s{S_KX}, 0")
    a(f"s_mul_i32 s{S_E}, s{S_XCD}, 3")
    a(f"s_add_u32 s{S_E}, s{S_E}, s{S_COLSUB}")
    a(f"s_lshl_b32 s{S_T0}, s{S_E}, 8")
    a(f"s_lshl_b32 s{S_T1}, s{S_XCD}, 7")
    a(f"s_add_u32 s{S_T2}, s{S_T1}, 6144")
    a(f"s_cmp_eq_u32 s{S_COLSUB}, 3")
    a(f"s_cselect_b32 s{S_WO}, s{S_T2}, s{S_T0}")
    a(f"s_mov_b32 s{S_WO+1}, s{S_WO}")
    a(f"s_add_u32 s{S_T0}, s{S_T0}, 128")
    a(f"s_lshl_b32 s{S_QKU}, s{S_XCD}, 1")
    a(f"s_and_b32 s{S_T2}, s{S_COLSUB}, 1")
    a(f"s_add_u32 s{S_QKU}, s{S_QKU}, s{S_T2}")
    a(f"s_lshr_b32 s{S_T2}, s{S_COLSUB}, 1")
    a(f"s_lshl_b32 s{S_T2}, s{S_T2}, 4")
    a(f"s_add_u32 s{S_QKU}, s{S_QKU}, s{S_T2}")
    a(f"s_lshl_b32 s{S_T2}, s{S_QKU}, 7")
    a(f"s_lshl_b32 s{S_T1}, s{S_XCD}, 8")
    a(f"s_add_u32 s{S_T1}, s{S_T1}, 4096")
    a(f"s_add_u32 s{S_T3}, s{S_T1}, 128")
    a(f"s_cmp_eq_u32 s{S_COLSUB}, 3")
    a(f"s_cselect_b32 s{S_WO+2}, s{S_T2}, s{S_T0}")
    a(f"s_cselect_b32 s{S_WO+3}, s{S_T1}, s{S_T0}")
    a(f"s_cselect_b32 s{S_WO+4}, s{S_T3}, s{S_T2}")
    a(f"s_lshl_b32 s{S_QKU}, s{S_QKU}, 1")
    a(f"s_add_u32 s{S_QKU}, s{S_QKU}, s{S_WN}")
    a(f"s_and_b32 s{S_T0}, s{S_WAVE}, 1")
    a(f"s_lshl_b32 s{S_T0}, s{S_T0}, 3")
    a(f"s_add_u32 s{S_T0}, s{S_T0}, 32")
    a(f"s_cmp_eq_u32 s{S_COLSUB}, 3")
    a(f"s_cselect_b32 s{S_T1}, 2, 4")
    a(f"s_cmp_ge_u32 s{S_WAVE}, s{S_T1}")
    a(f"s_cselect_b32 s{S_T0}, 8, s{S_T0}")
    a(f"s_mov_b32 s{S_T3}, 7168")
    a(f"s_cselect_b32 s{S_T3}, 6144, s{S_T3}")
    a(f"s_cmp_ge_u32 s{S_WAVE}, 5")
    a(f"s_cselect_b32 s{S_T0}, 0, s{S_T0}")
    a(f"s_cselect_b32 s{S_T3}, 2048, s{S_T3}")
    a(f"s_cmp_eq_u32 s{S_WAVE}, 6")
    a(f"s_cselect_b32 s{S_T0}, 48, s{S_T0}")
    a(f"s_cmp_eq_u32 s{S_WAVE}, 7")
    a(f"s_cselect_b32 s{S_T0}, 16, s{S_T0}")
    a(f"s_load_dwordx2 {sr(S_PF, 2)}, s[0:1], s{S_T0}")
    a(f"s_lshl_b32 s{S_PF+2}, s{S_T3}, 10")
    a(f"s_lshl_b32 s{S_PFS}, s{S_T3}, 6")
    a(f"s_mov_b32 s{S_PFO}, 0")
    for p_ in range(5):
        a(f"s_cmp_eq_u32 s{S_WAVE}, {p_}")
        a(f"s_cselect_b32 s{S_PFO}, s{S_WO+p_}, s{S_PFO}")
    a(f"s_cmp_eq_u32 s{S_WAVE}, 5")
    a(f"s_cselect_b32 s{S_PF+2}, {2048 * 2048}, s{S_PF+2}")
    a(f"s_cselect_b32 s{S_PFS}, 128, s{S_PFS}")
    a(f"s_cmp_gt_u32 s{S_WAVE}, 5")
    a(f"s_cselect_b32 s{S_PF+2}, 0, s{S_PF+2}")
    a(f"s_mov_b32 s{S_PF+3}, 0x00020000")
    a(f"s_lshl_b32 s{S_T0}, s{S_ROWBLK}, 3")
    a(f"s_lshl_b32 s{S_T1}, s{S_ROWBLK}, 8")
    a(f"s_lshl_b32 s{S_T2}, s{S_COLSUB}, 6")
    a(f"s_add_u32 s{S_T1}, s{S_T1}, s{S_T2}")
    a(f"s_cmp_lt_u32 s{S_WAVE}, 5")
    a(f"s_cselect_b32 s{S_T0}, s{S_T0}, s{S_T1}")
    a(f"s_cselect_b32 s{S_T1}, 7, 63")
    a(f"v_and_b32 v{V_PF}, s{S_T1}, v{L}")
    a(f"v_add_u32 v{V_PF}, s{S_T0}, v{V_PF}")
    a(f"v_mul_lo_u32 v{V_PF}, v{V_PF}, s{S_T3}")
    for dst, nb in ((S_X, 2048 * 2048), (S_QKV, 1024 * 6144), (S_G, 1024 * 7168), (S_U, 1024 * 7168),
                    (S_WS, WS_USED), (S_DBG, 256)):
        a(f"s_mov_b32 s{dst + 2}, {nb}")
        a(f"s_mov_b32 s{dst + 3}, 0x00020000")
    pf = (f"buffer_load_dword v{V_PFD}, v{V_PF}, {sr(S_PF)}, s{S_PFO} offen\n"
          f"s_add_u32 s{S_PFO}, s{S_PFO}, s{S_PFS}")
    a("s_waitcnt lgkmcnt(0)")
    a(pf)
    a(pf)
    a(f"s_cmp_eq_u32 s{S_COLSUB}, 3")
    a("s_cbranch_scc1 L_p1_O")

    for variant in ("E", "O"):
        a.label(f"L_p1_{variant}")
        if variant == "E":
            blocks = [S_G, S_U, S_G, S_U, S_QKV]
            tiles = [(V_WB + 0, 0, 0), (V_WB + 1, 0, 0),
                     (V_WA + 0, 0, 0), (V_WA + 1, 0, 0), (V_WA + 0, 8192, 0), (V_WA + 1, 8192, 0),
                     (V_WA + 2, 0, 0), (V_WA + 3, 0, 0), (V_WA + 2, 8192, 0), (V_WA + 3, 8192, 0)]
            hunits = [(2, 4), (6, 8)]
            qk_t, v_t = 0, None
            last_order = [(0, 0), (0, 1), (0, 2), (0, 3), (1, 0), (1, 1)] + [(0, n) for n in range(4, 10)] + \
                         [(1, n) for n in range(2, 10)]
        else:
            blocks = [S_G, S_U, S_QKV, S_QKV, S_QKV]
            tiles = [(V_WB + 0, 16384, 0), (V_WB + 1, 16384, 0),
                     (V_WA + 0, 0, 1), (V_WA + 1, 0, 1), (V_WA + 2, 0, 1), (V_WA + 3, 0, 1),
                     (V_WB + 0, 0, 0), (V_WB + 1, 0, 0), (V_WB + 0, 8192, 0), (V_WB + 1, 8192, 0)]
            hunits = [(6, 8)]
            qk_t, v_t = 0, 2
            last_order = [(0, 0), (0, 1), (0, 2), (0, 3), (1, 0), (1, 1), (1, 2), (1, 3), (0, 4), (1, 4),
                          (0, 5), (1, 5)] + [(k, n) for n in range(6, 10) for k in range(2)]

        def dma_list(buf):
            out = []
            for j in range(4):
                out.append(f"s_add_u32 m0, s{S_W1024}, {XBUF[buf] + j * 8192}\ns_nop 0\n"
                           f"buffer_load_dwordx4 v{V_DX + j}, {sr(S_X)}, s{S_KX} offen lds")
            for p in range(5):
                b = blocks[p]
                vd = V_DW6 if b == S_QKV else V_DW7
                pitch = 6144 if b == S_QKV else 7168
                out.append(f"s_add_u32 m0, s{S_W1024}, {WBASE + buf * WSTRIDE + p * 8192}\ns_nop 0\n"
                           f"buffer_load_dwordx4 v{vd}, {sr(b)}, s{S_WO + p} offen lds\n"
                           f"s_add_u32 s{S_WO + p}, s{S_WO + p}, {64 * pitch}")
            out[3] += f"\ns_add_u32 s{S_KX}, s{S_KX}, 128"
            return out

        for d in dma_list(0):
            a(d)
        a(pf)
        a(pf)
        d1 = dma_list(1)
        srd(a, S_GW, 64, 2048)
        if 'swarm' not in OPT and 'nowarm' not in OPT:
            a(f"s_cmp_eq_u32 s{S_WAVE}, 6")
            a(f"s_cselect_b32 s{S_T0}, 14, 4")
            a(f"s_lshl_b32 s{S_T0}, s{S_T0}, 11")
            a(f"s_mul_i32 s{S_T1}, s{S_T0}, s2")
            a(f"s_add_u32 s{S_T0}, s{S_T0}, s{S_T1}")
            a(f"v_and_b32 v{T0}, 15, v{L}")
            a(f"v_lshlrev_b32 v{T0}, 7, v{T0}")
            a(f"s_cmp_gt_u32 s{S_WAVE}, 5")
            a(f"s_cselect_b32 s{S_PF+2}, s{S_T0}, s{S_PF+2}")
            a(f"s_cselect_b32 s{S_PFO}, s{S_T1}, s{S_PFO}")
            a(f"s_cselect_b32 s{S_PFS}, 2048, s{S_PFS}")
            a("s_cselect_b64 vcc, -1, 0")
            a("s_nop 1")
            a(f"v_cndmask_b32 v{V_PF}, v{V_PF}, v{T0}, vcc")
        if 'swarm' in OPT:
            a(f"s_cmp_gt_u32 s{S_WAVE}, 5")
            a(f"s_cselect_b32 s{S_T0}, 16, 48")
            a(f"s_load_dwordx2 s[68:69], s[0:1], s{S_T0}")
            a(f"s_cselect_b32 s{S_T0}, 4, 14")
            a(f"s_cselect_b32 s{S_T1}, 6, 0")
            a(f"s_cselect_b32 s{S_T2}, 32, 38")
            a(f"s_lshl_b32 s{S_T0}, s{S_T0}, 11")
            a(f"s_mul_i32 s72, s{S_T0}, s2")
            a(f"s_add_u32 s70, s72, s{S_T0}")
            a("s_mov_b32 s71, 0x00020000")
            a(f"s_sub_u32 s{S_T1}, s{S_WAVE}, s{S_T1}")
            a(f"s_mul_i32 s{S_T1}, s{S_T1}, s{S_T2}")
            a(f"s_lshl_b32 s{S_T1}, s{S_T1}, 7")
            a(f"s_add_u32 s72, s72, s{S_T1}")
            a("s_waitcnt lgkmcnt(0)")
        a("s_lshr_b32 s65, s2, 6")
        a("s_add_u32 s65, s65, 1")
        a(f"s_lshr_b32 s{S_T0}, s{S_WAVE}, 1")
        a(f"s_lshl_b32 s{S_T0}, s{S_T0}, 13")
        a(f"v_and_b32 v{T1}, 15, v{L}")
        a(f"v_lshlrev_b32 v{T1}, 7, v{T1}")
        a(f"v_add_u32 v{T3}, s{S_T0}, v{T1}")
        a(f"v_lshrrev_b32 v{T1}, 1, v{L}")
        a(f"v_and_b32 v{T1}, 7, v{T1}")
        a(f"v_lshrrev_b32 v{T4}, 4, v{L}")
        a(f"v_xor_b32 v{T1}, v{T1}, v{T4}")
        a(f"v_lshlrev_b32 v{T1}, 4, v{T1}")
        a(f"v_add_u32 v{V_XA}, v{T3}, v{T1}")
        a(f"v_xor_b32 v{V_XA+1}, 64, v{V_XA}")
        a(f"v_lshlrev_b32 v{T4}, 10, v{T4}")
        a(f"v_lshrrev_b32 v{T1}, 2, v{L}")
        a(f"v_and_b32 v{T1}, 3, v{T1}")
        a(f"v_lshlrev_b32 v{T3}, 7, v{T1}")
        a(f"v_add_u32 v{T4}, v{T4}, v{T3}")
        a(f"v_lshlrev_b32 v{T1}, 2, v{L}")
        a(f"v_and_b32 v{T1}, 0x60, v{T1}")
        a(f"v_add_u32 v{T4}, v{T4}, v{T1}")
        a(f"v_and_b32 v{T1}, 3, v{L}")
        a(f"v_lshlrev_b32 v{T1}, 3, v{T1}")
        a(f"v_add_u32 v{T4}, v{T4}, v{T1}")

        if variant == "E":
            a(f"s_lshl_b32 s{S_T0}, s{S_WN}, 14")
            a(f"s_add_u32 s{S_T0}, s{S_T0}, {WBASE}")
            a(f"s_mov_b32 s{S_T1}, {WBASE + 4 * 8192}")
            a(f"s_lshl_b32 s{S_FU}, s{S_E}, 2")
            a(f"s_lshl_b32 s{S_T2}, s{S_WN}, 1")
            a(f"s_add_u32 s{S_FU}, s{S_FU}, s{S_T2}")
        else:
            a(f"s_lshl_b32 s{S_T0}, s{S_WN}, 13")
            a(f"s_add_u32 s{S_T0}, s{S_T0}, {WBASE + 3 * 8192}")
            a(f"s_mov_b32 s{S_T1}, {WBASE}")
            a(f"s_lshl_b32 s{S_FU}, s{S_XCD}, 1")
            a(f"s_add_u32 s{S_FU}, s{S_FU}, 96")
            a(f"s_add_u32 s{S_FU}, s{S_FU}, s{S_WN}")
            a(f"s_lshl_b32 s{S_VU}, s{S_XCD}, 2")
            a(f"s_lshl_b32 s{S_T2}, s{S_WN}, 1")
            a(f"s_add_u32 s{S_VU}, s{S_VU}, s{S_T2}")
        for q in range(4):
            a(f"v_xor_b32 v{V_WA + q}, {q << 5}, v{T4}")
            a(f"v_add_u32 v{V_WA + q}, s{S_T0}, v{V_WA + q}")
        a(f"s_lshl_b32 s{S_T2}, s{S_WN}, 6")
        a(f"v_xor_b32 v{V_WB}, s{S_T2}, v{T4}")
        a(f"v_add_u32 v{V_WB}, s{S_T1}, v{V_WB}")
        a(f"v_xor_b32 v{V_WB+1}, 32, v{V_WB}")
        a(f"v_lshrrev_b32 v{T1}, 3, v{L}")
        a(f"v_lshlrev_b32 v{T1}, 8, v{T1}")
        a(f"v_and_b32 v{T2}, 7, v{L}")
        a(f"v_lshlrev_b32 v{T2}, 4, v{T2}")
        a(f"v_add_u32 v{V_ST}, v{T1}, v{T2}")
        a(f"s_mov_b32 s{S_NL2E}, {f32bits(-LOG2E):#x}")
        a(f"s_mov_b32 s{S_NL2E+1}, {f32bits(-LOG2E):#x}")
        a(f"s_mov_b32 s{S_ONE}, 1.0")
        a(f"s_mov_b32 s{S_ONE+1}, 1.0")
        a(f"s_lshl_b32 s{S_T0}, s2, 3")
        a(f"s_add_u32 s{S_TOK}, s{S_T0}, s{S_WAVE}")
        for i in range(0, 160, 2):
            a(f"v_mov_b64 {vr(i, 2)}, 0")

        normal_order = [divmod(j, 10) for j in range(20)]

        def wread(buf, j, order=normal_order):
            ks, nt = order[j]
            va, imm, _ = tiles[nt]
            F = WF + (j % 5) * 4
            return [f"ds_read_b64_tr_b16 {vr(F + 2 * t, 2)}, v{va} offset:{buf * WSTRIDE + imm + (32 * ks + 4 * t) * 128}"
                    for t in range(2)]

        def xread(buf, ks, tt):
            return f"ds_read_b128 {vr(XF[ks] + 4 * tt)}, v{V_XA + ks} offset:{XBUF[buf] + tt * 2048}"

        def mfma(j, tt, order=normal_order):
            ks, nt = order[j]
            W = vr(WF + (j % 5) * 4)
            X = vr(XF[ks] + 4 * tt)
            A, B = (X, W) if tiles[nt][2] else (W, X)
            d = vr(acc(nt, tt))
            return f"v_mfma_f32_16x16x32_bf16 {d}, {A}, {B}, {d}"

        a(f"s_lshl_b32 s{S_T0}, s2, 7")
        a(f"s_add_u32 s{S_T0}, s{S_T0}, {FLAG_BASE}")
        a(f"v_mov_b32 v{T0}, 0")
        a(f"buffer_store_dword v{T0}, v{T0}, {WS}, s{S_T0} offen sc1")
        st.stamp(0)
        a("s_waitcnt vmcnt(3)")
        a("s_barrier")
        st.stamp(1)
        for tt in range(4):
            a(xread(0, 0, tt))
        for j in range(4):
            for r in wread(0, j):
                a(r)
        for d in d1[:2]:
            a(d)

        def stage(buf, post_barrier=None):
            for j in range(20):
                if j == 16:
                    a("s_waitcnt vmcnt(1) lgkmcnt(0)")
                    a("s_barrier")
                    st.loop_stamp(32, S_CNT, 2, buf)
                    assert not stage.pending
                    stage.pending = dma_list(buf) + [pf]
                    if 'swarm' in OPT:
                        for k_ in range(3):
                            a(f"s_buffer_load_dword s{73 + k_}, s[68:71], s72 offset:{k_ * 128}")
                        a("s_add_u32 s72, s72, 384")
                    if post_barrier:
                        post_barrier()
                elif j % 2 == 0 and j < 16:
                    a("s_waitcnt lgkmcnt(4)")
                wr = wread(buf, j + 4) if j + 4 < 20 else wread(buf ^ 1, j + 4 - 20)
                xr = []
                if 2 <= j <= 5:
                    xr = [xread(buf, 1, j - 2)]
                if j in (16, 17):
                    xr = [xread(buf ^ 1, 0, 2 * (j - 16)), xread(buf ^ 1, 0, 2 * (j - 16) + 1)]
                dm, dm2 = [], []
                if stage.pending and j not in (16, 17):
                    if 'dma2' in OPT and not xr and j < 16:
                        dm2 = [stage.pending.pop(0)]
                if stage.pending and j not in (16, 17):
                    dm = [stage.pending.pop(0)]
                slots = [wr[:1], wr[1:] + dm2, xr[:1], xr[1:] + dm]
                for tt in range(4):
                    a(mfma(j, tt))
                    for f in slots[tt]:
                        a(f)

        GX, GW_, G0, G1, GA = V_T, V_T + 8, V_T + 16, V_T + 17, V_T + 18

        def events():
            a(f"s_cmp_eq_u32 s{S_CNT}, s65")
            a(f"s_cbranch_scc0 L_p1_{variant}_e0")
            signal(a, C0, G0, f"L_p1_{variant}_e0")
            if 'tlb' in OPT:
                a(f"s_cmp_eq_u32 s{S_CNT}, 5")
                a(f"s_cbranch_scc0 L_p1_{variant}_e5")
                a(f"s_getpc_b64 s[98:99]")
                a(f"s_add_u32 s98, s98, 12")
                a(f"s_addc_u32 s99, s99, 0")
                a("s_branch L_p1_touch")
                a.label(f"L_p1_{variant}_e5")
            a(f"s_cmp_eq_u32 s{S_CNT}, 7")
            a(f"s_cbranch_scc0 L_p1_{variant}_e7")
            a(f"v_mov_b32 v{G1}, {C0}")
            a(f"buffer_load_dword v{V_C0}, v{G1}, {DBG}, 0 offen sc1")
            a(f"s_lshl_b32 s{S_T0}, s{S_TOK}, 11")
            a(f"v_lshlrev_b32 v{G0}, 5, v{L}")
            a(f"buffer_load_dwordx4 {vr(GX)}, v{G0}, {sr(S_X)}, s{S_T0} offen")
            a(f"buffer_load_dwordx4 {vr(GX+4)}, v{G0}, {sr(S_X)}, s{S_T0} offen offset:16")
            a(f"buffer_load_dwordx4 {vr(GW_)}, v{G0}, {sr(S_GW)}, 0 offen")
            a(f"buffer_load_dwordx4 {vr(GW_+4)}, v{G0}, {sr(S_GW)}, 0 offen offset:16")
            for s_ in (S_X, S_QKV, S_G, S_U, S_PF):
                a(f"s_mov_b32 s{s_ + 2}, 0")
            a.label(f"L_p1_{variant}_e7")

        if 'g1prio' in OPT:
            a(f"s_cmp_lt_u32 s{S_WAVE}, 4")
            a(f"s_cbranch_scc1 L_p1_{variant}_np")
            a("s_setprio 1")
            a.label(f"L_p1_{variant}_np")
        stage.pending = d1[2:] + [pf]
        a(f"s_mov_b32 s{S_CNT}, 0")
        a(".p2align 6")
        a.label(f"L_p1_{variant}_loop")
        saved = list(stage.pending)
        stage(0, post_barrier=events)
        a(f"s_cmp_eq_u32 s{S_CNT}, 7")
        a(f"s_cbranch_scc1 L_p1_{variant}_last")
        stage(1)
        assert stage.pending == saved
        a(f"s_add_u32 s{S_CNT}, s{S_CNT}, 1")
        a(f"s_branch L_p1_{variant}_loop")

        a.label(f"L_p1_{variant}_last")
        if 'g1prio' in OPT:
            a("s_setprio 0")
        a(f"s_lshl_b32 s{S_T0}, s{S_ROWBLK}, 3")
        a(f"s_and_b32 s{S_T1}, s{S_WAVE}, 6")
        a(f"s_add_u32 s{S_T0}, s{S_T0}, s{S_T1}")
        TB = S_T0
        S_A0, S_A1, S_A2 = S_WO, S_WO + 1, S_WO + 2
        a(f"s_cmp_lt_u32 s{S_QKU}, 32")
        a(f"s_cselect_b32 s{S_QS}, {f32bits(QSCALE):#x}, 1.0")
        a(f"s_mov_b32 s{S_QS+1}, s{S_QS}")
        a(f"s_lshl_b32 s{S_T1}, s{S_QKU}, 17")
        a(f"s_lshl_b32 s{S_T2}, s{TB}, 11")
        a(f"s_add_u32 s{S_T1}, s{S_T1}, s{S_T2}")
        a(f"s_sub_u32 s{S_T3}, s{S_QKU}, 32")
        a(f"s_lshl_b32 s{S_T3}, s{S_T3}, 18")
        a(f"s_lshl_b32 s{S_T2}, s{TB}, 12")
        a(f"s_add_u32 s{S_T3}, s{S_T3}, s{S_T2}")
        a(f"s_add_u32 s{S_T3}, s{S_T3}, {KV_BASE}")
        a(f"s_cmp_lt_u32 s{S_QKU}, 32")
        a(f"s_cselect_b32 s{S_A0}, s{S_T1}, s{S_T3}")
        a(f"s_cselect_b32 s{S_T1}, 1, 2")
        a(f"s_lshl_b32 s{S_T1}, s{S_T1}, 11")
        a(f"s_add_u32 s{S_A1}, s{S_A0}, s{S_T1}")
        if v_t is not None:
            a(f"s_lshl_b32 s{S_A2}, s{S_VU}, 18")
            a(f"s_add_u32 s{S_A2}, s{S_A2}, s{S_T2}")
            a(f"s_add_u32 s{S_A2}, s{S_A2}, {KV_BASE + 2048}")

        def pack_store(r0, r1, soff, imm, pre=()):
            return list(pre) + [
                f"v_cvt_pk_bf16_f32 v{r0}, v{r0}, v{r0+1}", f"v_cvt_pk_bf16_f32 v{r0+1}, v{r0+2}, v{r0+3}",
                f"v_cvt_pk_bf16_f32 v{r0+2}, v{r1}, v{r1+1}", f"v_cvt_pk_bf16_f32 v{r0+3}, v{r1+2}, v{r1+3}",
                f"buffer_store_dwordx4 {vr(r0)}, v{V_ST}, {WS}, s{soff} offen offset:{imm} sc1"]

        done_at = {}
        for j, (ks, nt) in enumerate(last_order):
            done_at[nt] = j
        jobs = []
        for tt in range(4):
            pre = [f"v_pk_mul_f32 {vr(acc(qk_t + t, tt) + 2*h, 2)}, {vr(acc(qk_t + t, tt) + 2*h, 2)}, {sr(S_QS, 2)}"
                   for t in range(2) for h in range(2)]
            jobs.append((done_at[qk_t + 1] + 3, pack_store(acc(qk_t, tt), acc(qk_t + 1, tt),
                                                           S_A0 if tt < 2 else S_A1, (tt & 1) * 128, pre)))
        if v_t is not None:
            for n in range(4):
                vi, e = divmod(n, 2)
                for m in range(2):
                    pre = [f"s_add_u32 s{S_T1}, s{S_A2}, {vi * 262144 + m * 4096}"]
                    jobs.append((done_at[v_t + n] + 3, pack_store(acc(v_t + n, 2 * m), acc(v_t + n, 2 * m + 1),
                                                                  S_T1, e * 128, pre)))
        fill = []
        for j in range(20):
            if j % 2 == 0:
                a(f"s_waitcnt lgkmcnt({4 if j <= 16 else 0})")
            while jobs and jobs[0][0] <= j:
                fill += jobs.pop(0)[1]
            wr = wread(1, j + 4, last_order) if j + 4 < 20 else []
            xr = [xread(1, 1, 2 * j), xread(1, 1, 2 * j + 1)] if j < 2 else []
            slots = [xr[:1] + wr[:1], xr[1:] + wr[1:], [], []]
            for tt in range(4):
                a(mfma(j, tt, last_order))
                for f in slots[tt]:
                    a(f)
                for _ in range(2):
                    if fill:
                        a(fill.pop(0))
        assert not jobs
        for f in fill:
            a(f)
        st.stamp(2)
        tmp = XF[0]
        a(f"s_lshr_b32 s{S_T1}, s{TB}, 2")
        a(f"s_mul_i32 s{S_T1}, s{S_T1}, {AF_KB}")
        a(f"s_add_u32 s{S_T1}, s{S_T1}, s{S_FU}")
        a(f"s_lshl_b32 s{S_T1}, s{S_T1}, 13")
        a(f"s_and_b32 s{S_T2}, s{TB}, 2")
        a(f"s_lshl_b32 s{S_T2}, s{S_T2}, 11")
        a(f"s_add_u32 s{S_T1}, s{S_T1}, s{S_T2}")
        a(f"s_add_u32 s{S_H0}, s{S_T1}, {AF_BASE}")
        if variant == "E":
            a(f"s_add_u32 s{S_H1}, s{S_H0}, 8192")
        else:
            a(f"s_mov_b32 s{S_H1}, 0x7f000000")

        def raise_flag():
            a("s_waitcnt vmcnt(0)")
            a("s_barrier")
            a(f"s_cmp_lg_u32 s{S_WAVE}, 0")
            a(f"s_cbranch_scc1 L_p1_{variant}_flag")
            a(f"s_lshl_b32 s{S_T2}, s2, 7")
            a(f"s_add_u32 s{S_T2}, s{S_T2}, {FLAG_BASE}")
            a(f"v_mov_b32 v{G0}, 1")
            a(f"v_mov_b32 v{G1}, 0")
            a("s_mov_b64 exec, 1")
            a(f"buffer_store_dword v{G0}, v{G1}, {WS}, s{S_T2} offen sc1")
            a("s_mov_b64 exec, -1")
            a.label(f"L_p1_{variant}_flag")
            st.stamp(3)

        ftp = FLAG_TP_E if variant == "E" else FLAG_TP_O
        if ftp < 0:
            raise_flag()
        for ui, (gt, ut) in enumerate(hunits):
            for tp in range(2):
                regs = []
                for tt in (2 * tp, 2 * tp + 1):
                    for t in range(2):
                        regs.append((acc(gt + t, tt), acc(ut + t, tt)))
                tb = tmp + tp * 16
                for i, (G, U) in enumerate(regs):
                    for h in range(2):
                        a(f"v_pk_mul_f32 {vr(tb + 4*i + 2*h, 2)}, {vr(G + 2*h, 2)}, {sr(S_NL2E, 2)}")
                for r in range(16):
                    a(f"v_exp_f32 v{tb + r}, v{tb + r}")
                for r in range(8):
                    a(f"v_pk_add_f32 {vr(tb + 2*r, 2)}, {vr(tb + 2*r, 2)}, {sr(S_ONE, 2)}")
                for r in range(16):
                    a(f"v_rcp_f32 v{tb + r}, v{tb + r}")
                for i, (G, U) in enumerate(regs):
                    for h in range(2):
                        a(f"v_pk_mul_f32 {vr(G + 2*h, 2)}, {vr(G + 2*h, 2)}, {vr(tb + 4*i + 2*h, 2)}")
                for i, (G, U) in enumerate(regs):
                    for h in range(2):
                        a(f"v_pk_mul_f32 {vr(G + 2*h, 2)}, {vr(G + 2*h, 2)}, {vr(U + 2*h, 2)}")
                for tt in (2 * tp, 2 * tp + 1):
                    P = V_H + (ui * 4 + tt) * 4
                    r0, r1 = acc(gt, tt), acc(gt + 1, tt)
                    a(f"v_cvt_pk_bf16_f32 v{P}, v{r0}, v{r0+1}")
                    a(f"v_cvt_pk_bf16_f32 v{P+1}, v{r0+2}, v{r0+3}")
                    a(f"v_cvt_pk_bf16_f32 v{P+2}, v{r1}, v{r1+1}")
                    a(f"v_cvt_pk_bf16_f32 v{P+3}, v{r1+2}, v{r1+3}")
                if ui == 0 and tp == ftp:
                    raise_flag()
        if variant == "E":
            a("s_branch L_p1_gate")

    if 'tlb' in OPT:
        a("s_branch L_p1_gate")
        a.label("L_p1_touch")
        a("s_load_dwordx2 s[68:69], s[0:1], 64")
        a(f"s_mov_b32 s70, {2048 * 2048}")
        a("s_mov_b32 s71, 0x00020000")
        a(f"v_mov_b32 v{G0}, 0")
        a(f"s_lshl_b32 s{S_T0}, s{S_ROWBLK}, 3")
        a(f"s_and_b32 s{S_T1}, s{S_WAVE}, 6")
        a(f"s_add_u32 s{S_T0}, s{S_T0}, s{S_T1}")
        a(f"s_lshl_b32 s{S_T1}, s{S_QKU}, 17")
        a(f"s_lshl_b32 s{S_T2}, s{S_T0}, 11")
        a(f"s_add_u32 s{S_T1}, s{S_T1}, s{S_T2}")
        a(f"s_sub_u32 s{S_T3}, s{S_QKU}, 32")
        a(f"s_lshl_b32 s{S_T3}, s{S_T3}, 18")
        a(f"s_lshl_b32 s{S_T2}, s{S_T0}, 12")
        a(f"s_add_u32 s{S_T3}, s{S_T3}, s{S_T2}")
        a(f"s_add_u32 s{S_T3}, s{S_T3}, {KV_BASE}")
        a(f"s_cmp_lt_u32 s{S_QKU}, 32")
        a(f"s_cselect_b32 s{S_T1}, s{S_T1}, s{S_T3}")
        a("s_mov_b64 exec, 1")
        a(f"buffer_store_dword v{G0}, v{G0}, {WS}, s{S_T1} offen sc1")
        a(f"s_lshl_b32 s{S_T1}, s{S_TOK}, 3")
        a(f"s_add_u32 s{S_T1}, s{S_T1}, {G_BASE}")
        a(f"buffer_store_dword v{G0}, v{G0}, {WS}, s{S_T1} offen sc1")
        a(f"s_lshr_b32 s{S_T1}, s{S_T0}, 2")
        a(f"s_mul_i32 s{S_T1}, s{S_T1}, {AF_KB}")
        a(f"s_add_u32 s{S_T1}, s{S_T1}, s{S_FU}")
        a(f"s_lshl_b32 s{S_T1}, s{S_T1}, 13")
        a(f"s_and_b32 s{S_T2}, s{S_T0}, 2")
        a(f"s_lshl_b32 s{S_T2}, s{S_T2}, 11")
        a(f"s_add_u32 s{S_T1}, s{S_T1}, s{S_T2}")
        a(f"s_lshl_b32 s{S_T2}, s{S_ROWBLK}, 1")
        a(f"s_lshr_b32 s{S_T3}, s{S_WAVE}, 1")
        a(f"s_add_u32 s{S_T2}, s{S_T2}, s{S_T3}")
        a(f"s_mul_i32 s{S_T2}, s{S_T2}, {AF_KB}")
        a(f"s_lshl_b32 s{S_T3}, s{S_XCD}, 2")
        a(f"s_add_u32 s{S_T3}, s{S_T3}, s{S_COLSUB}")
        a(f"s_add_u32 s{S_T2}, s{S_T2}, s{S_T3}")
        a(f"s_add_u32 s{S_T2}, s{S_T2}, {AF_O}")
        a(f"s_lshl_b32 s{S_T2}, s{S_T2}, 13")
        a(f"s_lshl_b32 s{S_T3}, s{S_WN}, 12")
        a(f"s_add_u32 s{S_T2}, s{S_T2}, s{S_T3}")
        a(f"s_cmp_lt_u32 s{S_WAVE}, 4")
        a(f"s_cselect_b32 s{S_T1}, s{S_T2}, s{S_T1}")
        a("s_cselect_b32 s70, 0, s70")
        a(f"s_add_u32 s{S_T1}, s{S_T1}, {AF_BASE}")
        a(f"buffer_store_dword v{G0}, v{G0}, {WS}, s{S_T1} offen sc1")
        a(f"s_lshr_b32 s{S_T1}, s{S_XCD}, 1")
        a(f"s_lshl_b32 s{S_T1}, s{S_T1}, 2")
        a(f"s_add_u32 s{S_T1}, s{S_T1}, s{S_COLSUB}")
        a(f"s_lshl_b32 s{S_T1}, s{S_T1}, 7")
        a(f"s_and_b32 s{S_T2}, s{S_WAVE}, 3")
        a(f"s_lshl_b32 s{S_T2}, s{S_T2}, 5")
        a(f"s_add_u32 s{S_T1}, s{S_T1}, s{S_T2}")
        a(f"s_lshl_b32 s{S_T1}, s{S_T1}, 11")
        a(f"s_and_b32 s{S_T2}, s{S_XCD}, 1")
        a(f"s_lshl_b32 s{S_T2}, s{S_T2}, 3")
        a(f"s_add_u32 s{S_T2}, s{S_T2}, s{S_ROWBLK}")
        a(f"s_lshl_b32 s{S_T2}, s{S_T2}, 7")
        a(f"s_add_u32 s{S_T1}, s{S_T1}, s{S_T2}")
        a("s_waitcnt lgkmcnt(0)")
        a(f"buffer_store_dword v{G0}, v{G0}, s[68:71], s{S_T1} offen sc1")
        a("s_mov_b64 exec, -1")
        a("s_setpc_b64 s[98:99]")
    a.label("L_p1_gate")
    a(f"v_mov_b32 v{GA}, 0")
    for i in range(8):
        a(f"v_lshlrev_b32 v{G0}, 16, v{GX+i}")
        a(f"v_lshlrev_b32 v{G1}, 16, v{GW_+i}")
        a(f"v_mul_f32 v{G0}, v{G0}, v{G1}")
        a(f"v_and_b32 v{GX+i}, 0xffff0000, v{GX+i}")
        a(f"v_and_b32 v{GW_+i}, 0xffff0000, v{GW_+i}")
        a(f"v_mul_f32 v{GX+i}, v{GX+i}, v{GW_+i}")
        a(f"v_cvt_pk_bf16_f32 v{G0}, v{G0}, v{GX+i}")
        a(f"v_lshlrev_b32 v{G1}, 16, v{G0}")
        a(f"v_and_b32 v{G0}, 0xffff0000, v{G0}")
        a(f"v_add_f32 v{GA}, v{GA}, v{G1}")
        a(f"v_add_f32 v{GA}, v{GA}, v{G0}")
    for dpp in ("row_shr:1 bound_ctrl:0", "row_shr:2 bound_ctrl:0", "row_shr:4 bound_ctrl:0", "row_shr:8 bound_ctrl:0",
                "row_bcast:15 row_mask:0xa", "row_bcast:31 row_mask:0xc"):
        a("s_nop 1")
        a(f"v_add_f32_dpp v{GA}, v{GA}, v{GA} {dpp}")
    a(f"v_cvt_pk_bf16_f32 v{G0}, v{GA}, v{GA}")
    a(f"v_and_b32 v{G0}, 0xffff0000, v{G0}")
    a(f"v_mul_f32 v{G0}, s{S_NL2E}, v{G0}")
    a(f"v_exp_f32 v{G0}, v{G0}")
    a("s_nop 0")
    a(f"v_add_f32 v{G0}, 1.0, v{G0}")
    a(f"v_rcp_f32 v{G0}, v{G0}")
    a("s_nop 0")
    a(f"v_cvt_pk_bf16_f32 v{G0}, v{G0}, v{G0}")
    a(f"v_and_b32 v{G0}, 0xffff0000, v{G0}")
    a(f"v_sub_f32 v{G1}, 1.0, v{G0}")
    a(f"v_cvt_pk_bf16_f32 v{G1}, v{G1}, v{G1}")
    a(f"v_and_b32 v{G1}, 0xffff0000, v{G1}")
    a(f"s_lshl_b32 s{S_T1}, s{S_TOK}, 3")
    a(f"s_add_u32 s{S_T1}, s{S_T1}, {G_BASE}")
    a(f"v_mov_b32 v{GA}, 0")
    a("s_mov_b32 exec_lo, 0")
    a("s_mov_b32 exec_hi, 0x80000000")
    a(f"buffer_store_dwordx2 {vr(G0, 2)}, v{GA}, {WS}, s{S_T1} offen sc1")
    a("s_mov_b64 exec, -1")
    st.stamp(4)


RB, STG, NB = 65536, 32768, 8
SW = 61440
SW_G, SW_A, SW_R = SW + 32, SW + 36, SW + 40
PART = [65536, 98304, 131072, 0]


def lds_arrive(a, word, vt, label):
    a(f"v_mov_b32 v{vt}, {word}")
    a(f"v_mov_b32 v{vt + 1}, 1")
    a("s_mov_b64 exec, 1")
    a(f"ds_add_rtn_u32 v{vt + 1}, v{vt}, v{vt + 1}")
    a("s_waitcnt lgkmcnt(0)")
    a(f"v_readfirstlane_b32 s80, v{vt + 1}")
    a("s_mov_b64 exec, -1")
    a("s_cmp_eq_u32 s80, 3")
    a(f"s_cbranch_scc0 {label}")


def global_arrive(a, off, vt, label):
    a(f"v_mov_b32 v{vt}, 1")
    a(f"v_mov_b32 v{vt + 1}, {off}")
    a("s_mov_b64 exec, 1")
    a(f"buffer_atomic_add v{vt}, v{vt + 1}, {DBG}, 0 offen sc0 sc1")
    a("s_waitcnt vmcnt(0)")
    a(f"v_readfirstlane_b32 s80, v{vt}")
    a("s_mov_b64 exec, -1")
    a("s_cmp_eq_u32 s80, 255")
    a(f"s_cbranch_scc0 {label}")
    a(f"v_mov_b32 v{vt}, 1")
    a("s_mov_b64 exec, 1")
    a(f"buffer_store_dword v{vt}, v{vt + 1}, {DBG}, 0 offen offset:128 sc1")
    a("s_mov_b64 exec, -1")


def lds_wait(a, label, word, value, vt, scnt):
    a(f"v_mov_b32 v{vt}, {word}")
    a(f"s_mov_b32 s{scnt}, 0")
    a.label(label)
    a(f"ds_read_b32 v{vt + 1}, v{vt}")
    a("s_waitcnt lgkmcnt(0)")
    a(f"v_cmp_gt_u32 vcc, {value}, v{vt + 1}")
    a("s_cmp_eq_u64 vcc, 0")
    a(f"s_cbranch_scc1 {label}_ok")
    a("s_sleep 2")
    a(f"s_add_u32 s{scnt}, s{scnt}, 1")
    a(f"s_cmp_lt_u32 s{scnt}, {SPIN_LIMIT * 8}")
    a(f"s_cbranch_scc1 {label}")
    a.label(f"{label}_ok")


def phase23(a, st):
    L = V_LANE
    S_KVD, S_OUT, S_UW = 12, 16, 20
    S_HEAD, S_QBLK, S_SRC, S_LDS, S_CNT = 24, 25, 26, 27, 28
    S_T0, S_T1, S_T2 = 29, 30, 31
    S_TOKB, S_KVB, S_BIG, S_SP = 32, 33, 34, 35
    S_MB, S_NB, S_KQ, S_ASRC, S_WSRC, S_STEPS, S_GOFF = 40, 41, 42, 43, 44, 45, 46
    S_RD = 47
    S_WL = 48
    V_DA, V_UA, V_UR = 232, 233, 234
    V_G = 240
    V_X = 248
    BUF = [128, 176]

    a(f"s_cmp_lt_u32 s{S_WAVE}, 4")
    a(f"s_cselect_b32 s{S_T0}, 16, 48")
    a(f"s_load_dwordx2 {sr(S_UW, 2)}, s[0:1], s{S_T0}")
    a(f"s_mov_b32 s{S_UW + 2}, {3584 * 2048}")
    a(f"s_cselect_b32 s{S_UW + 2}, {1024 * 2048}, s{S_UW + 2}")
    a(f"s_mov_b32 s{S_UW + 3}, 0x00020000")
    a("s_load_dwordx2 s[52:53], s[0:1], 16")
    a(f"s_load_dwordx2 {sr(S_OUT, 2)}, s[0:1], 64")
    a(f"s_and_b32 s{S_T0}, s2, 7")
    a(f"s_lshl_b32 s{S_HEAD}, s{S_T0}, 2")
    a(f"s_lshr_b32 s{S_T1}, s2, 3")
    a(f"s_and_b32 s{S_T2}, s{S_T1}, 3")
    a(f"s_add_u32 s{S_HEAD}, s{S_HEAD}, s{S_T2}")
    a(f"s_lshr_b32 s{S_QBLK}, s2, 5")
    a(f"s_lshl_b32 s36, s{S_HEAD}, 2")
    a("s_and_b32 s36, s36, 8")
    a(f"s_add_u32 s36, s36, s{S_T0}")
    a("s_add_u32 s37, s36, 16")
    a(f"s_add_u32 s38, s{S_T0}, 24")
    a(f"s_lshl_b32 s39, s{S_QBLK}, 5")
    a("s_add_u32 s36, s36, s39")
    X0, X1, X2, X3, X4, X5 = (V_X + i for i in range(6))
    a(f"s_cmp_lg_u32 s{S_WAVE}, 4")
    a("s_cbranch_scc1 L_p2_polled")
    a(f"v_and_b32 v{X0}, 7, v{L}")
    a(f"v_lshlrev_b32 v{X0}, 5, v{X0}")
    a(f"v_add_u32 v{X1}, s37, v{X0}")
    a(f"v_add_u32 v{X2}, s38, v{X0}")
    a(f"v_mov_b32 v{X4}, s36")
    a(f"v_cmp_gt_u32 vcc, 16, v{L}")
    a("s_nop 1")
    a(f"v_cndmask_b32 v{X4}, v{X4}, v{X2}, vcc")
    a(f"v_cmp_gt_u32 vcc, 8, v{L}")
    a("s_nop 1")
    a(f"v_cndmask_b32 v{X4}, v{X4}, v{X1}, vcc")
    a(f"v_lshlrev_b32 v{X4}, 7, v{X4}")
    a(f"v_add_u32 v{X4}, {FLAG_BASE}, v{X4}")
    a(f"v_mov_b32 v{X0}, {C0}")
    a(f"v_mov_b32 v{X1}, 0x100")
    ld0 = f"buffer_load_dword v{V_C0}, v{X0}, {DBG}, 0 offen sc1"
    ld1 = f"buffer_load_dword v{X2}, v{X4}, {WS}, 0 offen sc1"
    spin(a, "L_p2_c0", ld0, V_C0, f"v{X1}", S_SP)
    a(ld1)
    a("s_waitcnt vmcnt(0)")
    spin(a, "L_p2_fl", ld1, X2, 1, S_SP)
    a.label("L_p2_polled")
    a(f"s_lshr_b32 s{S_MB}, s{S_T0}, 1")
    a(f"s_lshl_b32 s{S_MB}, s{S_MB}, 2")
    a(f"s_add_u32 s{S_MB}, s{S_MB}, s{S_T2}")
    a(f"s_and_b32 s{S_NB}, s{S_T0}, 1")
    a(f"s_lshl_b32 s{S_NB}, s{S_NB}, 3")
    a(f"s_add_u32 s{S_NB}, s{S_NB}, s{S_QBLK}")
    a(f"s_and_b32 s{S_KQ}, s{S_WAVE}, 3")
    a(f"s_cmp_lt_u32 s{S_WAVE}, 4")
    a(f"s_cselect_b32 s{S_T1}, {AF_O}, 0")
    a(f"s_cselect_b32 s{S_STEPS}, 4, 14")
    a(f"s_cselect_b32 s{S_GOFF}, 0, 4")
    a(f"s_add_u32 s{S_T1}, s{S_T1}, s{S_KQ}")
    a(f"s_mul_i32 s{S_ASRC}, s{S_MB}, {AF_KB}")
    a(f"s_add_u32 s{S_ASRC}, s{S_ASRC}, s{S_T1}")
    a(f"s_lshl_b32 s{S_ASRC}, s{S_ASRC}, 13")
    a(f"s_add_u32 s{S_ASRC}, s{S_ASRC}, {AF_BASE}")
    a(f"s_lshl_b32 s{S_WSRC}, s{S_KQ}, 16")
    a(f"s_lshl_b32 s{S_T1}, s{S_NB}, 7")
    a(f"s_add_u32 s{S_WSRC}, s{S_WSRC}, s{S_T1}")
    a(f"s_lshl_b32 s{S_WL}, s{S_KQ}, 13")
    a(f"s_add_u32 s{S_T1}, s{S_WL}, {RB}")
    a(f"s_cmp_lt_u32 s{S_WAVE}, 4")
    a(f"s_cselect_b32 s{S_WL}, s{S_T1}, s{S_WL}")
    a(f"v_lshrrev_b32 v{X0}, 3, v{L}")
    a(f"v_and_b32 v{X1}, 6, v{X0}")
    a(f"v_and_b32 v{X2}, 7, v{L}")
    a(f"v_xor_b32 v{X1}, v{X1}, v{X2}")
    a(f"v_lshlrev_b32 v{X1}, 4, v{X1}")
    a(f"v_lshlrev_b32 v{X0}, 11, v{X0}")
    a(f"v_add_u32 v{V_UA}, v{X0}, v{X1}")
    a(f"v_lshrrev_b32 v{X0}, 2, v{L}")
    a(f"v_lshlrev_b32 v{X0}, 7, v{X0}")
    a(f"v_lshlrev_b32 v{X1}, 2, v{L}")
    a(f"v_and_b32 v{X1}, 0x60, v{X1}")
    a(f"v_add_u32 v{X0}, v{X0}, v{X1}")
    a(f"v_and_b32 v{X1}, 3, v{L}")
    a(f"v_lshlrev_b32 v{X1}, 3, v{X1}")
    a(f"v_add_u32 v{X0}, v{X0}, v{X1}")
    a(f"v_add_u32 v{V_UR}, s{S_WL}, v{X0}")
    for q in range(1, 4):
        a(f"v_xor_b32 v{V_UR + q}, {q << 5}, v{V_UR}")
    a(f"s_lshl_b32 s{S_T1}, s{S_MB}, 10")
    a(f"s_add_u32 s{S_GOFF}, s{S_GOFF}, s{S_T1}")
    a(f"s_add_u32 s{S_GOFF}, s{S_GOFF}, {G_BASE}")
    a(f"v_add_u32 v{V_DA}, 4096, v{V_L16}")
    a(f"s_mov_b32 s{S_OUT + 2}, {2048 * 2048}")
    a(f"s_mov_b32 s{S_OUT + 3}, 0x00020000")
    a(f"s_lshl_b32 s{S_KVB}, s{S_HEAD}, 18")
    a(f"s_add_u32 s{S_KVB}, s{S_KVB}, {KV_BASE}")
    a(f"s_lshl_b32 s{S_LDS}, s{S_KQ}, 13")
    a(f"s_add_u32 s{S_SRC}, s{S_KVB}, s{S_LDS}")
    a(f"s_add_u32 s{S_LDS}, s{S_LDS}, {RB}")
    srd(a, S_KVD, S_WS, WS_USED)
    a(f"s_add_u32 s{S_KVD + 2}, s{S_KVB}, {8 * STG}")
    a(f"s_lshl_b32 s{S_T1}, s{S_KQ}, 13")
    a(f"v_add_u32 v{X5}, s{S_T1}, v{V_L16}")
    a(f"s_cmp_lt_u32 s{S_WAVE}, 4")
    a("s_cbranch_scc0 L_g_start")

    V_K, V_V, V_ONE = 0, 8, 16
    V_OS, V_KA, V_VA, V_PG, V_PW = 20, 21, 22, 23, 24
    V_PR = 28

    def R(q):
        b = 32 + q * 88
        return dict(Q=b, S=[b + 8, b + 24], C=b + 40, O=b + 56, P=b + 72, L=b + 80, M=b + 84)
    V_T = 208

    for k in range(8):
        a(f"ds_write_b128 v{X5}, {vr(V_H + 4 * k)} offset:{k * 1024}")
    a(f"v_mov_b32 v{V_PW}, {SW}")
    for i in range(4):
        a(f"v_mov_b32 v{V_PR + i}, 0")
    a(f"ds_write_b128 v{V_PW}, {vr(V_PR)}")
    a(f"ds_write_b128 v{V_PW}, {vr(V_PR)} offset:16")
    a(f"ds_write_b128 v{V_PW}, {vr(V_PR)} offset:32")
    a(f"s_lshl_b32 s{S_TOKB}, s{S_QBLK}, 3")
    a(f"s_lshl_b32 s{S_T1}, s{S_WAVE}, 1")
    a(f"s_add_u32 s{S_TOKB}, s{S_TOKB}, s{S_T1}")
    a(f"v_and_b32 v{X0}, 7, v{L}")
    a(f"v_lshrrev_b32 v{X1}, 1, v{L}")
    a(f"v_and_b32 v{X1}, 8, v{X1}")
    a(f"v_or_b32 v{X0}, v{X0}, v{X1}")
    a(f"v_lshrrev_b32 v{X1}, 3, v{L}")
    a(f"v_and_b32 v{X1}, 1, v{X1}")
    a(f"v_lshlrev_b32 v{V_OS}, 10, v{X1}")
    a(f"v_lshlrev_b32 v{X0}, 4, v{X0}")
    a(f"v_add_u32 v{V_OS}, v{V_OS}, v{X0}")
    a(f"v_lshrrev_b32 v{X0}, 5, v{L}")
    a(f"v_lshlrev_b32 v{X0}, 8, v{X0}")
    a(f"v_add_u32 v{V_OS}, v{V_OS}, v{X0}")
    a(f"v_lshrrev_b32 v{X0}, 4, v{L}")
    a(f"v_lshrrev_b32 v{X1}, 2, v{L}")
    a(f"v_xor_b32 v{X0}, v{X0}, v{X1}")
    a(f"v_and_b32 v{X0}, 1, v{X0}")
    a(f"v_cmp_eq_u32 vcc, 0, v{X0}")
    a(f"v_mov_b32 v{X1}, 0x3f803f80")
    a("s_nop 1")
    a(f"v_cndmask_b32 v{V_ONE}, 0, v{X1}, vcc")
    for i in range(1, 4):
        a(f"v_mov_b32 v{V_ONE + i}, v{V_ONE}")
    a("s_waitcnt lgkmcnt(0)")
    for q in range(2):
        r = R(q)
        for i in range(0, 16, 2):
            a(f"v_mov_b64 {vr(r['O'] + i, 2)}, 0")
        for i in range(0, 4, 2):
            a(f"v_mov_b64 {vr(r['L'] + i, 2)}, 0")
            a(f"v_mov_b64 {vr(r['P'] + 4 + i, 2)}, 0")
    a(f"v_mov_b64 {vr(V_V + 4, 2)}, 0")
    a(f"v_mov_b64 {vr(V_V + 6, 2)}, 0")
    a(f"v_add_u32 v{V_KA}, {RB}, v{V_L16}")
    a(f"v_mov_b32 v{V_VA}, v{V_KA}")
    a(f"s_mov_b32 s{S_RD}, {RB}")
    a(f"s_lshl_b32 s{S_T1}, s{S_WAVE}, 2")
    a(f"s_add_u32 s{S_T1}, s{S_T1}, {SW}")
    a(f"v_mov_b32 v{V_PW + 1}, s{S_T1}")
    a(f"v_mov_b32 v{V_PG}, 0")
    a(f"s_mov_b32 s{S_BIG}, {f32bits(2.0 ** 60):#x}")
    a(f"s_mov_b32 s{S_SP}, 0")
    a(f"s_lshl_b32 s{S_T0}, s{S_HEAD}, 17")
    a(f"s_lshl_b32 s{S_T1}, s{S_TOKB}, 11")
    a(f"s_add_u32 s{S_T0}, s{S_T0}, s{S_T1}")
    a("s_barrier")
    st.stamp(5)
    a(f"s_setprio {([o[4:] for o in OPT if o.startswith('prio')] or ['2'])[0]}")

    def dma_half(h):
        out = [f"s_add_u32 m0, s{S_LDS}, {h * 4096}\ns_add_u32 s{S_T1}, s{S_SRC}, {h * 4096}\n"
               f"buffer_load_dwordx4 v{V_L16}, {sr(S_KVD)}, s{S_T1} offen sc1 lds"]
        for i in range(1, 4):
            out.append(f"buffer_load_dwordx4 v{V_L16}, {sr(S_KVD)}, s{S_T1} offen offset:{i * 1024} sc1 lds")
        if h == 1:
            out[3] += (f"\ns_add_u32 s{S_SRC}, s{S_SRC}, {STG}\ns_add_u32 s{S_LDS}, s{S_LDS}, {STG}\n"
                       f"s_sub_u32 s{S_T1}, s{S_LDS}, {3 * STG}\ns_cmp_ge_u32 s{S_LDS}, {RB + 3 * STG}\n"
                       f"s_cselect_b32 s{S_LDS}, s{S_T1}, s{S_LDS}")
        return out

    for q in range(2):
        a(f"buffer_load_dwordx4 {vr(R(q)['Q'])}, v{V_L16}, {WS}, s{S_T0} offen offset:{q * 2048} sc1")
        a(f"buffer_load_dwordx4 {vr(R(q)['Q'] + 4)}, v{V_L16}, {WS}, s{S_T0} offen offset:{q * 2048 + 1024} sc1")
    for x in dma_half(0) + dma_half(1):
        a(x)
    a("s_waitcnt vmcnt(0)")
    a("s_barrier")
    st.stamp(6)

    def rdK(blk):
        o = (blk % NB) * 4096
        return [f"ds_read_b128 {vr(V_K)}, v{V_KA} offset:{o}", f"ds_read_b128 {vr(V_K + 4)}, v{V_KA} offset:{o + 1024}"]

    def rdV(blk):
        o = (blk % NB) * 4096 + 2048
        return [f"ds_read_b128 {vr(V_V)}, v{V_VA} offset:{o}", f"ds_read_b128 {vr(V_V + 4)}, v{V_VA} offset:{o + 1024}"]

    advK = (f"s_add_u32 s{S_RD}, s{S_RD}, {STG}\ns_cmp_ge_u32 s{S_RD}, {RB + 3 * STG}\n"
            f"s_cselect_b32 s{S_RD}, {RB}, s{S_RD}\nv_add_u32 v{V_KA}, s{S_RD}, v{V_L16}")
    advV = f"v_add_u32 v{V_VA}, s{S_RD}, v{V_L16}"

    def rowmax(dst, S, init=None):
        if init is None:
            a(f"v_max3_f32 v{dst}, v{S}, v{S+1}, v{S+2}")
            rest = list(range(3, 16))
        else:
            a(f"v_max3_f32 v{dst}, v{init}, v{S}, v{S+1}")
            rest = list(range(2, 16))
        while len(rest) >= 2:
            a(f"v_max3_f32 v{dst}, v{dst}, v{S + rest[0]}, v{S + rest[1]}")
            rest = rest[2:]
        if rest:
            a(f"v_max_f32 v{dst}, v{dst}, v{S + rest[0]}")

    def crosshalf_max(dst, tmp):
        a(f"v_mov_b32 v{tmp}, v{dst}")
        a("s_nop 1")
        a(f"v_permlane32_swap_b32 v{tmp}, v{dst}")
        a("s_nop 1")
        a(f"v_max_f32 v{dst}, v{dst}, v{tmp}")

    for x in rdK(0):
        a(x)
    a("s_waitcnt lgkmcnt(0)")
    for q in range(2):
        r = R(q)
        a(f"v_mfma_f32_32x32x16_bf16 {vr(r['S'][0], 16)}, {vr(V_K)}, {vr(r['Q'])}, 0")
        a(f"v_mfma_f32_32x32x16_bf16 {vr(r['S'][0], 16)}, {vr(V_K + 4)}, {vr(r['Q'] + 4)}, {vr(r['S'][0], 16)}")
    for x in rdK(1):
        a(x)
    a(rdV(0)[0])
    a(f"s_add_u32 s{S_SRC}, s{S_SRC}, {STG}")
    a(f"s_add_u32 s{S_LDS}, s{S_LDS}, {STG}")
    a("s_nop 12")
    for q in range(2):
        r = R(q)
        rowmax(r['M'], r['S'][0])
        crosshalf_max(r['M'], r['M'] + 1)
        for i in range(16):
            a(f"v_sub_f32 v{r['C'] + i}, 0, v{r['M']}")
        for i in range(16):
            a(f"v_sub_f32 v{r['S'][0] + i}, v{r['S'][0] + i}, v{r['M']}")

    def half_block(i, q, extra):
        extra = list(extra) + ["", "", ""]
        r = R(q)
        Sc, Sn = r['S'][i & 1], r['S'][(i + 1) & 1]
        P, O, Lr = r['P'], r['O'], r['L']
        ex = [f"v_exp_f32 v{Sc + k}, v{Sc + k}" for k in range(16)]
        cv = [f"v_cvt_pk_bf16_f32 v{P + d}, v{Sc + 2*d}, v{Sc + 2*d + 1}" for d in range(8)]
        kr = rdK(i + 2) if q == 1 else ["", ""]
        if q == 0:
            a("s_waitcnt lgkmcnt(1)")
        a(f"v_mfma_f32_32x32x16_bf16 {vr(Sn, 16)}, {vr(V_K)}, {vr(r['Q'])}, {vr(r['C'], 16)}")
        a(kr[0])
        for e in ex[0:3]:
            a(e)
        a(f"v_mfma_f32_32x32x16_bf16 {vr(Sn, 16)}, {vr(V_K + 4)}, {vr(r['Q'] + 4)}, {vr(Sn, 16)}")
        a(kr[1])
        a(extra[0])
        for e in ex[3:6]:
            a(e)
        a(f"v_mfma_f32_32x32x16_bf16 {vr(O, 16)}, {vr(V_V + 4)}, {vr(P + 4)}, {vr(O, 16)}")
        if q == 1:
            a(rdV(i)[1])
        a(ex[6])
        a(ex[7])
        a(cv[0])
        a(cv[1])
        a(f"v_mfma_f32_16x16x32_bf16 {vr(Lr)}, {vr(V_ONE)}, {vr(P + 4)}, {vr(Lr)}")
        a(cv[2])
        a(cv[3])
        a(ex[8])
        a(ex[9])
        if q == 0:
            a("s_waitcnt lgkmcnt(0)")
        if q == 1 and i % NB == NB - 1:
            a(advV)
        a(f"v_mfma_f32_32x32x16_bf16 {vr(O, 16)}, {vr(V_V)}, {vr(P)}, {vr(O, 16)}")
        if q == 1:
            a(rdV(i + 1)[0])
        a(extra[1])
        for e in ex[10:13]:
            a(e)
        a(f"v_mfma_f32_16x16x32_bf16 {vr(Lr)}, {vr(V_ONE)}, {vr(P)}, {vr(Lr)}")
        a(extra[2])
        for e in ex[13:16]:
            a(e)
        for c in cv[4:8]:
            a(c)

    V_PR2 = V_T
    rdprog = f"ds_read_b128 {vr(V_PR)}, v{V_PW}\nds_read_b128 {vr(V_PR2)}, v{V_PW} offset:16"
    a(f"s_mov_b32 s{S_CNT}, 0")
    a(".p2align 6")
    a.label("L_p2_loop")
    dq = dma_half(0) + dma_half(1)
    for i in range(NB):
        ex0, ex1 = [], []
        if i == 1:
            ex0 = ["", f"v_add_u32 v{V_PG}, 1, v{V_PG}\ns_waitcnt vmcnt(0)\nds_write_b32 v{V_PW + 1}, v{V_PG}"]
        if i == 3:
            ex0 = ["", rdprog]
        if i == 4:
            a("s_waitcnt lgkmcnt(1)")
            a.label("L_p2_chk")
            a(f"v_min3_u32 v{V_PR}, v{V_PR}, v{V_PR+1}, v{V_PR+2}")
            a(f"v_min3_u32 v{V_PR}, v{V_PR}, v{V_PR+3}, v{V_PR2}")
            a(f"v_min3_u32 v{V_PR}, v{V_PR}, v{V_PR2+1}, v{V_PR2+2}")
            a(f"v_min_u32 v{V_PR}, v{V_PR}, v{V_PR2+3}")
            a(f"v_cmp_gt_u32 vcc, v{V_PG}, v{V_PR}")
            a("s_cmp_eq_u64 vcc, 0")
            a("s_cbranch_scc0 L_p2_wait")
            a.label("L_p2_go")
            a(f"s_sub_u32 s{S_T0}, s{S_CNT}, 1")
            a(f"s_cmp_lt_u32 s{S_T0}, 5")
            a("s_cselect_b64 vcc, -1, 0")
            st.loop_stamp(48, S_CNT, 1, 0)
        if i >= 4:
            def guard(x, k):
                body = x.split("\n")
                j = [n for n, ln in enumerate(body) if ln.startswith("buffer_load")][0]
                return "\n".join(body[:j] + [f"s_cbranch_vccz L_p2_skip{k}", body[j], f"L_p2_skip{k}:"] + body[j + 1:])
            ex0 = [guard(dq[2 * (i - 4)], 2 * (i - 4))]
            ex1 = [guard(dq[2 * (i - 4) + 1], 2 * (i - 4) + 1)]
        if i == NB - 2:
            a(advK)
        half_block(i, 0, ex0)
        half_block(i, 1, ex1)
    a(f"s_add_u32 s{S_CNT}, s{S_CNT}, 1")
    a(f"s_cmp_lt_u32 s{S_CNT}, 8")
    a("s_cbranch_scc1 L_p2_loop")
    a("s_waitcnt lgkmcnt(0)")
    a("s_nop 0")
    for q in range(2):
        r = R(q)
        a(f"v_mfma_f32_32x32x16_bf16 {vr(r['O'], 16)}, {vr(V_V + 4)}, {vr(r['P'] + 4)}, {vr(r['O'], 16)}")
        a(f"v_mfma_f32_16x16x32_bf16 {vr(r['L'])}, {vr(V_ONE)}, {vr(r['P'] + 4)}, {vr(r['L'])}")
    a("s_nop 15")
    st.stamp(7)
    a(f"s_lshr_b32 s{S_T2}, s{S_TOKB}, 2")
    a(f"s_mul_i32 s{S_T2}, s{S_T2}, {AF_KB}")
    a(f"s_add_u32 s{S_T2}, s{S_T2}, s{S_HEAD}")
    a(f"s_lshl_b32 s{S_T2}, s{S_T2}, 13")
    a(f"s_and_b32 s{S_T1}, s{S_TOKB}, 2")
    a(f"s_lshl_b32 s{S_T1}, s{S_T1}, 11")
    a(f"s_add_u32 s{S_T2}, s{S_T2}, s{S_T1}")
    a(f"s_add_u32 s{S_T2}, s{S_T2}, {AF_BASE + AF_O * 8192}")
    for q in range(2):
        r = R(q)
        O, P = r['O'], r['P']
        a(f"v_max3_f32 v{V_T}, abs(v{O}), abs(v{O+1}), abs(v{O+2})")
        for i in range(3, 15, 2):
            a(f"v_max3_f32 v{V_T}, v{V_T}, abs(v{O+i}), abs(v{O+i+1})")
        a(f"v_max_f32 v{V_T}, v{V_T}, abs(v{O+15})")
        a(f"v_add_f32 v{V_T+1}, v{O}, v{O+1}")
        for i in range(2, 16):
            a(f"v_add_f32 v{V_T+1}, v{V_T+1}, v{O+i}")
        a(f"v_mov_b32 v{V_T+2}, 0x7c000000")
        a(f"v_cmp_lt_f32 vcc, v{V_T}, v{V_T+2}")
        a(f"v_cmp_gt_f32 s[36:37], s{S_BIG}, v{r['L']}")
        a(f"v_cmp_o_f32 s[38:39], v{V_T+1}, v{V_T+1}")
        a("s_and_b64 vcc, vcc, s[36:37]")
        a("s_and_b64 vcc, vcc, s[38:39]")
        a("s_cmp_eq_u64 vcc, exec")
        a(f"s_cbranch_scc0 L_p2_slow{q}")
        a.label(f"L_p2_fin{q}")
        a(f"v_rcp_f32 v{V_T}, v{r['L']}")
        a("s_nop 0")
        for i in range(16):
            a(f"v_mul_f32 v{O + i}, v{O + i}, v{V_T}")
        for d in range(8):
            a(f"v_cvt_pk_bf16_f32 v{P + d}, v{O + 2*d}, v{O + 2*d + 1}")
        a(f"buffer_store_dwordx4 {vr(P)}, v{V_OS}, {WS}, s{S_T2} offen sc1")
        a(f"buffer_store_dwordx4 {vr(P + 4)}, v{V_OS}, {WS}, s{S_T2} offen offset:512 sc1")
        if q == 0:
            a(f"s_add_u32 s{S_T2}, s{S_T2}, 2048")
    a("s_setprio 0")
    a("s_waitcnt vmcnt(0)")
    lds_arrive(a, SW_A, X0, "L_a_sig")
    global_arrive(a, C3, X0, "L_a_sig")
    a.label("L_a_sig")
    st.stamp(8)
    a(f"v_and_b32 v{X0}, 1, v{L}")
    a(f"v_lshlrev_b32 v{X0}, 2, v{X0}")
    a(f"v_add_u32 v{X0}, {C2}, v{X0}")
    a("s_branch L_gemm")

    a.label("L_p2_wait")
    a(f"s_add_u32 s{S_SP}, s{S_SP}, 1")
    a(f"s_cmp_gt_u32 s{S_SP}, {SPIN_LIMIT * 8}")
    a("s_cbranch_scc1 L_p2_go")
    a("s_sleep 1")
    a(rdprog)
    a("s_waitcnt lgkmcnt(0)")
    a("s_branch L_p2_chk")

    for q in range(2):
        r = R(q)
        S0, Q = r['S'][0], r['Q']
        a.label(f"L_p2_slow{q}")
        a(f"v_mov_b32 v{V_T}, 0xff800000")
        a(f"s_mov_b32 s{S_T0}, s{S_KVB}")
        a(f"s_mov_b32 s{S_CNT}, 0")
        a.label(f"L_p2_slow_max{q}")
        a(f"buffer_load_dwordx4 {vr(V_K)}, v{V_L16}, {WS}, s{S_T0} offen sc1")
        a(f"buffer_load_dwordx4 {vr(V_K + 4)}, v{V_L16}, {WS}, s{S_T0} offen offset:1024 sc1")
        a("s_waitcnt vmcnt(0)")
        a(f"v_mfma_f32_32x32x16_bf16 {vr(S0, 16)}, {vr(V_K)}, {vr(Q)}, 0")
        a(f"v_mfma_f32_32x32x16_bf16 {vr(S0, 16)}, {vr(V_K + 4)}, {vr(Q + 4)}, {vr(S0, 16)}")
        a("s_nop 15")
        rowmax(V_T, S0, init=V_T)
        a(f"s_add_u32 s{S_T0}, s{S_T0}, 4096")
        a(f"s_add_u32 s{S_CNT}, s{S_CNT}, 1")
        a(f"s_cmp_lt_u32 s{S_CNT}, 64")
        a(f"s_cbranch_scc1 L_p2_slow_max{q}")
        crosshalf_max(V_T, V_T + 1)
        for i in range(16):
            a(f"v_sub_f32 v{r['C'] + i}, 0, v{V_T}")
            a(f"v_mov_b32 v{r['O'] + i}, 0")
        for i in range(4):
            a(f"v_mov_b32 v{r['L'] + i}, 0")
        a(f"s_mov_b32 s{S_T0}, s{S_KVB}")
        a(f"s_mov_b32 s{S_CNT}, 0")
        a.label(f"L_p2_slow_pv{q}")
        a(f"buffer_load_dwordx4 {vr(V_K)}, v{V_L16}, {WS}, s{S_T0} offen sc1")
        a(f"buffer_load_dwordx4 {vr(V_K + 4)}, v{V_L16}, {WS}, s{S_T0} offen offset:1024 sc1")
        a(f"buffer_load_dwordx4 {vr(V_V)}, v{V_L16}, {WS}, s{S_T0} offen offset:2048 sc1")
        a(f"buffer_load_dwordx4 {vr(V_V + 4)}, v{V_L16}, {WS}, s{S_T0} offen offset:3072 sc1")
        a("s_waitcnt vmcnt(0)")
        a(f"v_mfma_f32_32x32x16_bf16 {vr(S0, 16)}, {vr(V_K)}, {vr(Q)}, {vr(r['C'], 16)}")
        a(f"v_mfma_f32_32x32x16_bf16 {vr(S0, 16)}, {vr(V_K + 4)}, {vr(Q + 4)}, {vr(S0, 16)}")
        a("s_nop 15")
        for k in range(16):
            a(f"v_exp_f32 v{S0 + k}, v{S0 + k}")
        a("s_nop 0")
        for d in range(8):
            a(f"v_cvt_pk_bf16_f32 v{r['P'] + d}, v{S0 + 2*d}, v{S0 + 2*d + 1}")
        a("s_nop 1")
        a(f"v_mfma_f32_32x32x16_bf16 {vr(r['O'], 16)}, {vr(V_V)}, {vr(r['P'])}, {vr(r['O'], 16)}")
        a(f"v_mfma_f32_32x32x16_bf16 {vr(r['O'], 16)}, {vr(V_V + 4)}, {vr(r['P'] + 4)}, {vr(r['O'], 16)}")
        a(f"v_mfma_f32_16x16x32_bf16 {vr(r['L'])}, {vr(V_ONE)}, {vr(r['P'])}, {vr(r['L'])}")
        a(f"v_mfma_f32_16x16x32_bf16 {vr(r['L'])}, {vr(V_ONE)}, {vr(r['P'] + 4)}, {vr(r['L'])}")
        a("s_nop 15")
        a(f"s_add_u32 s{S_T0}, s{S_T0}, 4096")
        a(f"s_add_u32 s{S_CNT}, s{S_CNT}, 1")
        a(f"s_cmp_lt_u32 s{S_CNT}, 64")
        a(f"s_cbranch_scc1 L_p2_slow_pv{q}")
        a(f"s_branch L_p2_fin{q}")

    a.label("L_g_start")
    a(f"s_mov_b32 s54, {1024 * 2048}")
    a("s_mov_b32 s55, 0x00020000")
    a(f"v_lshlrev_b32 v64, 7, v{L}")
    a("s_waitcnt lgkmcnt(0)")
    a("s_barrier")
    st.stamp(5)
    for k in range(8):
        a(f"ds_read_b128 {vr(4 * k)}, v{X5} offset:{k * 1024}")
    a(f"s_add_u32 s{S_SRC}, s{S_SRC}, {STG}")
    a(f"s_add_u32 s{S_LDS}, s{S_LDS}, {STG}")
    a("s_waitcnt vmcnt(0) lgkmcnt(0)")
    for x in dma_half(0) + dma_half(1):
        a(x)
    a("s_barrier")
    st.stamp(6)
    for x in dma_half(0) + dma_half(1):
        a(x)
    ntouch = 0
    if 'nowarm' in OPT:
        ntouch = 2
        a(f"s_lshl_b32 s{S_T0}, s2, 2")
        a(f"s_add_u32 s{S_T0}, s{S_T0}, s{S_KQ}")
        a(f"s_lshl_b32 s{S_T0}, s{S_T0}, 13")
        a(f"buffer_load_dword v65, v64, {sr(S_UW)}, s{S_T0} offen")
        a(f"s_lshl_b32 s{S_T0}, s2, 13")
        a(f"s_cmp_eq_u32 s{S_KQ}, 3")
        a("s_cselect_b32 s54, s54, 0")
        a(f"buffer_load_dword v65, v64, s[52:55], s{S_T0} offen")
    TH = int(([o[2:] for o in OPT if o.startswith("th")] or ["8"])[0])
    a(f"s_lshl_b32 s{S_T1}, s{S_WAVE}, 2")
    a(f"s_add_u32 s{S_T1}, s{S_T1}, {SW}")
    a(f"v_mov_b32 v{X0}, s{S_T1}")
    a(f"v_mov_b32 v{X1}, 99")
    st.stamp(12)
    a(f"s_waitcnt vmcnt({ntouch})")
    a(f"ds_write_b32 v{X0}, v{X1}")
    st.stamp(13)
    if 'sj' in OPT:
        a("s_waitcnt vmcnt(0)")
        st.stamp(14)
    for k in range(8):
        a(f"buffer_store_dwordx4 {vr(V_H + 4 * k)}, v{V_L16}, {WS}, s{(S_H0, S_H1)[k // 4]} offen offset:{(k % 4) * 1024} sc1")
        a(f"s_waitcnt vmcnt({TH})")
    a(f"s_sub_u32 s{S_H0}, s{S_H0}, {8 * AF_KB * 1024}")
    a(f"s_sub_u32 s{S_H1}, s{S_H1}, {8 * AF_KB * 1024}")
    for k in range(8):
        a(f"buffer_store_dwordx4 {vr(4 * k)}, v{V_L16}, {WS}, s{(S_H0, S_H1)[k // 4]} offen offset:{(k % 4) * 1024} sc1")
        a(f"s_waitcnt vmcnt({TH})")
    st.stamp(27)
    st.stamp(28)
    a("s_waitcnt vmcnt(0)")
    st.stamp(29)
    lds_arrive(a, SW_G, X0, "L_g_sig")
    global_arrive(a, C2, X0, "L_g_sig")
    a.label("L_g_sig")
    st.stamp(7)
    for o in OPT:
        if o.startswith("hold"):
            lds_wait(a, "L_g_hold", SW, int(o[4:]), X0, S_SP)
    st.stamp(8)
    a(f"v_mov_b32 v{X0}, {C2}")

    a.label("L_gemm")

    def wdma(slot, i):
        x = (f"s_add_u32 m0, s{S_WL}, {slot * 4096 + i * 1024}\ns_add_u32 s{S_T1}, s{S_WSRC}, {i * 16384}\n"
             f"buffer_load_dwordx4 v{V_UA}, {sr(S_UW)}, s{S_T1} offen lds")
        if i == 3:
            x += f"\ns_add_u32 s{S_WSRC}, s{S_WSRC}, {128 * 2048}"
        return x

    def wreads(slot):
        return [f"ds_read_b64_tr_b16 {vr(BUF[slot] + 32 + q * 4 + t * 2, 2)}, v{V_UR + q} offset:{slot * 4096 + t * 2048}"
                for q in range(4) for t in range(2)]

    for slot in range(2):
        for i in range(4):
            a(wdma(slot, i))
    for i in range(0, 128, 2):
        a(f"v_mov_b64 {vr(i, 2)}, 0")
    a("s_waitcnt vmcnt(4)")
    for x in wreads(0):
        a(x)
    a("s_waitcnt lgkmcnt(0)")
    for i in range(4):
        a(wdma(0, i))
    ldc = f"buffer_load_dword v{X2}, v{X0}, {DBG}, 0 offen offset:128 sc1"
    a(ldc)
    a("s_waitcnt vmcnt(0)")
    spin(a, "L_gemm_c", "s_sleep 8\n" + ldc, X2, 1, S_SP)
    st.stamp(9)
    srd(a, S_KVD, S_WS, WS_USED)
    GA = sr(S_KVD)

    def aload(u, tt):
        x = (f"buffer_load_dwordx4 {vr(BUF[u] + tt * 4)}, v{V_L16 if tt < 4 else V_DA}, {GA}, s{S_ASRC} "
             f"offen offset:{(tt & 3) * 1024} sc1")
        if tt == 7:
            x += f"\ns_add_u32 s{S_ASRC}, s{S_ASRC}, 32768"
        return x

    a(f"v_and_b32 v{X0}, 15, v{L}")
    a(f"v_lshlrev_b32 v{X0}, 3, v{X0}")
    for tt in range(4, 8):
        a(f"buffer_load_dword v{V_G + tt}, v{X0}, {WS}, s{S_GOFF} offen offset:{tt * 128} sc1")
    for tt in range(8):
        a(aload(0, tt))
    for tt in range(4):
        a(f"buffer_load_dword v{V_G + tt}, v{X0}, {WS}, s{S_GOFF} offen offset:{tt * 128} sc1")
    for tt in range(8):
        a(aload(1, tt))
    a(".p2align 6")
    a.label("L_gemm_loop")
    a(f"s_cmp_eq_u32 s{S_STEPS}, 1")
    a(f"s_cselect_b32 s{S_KVD + 2}, 0, s{S_KVD + 2}")
    for u in range(2):
        a("s_waitcnt vmcnt(12) lgkmcnt(0)")
        rd = wreads(u ^ 1)
        for tt in range(8):
            if tt == 3:
                a("s_waitcnt lgkmcnt(0)")
            for nt in range(4):
                d = vr((tt * 4 + nt) * 4)
                a(f"v_mfma_f32_16x16x32_bf16 {d}, {vr(BUF[u] + 32 + nt * 4)}, {vr(BUF[u] + tt * 4)}, {d}")
                if tt < 2:
                    a(rd[tt * 4 + nt])
                if 3 <= tt < 7 and nt == 1:
                    a(wdma(u ^ 1, tt - 3))
            a(aload(u, tt))
    a(f"s_sub_u32 s{S_STEPS}, s{S_STEPS}, 1")
    a(f"s_cmp_lg_u32 s{S_STEPS}, 0")
    a("s_cbranch_scc1 L_gemm_loop")
    a("s_waitcnt vmcnt(0) lgkmcnt(0)")
    st.stamp(10)
    for tt in range(8):
        for i in range(16):
            a(f"v_mul_f32 v{tt * 16 + i}, v{tt * 16 + i}, v{V_G + tt}")
    a(f"s_add_u32 s{S_T0}, s{S_KQ}, 2")
    a(f"s_lshl_b32 s{S_T0}, s{S_T0}, 15")
    a(f"s_cmp_eq_u32 s{S_KQ}, 3")
    a(f"s_cselect_b32 s{S_T0}, 0, s{S_T0}")
    a(f"v_add_u32 v{X3}, s{S_T0}, v{V_L16}")
    a(f"s_lshl_b32 s{S_T0}, s{S_KQ}, 13")
    a(f"v_add_u32 v{X4}, s{S_T0}, v{V_L16}")
    a(f"v_add_u32 v{X5}, {PART[0]}, v{X4}")
    a(f"v_add_u32 v{X2}, {PART[2]}, v{X4}")

    def write_partial():
        for i in range(32):
            a(f"ds_write_b128 v{X3}, {vr(4 * i)} offset:{i * 1024}")

    def gather(dst_acc, first):
        src = [(X5, 0), (X5, 32768), (X2, 0), (X4, 0)]
        for p in range(4):
            for i in range(8):
                a(f"ds_read_b128 {vr(32 * p + 4 * i)}, v{src[p][0]} offset:{src[p][1] + i * 1024}")
            if p in (1, 3):
                a("s_waitcnt lgkmcnt(0)")
                for i in range(0, 32, 2):
                    a(f"v_pk_add_f32 {vr(32 * p + i, 2)}, {vr(32 * p + i, 2)}, {vr(32 * (p - 1) + i, 2)}")
        for i in range(0, 32, 2):
            if first:
                a(f"v_pk_add_f32 {vr(dst_acc + i, 2)}, {vr(32 + i, 2)}, {vr(96 + i, 2)}")
            else:
                a(f"v_pk_add_f32 {vr(32 + i, 2)}, {vr(32 + i, 2)}, {vr(96 + i, 2)}")
                a(f"v_pk_add_f32 {vr(dst_acc + i, 2)}, {vr(dst_acc + i, 2)}, {vr(32 + i, 2)}")

    a(f"s_cmp_lt_u32 s{S_WAVE}, 4")
    a("s_cbranch_scc0 L_g_red")
    a("s_barrier")
    write_partial()
    a("s_waitcnt lgkmcnt(0)")
    a("s_barrier")
    st.stamp(11)
    st.finish(100)
    a("s_endpgm")

    a.label("L_g_red")
    SUM = 128
    lds_wait(a, "L_g_wa", SW_A, 4, X0, S_SP)

    def slice_addr(dst, src, j):
        a(f"s_cmp_gt_u32 {j}, {src}")
        a(f"s_cselect_b32 s{S_T1}, 1, 0")
        a(f"s_sub_u32 s{S_T1}, {j}, s{S_T1}")
        a(f"s_lshl_b32 s{S_T2}, {src}, 1")
        a(f"s_add_u32 s{S_T2}, s{S_T2}, s{S_T1}")
        a(f"s_add_u32 s{S_T2}, s{S_T2}, 11")
        a(f"s_cmp_eq_u32 s{S_T1}, 0")
        a(f"s_cselect_b32 s{S_T2}, {src}, s{S_T2}")
        a(f"s_lshl_b32 s{S_T2}, s{S_T2}, 13")
        a(f"v_add_u32 v{dst}, s{S_T2}, v{V_L16}")

    for j in range(4):
        slice_addr(X0, f"s{S_KQ}", j)
        a(f"s_cmp_eq_u32 s{S_KQ}, {j}")
        a(f"s_cbranch_scc1 L_g_own{j}")
        for i in range(8):
            a(f"ds_write_b128 v{X0}, {vr(32 * j + 4 * i)} offset:{i * 1024}")
        a(f"s_branch L_g_nxt{j}")
        a.label(f"L_g_own{j}")
        for i in range(0, 32, 2):
            a(f"v_mov_b64 {vr(SUM + i, 2)}, {vr(32 * j + i, 2)}")
        a.label(f"L_g_nxt{j}")
    a("s_waitcnt lgkmcnt(0)")
    lds_arrive(a, SW_R, X0, "L_g_arr")
    a.label("L_g_arr")
    lds_wait(a, "L_g_wr", SW_R, 4, X0, S_SP)
    for p in range(4):
        a(f"s_cmp_eq_u32 s{S_KQ}, {p}")
        a(f"s_cbranch_scc1 L_g_skip{p}")
        slice_addr(X0, p, f"s{S_KQ}")
        for i in range(8):
            a(f"ds_read_b128 {vr(4 * i)}, v{X0} offset:{i * 1024}")
        a("s_waitcnt lgkmcnt(0)")
        for i in range(0, 32, 2):
            a(f"v_pk_add_f32 {vr(SUM + i, 2)}, {vr(SUM + i, 2)}, {vr(i, 2)}")
        a.label(f"L_g_skip{p}")
    a("s_barrier")
    a(f"v_and_b32 v{X0}, 15, v{L}")
    a(f"s_lshl_b32 s{S_T0}, s{S_MB}, 7")
    a(f"s_lshl_b32 s{S_T1}, s{S_KQ}, 5")
    a(f"s_add_u32 s{S_T0}, s{S_T0}, s{S_T1}")
    a(f"v_add_u32 v{X0}, s{S_T0}, v{X0}")
    a(f"v_lshlrev_b32 v{X0}, 11, v{X0}")
    a(f"v_lshlrev_b32 v{X1}, 1, v{L}")
    a(f"v_and_b32 v{X1}, 32, v{X1}")
    a(f"v_add_u32 v{X0}, v{X0}, v{X1}")
    a(f"v_lshrrev_b32 v{X1}, 1, v{L}")
    a(f"v_and_b32 v{X1}, 16, v{X1}")
    a(f"v_add_u32 v{X0}, v{X0}, v{X1}")
    a(f"s_lshl_b32 s{S_T0}, s{S_NB}, 7")
    a(f"s_add_u32 s{S_T1}, s{S_T0}, {16 * 2048}")
    a("s_barrier")
    gather(SUM, False)
    P = 160
    for i in range(16):
        a(f"v_cvt_pk_bf16_f32 v{P + i}, v{SUM + 2*i}, v{SUM + 2*i + 1}")
    a("s_nop 1")
    for m in range(4):
        a(f"v_permlane16_swap_b32 v{P + 4*m}, v{P + 4*m + 2}")
        a(f"v_permlane16_swap_b32 v{P + 4*m + 1}, v{P + 4*m + 3}")
    for m in range(4):
        a(f"buffer_store_dwordx4 {vr(P + 4*m)}, v{X0}, {sr(S_OUT)}, s{S_T0 if m < 2 else S_T1} offen offset:{64 * (m & 1)}")
    if STAMPS:
        a("s_waitcnt vmcnt(0)")
    st.stamp(11)
    st.finish(100)


def main():
    global STAMPS
    if "--stamps" in sys.argv:
        STAMPS = True
        sys.argv.remove("--stamps")
    for x in list(sys.argv):
        if x.startswith("--opt="):
            OPT.update(x[6:].split(","))
            sys.argv.remove(x)
    global FLAG_TP_O
    if 'fo1' in OPT:
        FLAG_TP_O = 1
    if 'fom' in OPT:
        FLAG_TP_O = -1
    if 'fo0' in OPT:
        FLAG_TP_O = 0
    out = sys.argv[1] if len(sys.argv) > 1 else f"cdna_kernels/{NAME}.s"
    ref = open(f"cdna_kernels/{NAME}.s.ref").read().split("\n")
    head = [ln for ln in ref if ln.startswith(";") and "@launch" not in ln and "Override launch" not in ln
            and "grid=ceil" not in ln]
    a = Asm()
    a(f".globl {KNAME}")
    a(".p2align 8")
    a(f".type {KNAME},@function")
    a.label(KNAME)
    a("s_cmp_ge_u32 s2, 256")
    a("s_cbranch_scc1 L_end")
    st = Stamper(a)
    st.start()
    phase1(a, st)
    phase23(a, st)
    a.label("L_end")
    a("s_endpgm")
    a.label("L_code_end")
    txt = "\n".join(head) + "\n"
    if "list" in OPT:
        txt += f"; @launch kernel={KNAME} grid=(256,1,1) block=(512,1,1) lds=163840\n"
    else:
        txt += "; @launch grid=(256,1,1) block=(512,1,1) lds=163840\n"
    txt += '.amdgcn_target "amdgcn-amd-amdhsa--gfx950"\n.text\n'
    txt += a.text()
    txt += f""".section .rodata,"a"
.p2align 6
.amdhsa_kernel {KNAME}
  .amdhsa_next_free_vgpr 256
  .amdhsa_next_free_sgpr 102
  .amdhsa_accum_offset 256
  .amdhsa_group_segment_fixed_size 0
  .amdhsa_kernarg_size 88
  .amdhsa_user_sgpr_count 2
  .amdhsa_user_sgpr_kernarg_segment_ptr 1
  .amdhsa_system_sgpr_workgroup_id_x 1
.end_amdhsa_kernel
"""
    open(out, "w").write(txt)


if __name__ == "__main__":
    main()
```

```python
import struct
import sys

NAME = "gated_mix__softmax_full_mha__swiglu_ffn__prompt"
KNAME = NAME + "_kernel"

QF_BASE = 0
KV_BASE = 4 << 20
AF_BASE = 12 << 20
AF_KB = 144
AF_O = 112
G_BASE = AF_BASE + 128 * AF_KB * 1024
FLAG_BASE = G_BASE + 2048 * 8
WS_USED = FLAG_BASE + 256 * 128
STAMP_BASE = 64 << 20
STAMPS = False
OPT = set()
LOG2E = 1.4426950408889634
QSCALE = (32 ** -0.5) * LOG2E
C0, C2, C3 = 0, 4, 8
SPIN_LIMIT = 1 << 22


def f32bits(x):
    return struct.unpack("<I", struct.pack("<f", x))[0]


class Asm:
    def __init__(self):
        self.lines = []

    def __call__(self, s):
        for ln in s.split("\n"):
            ln = ln.strip()
            if not ln:
                continue
            if ln.endswith(":") or ln.startswith("."):
                self.lines.append(ln)
            else:
                self.lines.append("    " + ln)

    def label(self, name):
        self.lines.append(name + ":")

    def text(self):
        return "\n".join(self.lines) + "\n"


def vr(base, n=4):
    return f"v[{base}:{base + n - 1}]"


def sr(base, n=4):
    return f"s[{base}:{base + n - 1}]"


def srd(a, dst, lo, nbytes):
    a(f"s_mov_b32 s{dst}, s{lo}")
    a(f"s_mov_b32 s{dst + 1}, s{lo + 1}")
    a(f"s_mov_b32 s{dst + 2}, {nbytes}")
    a(f"s_mov_b32 s{dst + 3}, 0x00020000")


class Stamper:
    def __init__(self, a):
        self.a = a

    def start(self):
        self.stamp(-1)

    def stamp(self, idx):
        if not STAMPS:
            return
        self.a("s_memrealtime s[80:81]")
        self.a("s_memtime s[82:83]")
        self.a("s_waitcnt lgkmcnt(0)")
        self.a(f"v_writelane_b32 v255, s80, {2 * (idx + 1)}")
        self.a(f"v_writelane_b32 v255, s82, {2 * (idx + 1) + 1}")

    def loop_stamp(self, base, scnt, mul, add):
        if not STAMPS:
            return
        self.a("s_memtime s[82:83]")
        self.a(f"s_mul_i32 s80, s{scnt}, {mul}")
        self.a(f"s_add_u32 m0, s80, {base + add}")
        self.a("s_waitcnt lgkmcnt(0)")
        self.a("v_writelane_b32 v255, s82, m0")

    def finish(self, vt):
        if not STAMPS:
            return
        a = self.a
        a("s_mov_b64 exec, -1")
        a("s_lshl_b32 s80, s2, 3")
        a(f"s_add_u32 s80, s80, s{S_WAVE}")
        a("s_lshl_b32 s80, s80, 8")
        a(f"s_add_u32 s80, s80, {STAMP_BASE}")
        a(f"s_mov_b32 s{S_WS + 2}, 0x10000000")
        a(f"v_lshlrev_b32 v{vt}, 2, v{V_LANE}")
        a(f"buffer_store_dword v255, v{vt}, {sr(S_WS)}, s80 offen")


S_WAVE = 3
S_WS, S_DBG = 4, 8
V_LANE, V_L16 = 228, 229
V_C0 = 251
V_H = 192
S_H0, S_H1 = 78, 79
FLAG_TP_E, FLAG_TP_O = -1, 1
NEARLY = 9
WS = sr(S_WS)
DBG = sr(S_DBG)


def signal(a, off, vt, label):
    a(f"s_cmp_lg_u32 s{S_WAVE}, 0")
    a(f"s_cbranch_scc1 {label}")
    a(f"v_mov_b32 v{vt}, 1")
    a(f"v_mov_b32 v{vt + 1}, {off}")
    a("s_mov_b64 exec, 1")
    a(f"buffer_atomic_add v{vt}, v{vt + 1}, {DBG}, 0 offen sc1")
    a("s_mov_b64 exec, -1")
    a.label(label)


def spin(a, label, load, vval, expect, scnt):
    a(f"s_mov_b32 s{scnt}, 0")
    a.label(label)
    a(f"v_cmp_{'ne' if expect == 1 else 'gt'}_u32 vcc, {expect}, v{vval}")
    a("s_cmp_eq_u64 vcc, 0")
    a(f"s_cbranch_scc1 {label}_ok")
    a("s_sleep 1")
    a(load)
    a("s_waitcnt vmcnt(0)")
    a(f"s_add_u32 s{scnt}, s{scnt}, 1")
    a(f"s_cmp_lt_u32 s{scnt}, {SPIN_LIMIT}")
    a(f"s_cbranch_scc1 {label}")
    a.label(f"{label}_ok")


def phase1(a, st):
    XBUF = [0, 32768]
    WBASE = 65536
    WSTRIDE = 40960
    S_X, S_QKV, S_G, S_U, S_GW, S_PF = 12, 16, 20, 24, 28, 32
    S_W1024, S_ROWBLK, S_XCD, S_COLSUB, S_KX = 36, 37, 38, 39, 40
    S_WO = 41
    S_CNT = 46
    S_T0, S_T1, S_T2, S_T3 = 47, 48, 49, 50
    S_WN = 51
    S_NL2E, S_ONE, S_QS = 52, 54, 56
    S_FU, S_QKU, S_VU, S_TOK, S_E = 58, 59, 60, 61, 62
    S_PFO, S_PFS = 63, 100
    XF = [160, 176]
    WF = 192
    V_XA = 212
    V_WA, V_WB = 214, 218
    V_DX = 220
    V_DW6, V_DW7 = 224, 225
    V_PF, V_PFD = 226, 227
    V_ST = 230
    V_T = 232
    L = V_LANE
    T0, T1, T2, T3, T4 = V_T, V_T + 1, V_T + 2, V_T + 3, V_T + 4

    def acc(nt, tt):
        return (nt * 4 + tt) * 4

    for dst, off in ((S_X, 0), (S_QKV, 8), (S_G, 32), (S_U, 40), (S_WS, 80), (S_DBG, 72), (64, 56)):
        a(f"s_load_dwordx2 {sr(dst, 2)}, s[0:1], {off}")
    a(f"v_and_b32 v{L}, 63, v0")
    a(f"v_lshrrev_b32 v{T0}, 6, v0")
    a(f"v_lshlrev_b32 v{V_L16}, 4, v{L}")
    a(f"v_readfirstlane_b32 s{S_WAVE}, v{T0}")
    a("s_getpc_b64 s[28:29]")
    a.label("L_p1_pc")
    a(f"s_sub_u32 s28, s28, L_p1_pc-{KNAME}")
    a("s_subb_u32 s29, s29, 0")
    a(f"s_cmp_eq_u32 s{S_WAVE}, 7")
    a(f"s_cselect_b32 s30, L_code_end-{KNAME}, 0")
    a("s_mov_b32 s31, 0x00020000")
    a(f"s_lshr_b32 s{S_COLSUB}, s2, 3")
    a(f"s_and_b32 s{S_COLSUB}, s{S_COLSUB}, 3")
    a(f"s_lshl_b32 s{S_T0}, s{S_COLSUB}, 13")
    a(f"v_lshlrev_b32 v{T1}, 7, v{L}")
    a(f"buffer_load_dword v{V_PFD}, v{T1}, s[28:31], s{S_T0} offen")
    a(f"s_and_b32 s{S_XCD}, s2, 7")
    a(f"s_lshr_b32 s{S_ROWBLK}, s2, 5")
    a(f"s_lshl_b32 s{S_W1024}, s{S_WAVE}, 10")
    a(f"s_and_b32 s{S_WN}, s{S_WAVE}, 1")
    a(f"s_lshl_b32 s{S_T0}, s{S_WN}, 2")
    a(f"v_lshrrev_b32 v{T0}, 4, v{L}")
    a(f"v_add_u32 v{T0}, s{S_T0}, v{T0}")
    a(f"v_and_b32 v{T1}, 7, v{L}")
    a(f"v_xor_b32 v{T0}, v{T0}, v{T1}")
    a(f"v_lshlrev_b32 v{T0}, 4, v{T0}")
    a(f"v_lshrrev_b32 v{T2}, 3, v{L}")
    a(f"s_lshl_b32 s{S_T0}, s{S_ROWBLK}, 8")
    a(f"s_lshl_b32 s{S_T1}, s{S_WAVE}, 3")
    a(f"s_add_u32 s{S_T0}, s{S_T0}, s{S_T1}")
    a(f"v_add_u32 v{T3}, s{S_T0}, v{T2}")
    a(f"v_lshlrev_b32 v{T3}, 11, v{T3}")
    a(f"v_add_u32 v{V_DX}, v{T3}, v{T0}")
    for j in range(1, 4):
        a(f"v_add_u32 v{V_DX + j}, {j * 64 * 2048}, v{V_DX}")
    a(f"v_and_b32 v{T0}, 2, v{T2}")
    a(f"s_lshl_b32 s{S_T0}, s{S_WN}, 2")
    a(f"v_or_b32 v{T0}, s{S_T0}, v{T0}")
    a(f"v_xor_b32 v{T0}, v{T0}, v{T1}")
    a(f"v_lshlrev_b32 v{T0}, 4, v{T0}")
    a(f"v_add_u32 v{T3}, s{S_T1}, v{T2}")
    a(f"v_mul_u32_u24 v{V_DW6}, 6144, v{T3}")
    a(f"v_add_u32 v{V_DW6}, v{V_DW6}, v{T0}")
    a(f"v_mul_u32_u24 v{V_DW7}, 7168, v{T3}")
    a(f"v_add_u32 v{V_DW7}, v{V_DW7}, v{T0}")
    a(f"s_mov_b32 s{S_KX}, 0")
    a(f"s_mul_i32 s{S_E}, s{S_XCD}, 3")
    a(f"s_add_u32 s{S_E}, s{S_E}, s{S_COLSUB}")
    a(f"s_lshl_b32 s{S_T0}, s{S_E}, 8")
    a(f"s_lshl_b32 s{S_T1}, s{S_XCD}, 7")
    a(f"s_add_u32 s{S_T2}, s{S_T1}, 6144")
    a(f"s_cmp_eq_u32 s{S_COLSUB}, 3")
    a(f"s_cselect_b32 s{S_WO}, s{S_T2}, s{S_T0}")
    a(f"s_mov_b32 s{S_WO+1}, s{S_WO}")
    a(f"s_add_u32 s{S_T0}, s{S_T0}, 128")
    a(f"s_lshl_b32 s{S_QKU}, s{S_XCD}, 1")
    a(f"s_and_b32 s{S_T2}, s{S_COLSUB}, 1")
    a(f"s_add_u32 s{S_QKU}, s{S_QKU}, s{S_T2}")
    a(f"s_lshr_b32 s{S_T2}, s{S_COLSUB}, 1")
    a(f"s_lshl_b32 s{S_T2}, s{S_T2}, 4")
    a(f"s_add_u32 s{S_QKU}, s{S_QKU}, s{S_T2}")
    a(f"s_lshl_b32 s{S_T2}, s{S_QKU}, 7")
    a(f"s_lshl_b32 s{S_T1}, s{S_XCD}, 8")
    a(f"s_add_u32 s{S_T1}, s{S_T1}, 4096")
    a(f"s_add_u32 s{S_T3}, s{S_T1}, 128")
    a(f"s_cmp_eq_u32 s{S_COLSUB}, 3")
    a(f"s_cselect_b32 s{S_WO+2}, s{S_T2}, s{S_T0}")
    a(f"s_cselect_b32 s{S_WO+3}, s{S_T1}, s{S_T0}")
    a(f"s_cselect_b32 s{S_WO+4}, s{S_T3}, s{S_T2}")
    a(f"s_lshl_b32 s{S_QKU}, s{S_QKU}, 1")
    a(f"s_add_u32 s{S_QKU}, s{S_QKU}, s{S_WN}")
    a(f"s_and_b32 s{S_T0}, s{S_WAVE}, 1")
    a(f"s_lshl_b32 s{S_T0}, s{S_T0}, 3")
    a(f"s_add_u32 s{S_T0}, s{S_T0}, 32")
    a(f"s_cmp_eq_u32 s{S_COLSUB}, 3")
    a(f"s_cselect_b32 s{S_T1}, 2, 4")
    a(f"s_cmp_ge_u32 s{S_WAVE}, s{S_T1}")
    a(f"s_cselect_b32 s{S_T0}, 8, s{S_T0}")
    a(f"s_mov_b32 s{S_T3}, 7168")
    a(f"s_cselect_b32 s{S_T3}, 6144, s{S_T3}")
    a(f"s_cmp_ge_u32 s{S_WAVE}, 5")
    a(f"s_cselect_b32 s{S_T0}, 0, s{S_T0}")
    a(f"s_cselect_b32 s{S_T3}, 2048, s{S_T3}")
    a(f"s_cmp_eq_u32 s{S_WAVE}, 6")
    a(f"s_cselect_b32 s{S_T0}, 48, s{S_T0}")
    a(f"s_cmp_eq_u32 s{S_WAVE}, 7")
    a(f"s_cselect_b32 s{S_T0}, 16, s{S_T0}")
    a(f"s_load_dwordx2 {sr(S_PF, 2)}, s[0:1], s{S_T0}")
    a(f"s_lshl_b32 s{S_PF+2}, s{S_T3}, 10")
    a(f"s_lshl_b32 s{S_PFS}, s{S_T3}, 6")
    a(f"s_mov_b32 s{S_PFO}, 0")
    for p_ in range(5):
        a(f"s_cmp_eq_u32 s{S_WAVE}, {p_}")
        a(f"s_cselect_b32 s{S_PFO}, s{S_WO+p_}, s{S_PFO}")
    a(f"s_cmp_eq_u32 s{S_WAVE}, 5")
    a(f"s_cselect_b32 s{S_PF+2}, {2048 * 2048}, s{S_PF+2}")
    a(f"s_cselect_b32 s{S_PFS}, 128, s{S_PFS}")
    a(f"s_cmp_gt_u32 s{S_WAVE}, 5")
    a(f"s_cselect_b32 s{S_PF+2}, 0, s{S_PF+2}")
    a(f"s_mov_b32 s{S_PF+3}, 0x00020000")
    a(f"s_lshl_b32 s{S_T0}, s{S_ROWBLK}, 3")
    a(f"s_lshl_b32 s{S_T1}, s{S_ROWBLK}, 8")
    a(f"s_lshl_b32 s{S_T2}, s{S_COLSUB}, 6")
    a(f"s_add_u32 s{S_T1}, s{S_T1}, s{S_T2}")
    a(f"s_cmp_lt_u32 s{S_WAVE}, 5")
    a(f"s_cselect_b32 s{S_T0}, s{S_T0}, s{S_T1}")
    a(f"s_cselect_b32 s{S_T1}, 7, 63")
    a(f"v_and_b32 v{V_PF}, s{S_T1}, v{L}")
    a(f"v_add_u32 v{V_PF}, s{S_T0}, v{V_PF}")
    a(f"v_mul_lo_u32 v{V_PF}, v{V_PF}, s{S_T3}")
    for dst, nb in ((S_X, 2048 * 2048), (S_QKV, 1024 * 6144), (S_G, 1024 * 7168), (S_U, 1024 * 7168),
                    (S_WS, WS_USED), (S_DBG, 256)):
        a(f"s_mov_b32 s{dst + 2}, {nb}")
        a(f"s_mov_b32 s{dst + 3}, 0x00020000")
    pf = (f"buffer_load_dword v{V_PFD}, v{V_PF}, {sr(S_PF)}, s{S_PFO} offen\n"
          f"s_add_u32 s{S_PFO}, s{S_PFO}, s{S_PFS}")
    a("s_waitcnt lgkmcnt(0)")
    po = ([o[2:] for o in OPT if o.startswith("po")] or ["220"])[0]
    for _ in range(int(po[0])):
        a(pf)
    a(f"s_cmp_eq_u32 s{S_COLSUB}, 3")
    a("s_cbranch_scc1 L_p1_O")

    for variant in ("E", "O"):
        a.label(f"L_p1_{variant}")
        if variant == "E":
            blocks = [S_G, S_U, S_G, S_U, S_QKV]
            tiles = [(V_WB + 0, 0, 0), (V_WB + 1, 0, 0),
                     (V_WA + 0, 0, 0), (V_WA + 1, 0, 0), (V_WA + 0, 8192, 0), (V_WA + 1, 8192, 0),
                     (V_WA + 2, 0, 0), (V_WA + 3, 0, 0), (V_WA + 2, 8192, 0), (V_WA + 3, 8192, 0)]
            hunits = [(2, 4), (6, 8)]
            qk_t, v_t = 0, None
            last_order = [(0, 0), (0, 1), (0, 2), (0, 3), (1, 0), (1, 1)] + [(0, n) for n in range(4, 10)] + \
                         [(1, n) for n in range(2, 10)]
        else:
            blocks = [S_G, S_U, S_QKV, S_QKV, S_QKV]
            tiles = [(V_WB + 0, 16384, 0), (V_WB + 1, 16384, 0),
                     (V_WA + 0, 0, 1), (V_WA + 1, 0, 1), (V_WA + 2, 0, 1), (V_WA + 3, 0, 1),
                     (V_WB + 0, 0, 0), (V_WB + 1, 0, 0), (V_WB + 0, 8192, 0), (V_WB + 1, 8192, 0)]
            hunits = [(6, 8)]
            qk_t, v_t = 0, 2
            last_order = [(0, 0), (0, 1), (0, 2), (0, 3), (1, 0), (1, 1), (1, 2), (1, 3), (0, 4), (1, 4),
                          (0, 5), (1, 5)] + [(k, n) for n in range(6, 10) for k in range(2)]

        def dma_list(buf):
            out = []
            for j in range(4):
                out.append(f"s_add_u32 m0, s{S_W1024}, {XBUF[buf] + j * 8192}\ns_nop 0\n"
                           f"buffer_load_dwordx4 v{V_DX + j}, {sr(S_X)}, s{S_KX} offen lds")
            for p in range(5):
                b = blocks[p]
                vd = V_DW6 if b == S_QKV else V_DW7
                pitch = 6144 if b == S_QKV else 7168
                out.append(f"s_add_u32 m0, s{S_W1024}, {WBASE + buf * WSTRIDE + p * 8192}\ns_nop 0\n"
                           f"buffer_load_dwordx4 v{vd}, {sr(b)}, s{S_WO + p} offen lds\n"
                           f"s_add_u32 s{S_WO + p}, s{S_WO + p}, {64 * pitch}")
            out[3] += f"\ns_add_u32 s{S_KX}, s{S_KX}, 128"
            return out

        for d in dma_list(0):
            a(d)
        for _ in range(int(po[1])):
            a(pf)
        d1 = dma_list(1)
        srd(a, S_GW, 64, 2048)
        if True:
            a(f"s_cmp_eq_u32 s{S_WAVE}, 6")
            a(f"s_cselect_b32 s{S_T0}, 14, 4")
            a(f"s_lshl_b32 s{S_T0}, s{S_T0}, 11")
            a(f"s_mul_i32 s{S_T1}, s{S_T0}, s2")
            a(f"s_add_u32 s{S_T0}, s{S_T0}, s{S_T1}")
            a(f"v_and_b32 v{T0}, 15, v{L}")
            a(f"v_lshlrev_b32 v{T0}, 7, v{T0}")
            a(f"s_cmp_gt_u32 s{S_WAVE}, 5")
            a(f"s_cselect_b32 s{S_PF+2}, s{S_T0}, s{S_PF+2}")
            a(f"s_cselect_b32 s{S_PFO}, s{S_T1}, s{S_PFO}")
            a(f"s_cselect_b32 s{S_PFS}, 2048, s{S_PFS}")
            a("s_cselect_b64 vcc, -1, 0")
            a("s_nop 1")
            a(f"v_cndmask_b32 v{V_PF}, v{V_PF}, v{T0}, vcc")
        a("s_lshr_b32 s65, s2, 6")
        a("s_add_u32 s65, s65, 1")
        a(f"s_lshr_b32 s{S_T0}, s{S_WAVE}, 1")
        a(f"s_lshl_b32 s{S_T0}, s{S_T0}, 13")
        a(f"v_and_b32 v{T1}, 15, v{L}")
        a(f"v_lshlrev_b32 v{T1}, 7, v{T1}")
        a(f"v_add_u32 v{T3}, s{S_T0}, v{T1}")
        a(f"v_lshrrev_b32 v{T1}, 1, v{L}")
        a(f"v_and_b32 v{T1}, 7, v{T1}")
        a(f"v_lshrrev_b32 v{T4}, 4, v{L}")
        a(f"v_xor_b32 v{T1}, v{T1}, v{T4}")
        a(f"v_lshlrev_b32 v{T1}, 4, v{T1}")
        a(f"v_add_u32 v{V_XA}, v{T3}, v{T1}")
        a(f"v_xor_b32 v{V_XA+1}, 64, v{V_XA}")
        a(f"v_lshlrev_b32 v{T4}, 10, v{T4}")
        a(f"v_lshrrev_b32 v{T1}, 2, v{L}")
        a(f"v_and_b32 v{T1}, 3, v{T1}")
        a(f"v_lshlrev_b32 v{T3}, 7, v{T1}")
        a(f"v_add_u32 v{T4}, v{T4}, v{T3}")
        a(f"v_lshlrev_b32 v{T1}, 2, v{L}")
        a(f"v_and_b32 v{T1}, 0x60, v{T1}")
        a(f"v_add_u32 v{T4}, v{T4}, v{T1}")
        a(f"v_and_b32 v{T1}, 3, v{L}")
        a(f"v_lshlrev_b32 v{T1}, 3, v{T1}")
        a(f"v_add_u32 v{T4}, v{T4}, v{T1}")

        if variant == "E":
            a(f"s_lshl_b32 s{S_T0}, s{S_WN}, 14")
            a(f"s_add_u32 s{S_T0}, s{S_T0}, {WBASE}")
            a(f"s_mov_b32 s{S_T1}, {WBASE + 4 * 8192}")
            a(f"s_lshl_b32 s{S_FU}, s{S_E}, 2")
            a(f"s_lshl_b32 s{S_T2}, s{S_WN}, 1")
            a(f"s_add_u32 s{S_FU}, s{S_FU}, s{S_T2}")
        else:
            a(f"s_lshl_b32 s{S_T0}, s{S_WN}, 13")
            a(f"s_add_u32 s{S_T0}, s{S_T0}, {WBASE + 3 * 8192}")
            a(f"s_mov_b32 s{S_T1}, {WBASE}")
            a(f"s_lshl_b32 s{S_FU}, s{S_XCD}, 1")
            a(f"s_add_u32 s{S_FU}, s{S_FU}, 96")
            a(f"s_add_u32 s{S_FU}, s{S_FU}, s{S_WN}")
            a(f"s_lshl_b32 s{S_VU}, s{S_XCD}, 2")
            a(f"s_lshl_b32 s{S_T2}, s{S_WN}, 1")
            a(f"s_add_u32 s{S_VU}, s{S_VU}, s{S_T2}")
        for q in range(4):
            a(f"v_xor_b32 v{V_WA + q}, {q << 5}, v{T4}")
            a(f"v_add_u32 v{V_WA + q}, s{S_T0}, v{V_WA + q}")
        a(f"s_lshl_b32 s{S_T2}, s{S_WN}, 6")
        a(f"v_xor_b32 v{V_WB}, s{S_T2}, v{T4}")
        a(f"v_add_u32 v{V_WB}, s{S_T1}, v{V_WB}")
        a(f"v_xor_b32 v{V_WB+1}, 32, v{V_WB}")
        a(f"v_lshrrev_b32 v{T1}, 3, v{L}")
        a(f"v_lshlrev_b32 v{T1}, 8, v{T1}")
        a(f"v_and_b32 v{T2}, 7, v{L}")
        a(f"v_lshlrev_b32 v{T2}, 4, v{T2}")
        a(f"v_add_u32 v{V_ST}, v{T1}, v{T2}")
        a(f"s_mov_b32 s{S_NL2E}, {f32bits(-LOG2E):#x}")
        a(f"s_mov_b32 s{S_NL2E+1}, {f32bits(-LOG2E):#x}")
        a(f"s_mov_b32 s{S_ONE}, 1.0")
        a(f"s_mov_b32 s{S_ONE+1}, 1.0")
        a(f"s_lshl_b32 s{S_T0}, s2, 3")
        a(f"s_add_u32 s{S_TOK}, s{S_T0}, s{S_WAVE}")
        for i in range(0, 160, 2):
            a(f"v_mov_b64 {vr(i, 2)}, 0")

        normal_order = [divmod(j, 10) for j in range(20)]

        def wread(buf, j, order=normal_order):
            ks, nt = order[j]
            va, imm, _ = tiles[nt]
            F = WF + (j % 5) * 4
            return [f"ds_read_b64_tr_b16 {vr(F + 2 * t, 2)}, v{va} offset:{buf * WSTRIDE + imm + (32 * ks + 4 * t) * 128}"
                    for t in range(2)]

        def xread(buf, ks, tt):
            return f"ds_read_b128 {vr(XF[ks] + 4 * tt)}, v{V_XA + ks} offset:{XBUF[buf] + tt * 2048}"

        def mfma(j, tt, order=normal_order):
            ks, nt = order[j]
            W = vr(WF + (j % 5) * 4)
            X = vr(XF[ks] + 4 * tt)
            A, B = (X, W) if tiles[nt][2] else (W, X)
            d = vr(acc(nt, tt))
            return f"v_mfma_f32_16x16x32_bf16 {d}, {A}, {B}, {d}"

        a(f"s_lshl_b32 s{S_T0}, s2, 7")
        a(f"s_add_u32 s{S_T0}, s{S_T0}, {FLAG_BASE}")
        a(f"v_mov_b32 v{T0}, 0")
        a(f"buffer_store_dword v{T0}, v{T0}, {WS}, s{S_T0} offen sc1")
        st.stamp(0)
        a(f"s_waitcnt vmcnt({1 + int(po[1])})")
        a("s_barrier")
        st.stamp(1)
        for tt in range(4):
            a(xread(0, 0, tt))
        for j in range(4):
            for r in wread(0, j):
                a(r)
        for d in d1[:2]:
            a(d)
        for _ in range(int(po[2])):
            a(pf)

        def stage(buf, post_barrier=None):
            for j in range(20):
                if j == 16:
                    a("s_waitcnt vmcnt(1) lgkmcnt(0)")
                    a("s_barrier")
                    st.loop_stamp(32, S_CNT, 2, buf)
                    assert not stage.pending
                    stage.pending = dma_list(buf) + [pf]
                    if post_barrier:
                        post_barrier()
                elif j % 2 == 0 and j < 16:
                    a("s_waitcnt lgkmcnt(4)")
                wr = wread(buf, j + 4) if j + 4 < 20 else wread(buf ^ 1, j + 4 - 20)
                xr = []
                if 2 <= j <= 5:
                    xr = [xread(buf, 1, j - 2)]
                if j in (16, 17):
                    xr = [xread(buf ^ 1, 0, 2 * (j - 16)), xread(buf ^ 1, 0, 2 * (j - 16) + 1)]
                dm, dm2 = [], []
                if stage.pending and j not in (16, 17):
                    if 'dma2' in OPT and not xr and j < 16:
                        dm2 = [stage.pending.pop(0)]
                if stage.pending and j not in (16, 17):
                    dm = [stage.pending.pop(0)]
                slots = [wr[:1], wr[1:] + dm2, xr[:1], xr[1:] + dm]
                for tt in range(4):
                    a(mfma(j, tt))
                    for f in slots[tt]:
                        a(f)

        GX, GW_, G0, G1, GA = V_T, V_T + 8, V_T + 16, V_T + 17, V_T + 18

        def events():
            a(f"s_cmp_eq_u32 s{S_CNT}, s65")
            a(f"s_cbranch_scc0 L_p1_{variant}_e0")
            signal(a, C0, G0, f"L_p1_{variant}_e0")
            a(f"s_cmp_eq_u32 s{S_CNT}, 7")
            a(f"s_cbranch_scc0 L_p1_{variant}_e7")
            a(f"v_mov_b32 v{G1}, {C0}")
            a(f"buffer_load_dword v{V_C0}, v{G1}, {DBG}, 0 offen sc1")
            a(f"s_lshl_b32 s{S_T0}, s{S_TOK}, 11")
            a(f"v_lshlrev_b32 v{G0}, 5, v{L}")
            a(f"buffer_load_dwordx4 {vr(GX)}, v{G0}, {sr(S_X)}, s{S_T0} offen")
            a(f"buffer_load_dwordx4 {vr(GX+4)}, v{G0}, {sr(S_X)}, s{S_T0} offen offset:16")
            a(f"buffer_load_dwordx4 {vr(GW_)}, v{G0}, {sr(S_GW)}, 0 offen")
            a(f"buffer_load_dwordx4 {vr(GW_+4)}, v{G0}, {sr(S_GW)}, 0 offen offset:16")
            for s_ in (S_X, S_QKV, S_G, S_U, S_PF):
                a(f"s_mov_b32 s{s_ + 2}, 0")
            a.label(f"L_p1_{variant}_e7")

        stage.pending = d1[2:] + [pf]
        a(f"s_mov_b32 s{S_CNT}, 0")
        a(".p2align 6")
        a.label(f"L_p1_{variant}_loop")
        saved = list(stage.pending)
        stage(0, post_barrier=events)
        a(f"s_cmp_eq_u32 s{S_CNT}, 7")
        a(f"s_cbranch_scc1 L_p1_{variant}_last")
        stage(1)
        assert stage.pending == saved
        a(f"s_add_u32 s{S_CNT}, s{S_CNT}, 1")
        a(f"s_branch L_p1_{variant}_loop")

        a.label(f"L_p1_{variant}_last")
        a(f"s_lshl_b32 s{S_T0}, s{S_ROWBLK}, 3")
        a(f"s_and_b32 s{S_T1}, s{S_WAVE}, 6")
        a(f"s_add_u32 s{S_T0}, s{S_T0}, s{S_T1}")
        TB = S_T0
        S_A0, S_A1, S_A2 = S_WO, S_WO + 1, S_WO + 2
        a(f"s_cmp_lt_u32 s{S_QKU}, 32")
        a(f"s_cselect_b32 s{S_QS}, {f32bits(QSCALE):#x}, 1.0")
        a(f"s_mov_b32 s{S_QS+1}, s{S_QS}")
        a(f"s_lshl_b32 s{S_T1}, s{S_QKU}, 17")
        a(f"s_lshl_b32 s{S_T2}, s{TB}, 11")
        a(f"s_add_u32 s{S_T1}, s{S_T1}, s{S_T2}")
        a(f"s_sub_u32 s{S_T3}, s{S_QKU}, 32")
        a(f"s_lshl_b32 s{S_T3}, s{S_T3}, 18")
        a(f"s_lshl_b32 s{S_T2}, s{TB}, 12")
        a(f"s_add_u32 s{S_T3}, s{S_T3}, s{S_T2}")
        a(f"s_add_u32 s{S_T3}, s{S_T3}, {KV_BASE}")
        a(f"s_cmp_lt_u32 s{S_QKU}, 32")
        a(f"s_cselect_b32 s{S_A0}, s{S_T1}, s{S_T3}")
        a(f"s_cselect_b32 s{S_T1}, 1, 2")
        a(f"s_lshl_b32 s{S_T1}, s{S_T1}, 11")
        a(f"s_add_u32 s{S_A1}, s{S_A0}, s{S_T1}")
        if v_t is not None:
            a(f"s_lshl_b32 s{S_A2}, s{S_VU}, 18")
            a(f"s_add_u32 s{S_A2}, s{S_A2}, s{S_T2}")
            a(f"s_add_u32 s{S_A2}, s{S_A2}, {KV_BASE + 2048}")

        def pack_store(r0, r1, soff, imm, pre=()):
            return list(pre) + [
                f"v_cvt_pk_bf16_f32 v{r0}, v{r0}, v{r0+1}", f"v_cvt_pk_bf16_f32 v{r0+1}, v{r0+2}, v{r0+3}",
                f"v_cvt_pk_bf16_f32 v{r0+2}, v{r1}, v{r1+1}", f"v_cvt_pk_bf16_f32 v{r0+3}, v{r1+2}, v{r1+3}",
                f"buffer_store_dwordx4 {vr(r0)}, v{V_ST}, {WS}, s{soff} offen offset:{imm} sc1"]

        done_at = {}
        for j, (ks, nt) in enumerate(last_order):
            done_at[nt] = j
        jobs = []
        for tt in range(4):
            pre = [f"v_pk_mul_f32 {vr(acc(qk_t + t, tt) + 2*h, 2)}, {vr(acc(qk_t + t, tt) + 2*h, 2)}, {sr(S_QS, 2)}"
                   for t in range(2) for h in range(2)]
            jobs.append((done_at[qk_t + 1] + 3, pack_store(acc(qk_t, tt), acc(qk_t + 1, tt),
                                                           S_A0 if tt < 2 else S_A1, (tt & 1) * 128, pre)))
        if v_t is not None:
            for n in range(4):
                vi, e = divmod(n, 2)
                for m in range(2):
                    pre = [f"s_add_u32 s{S_T1}, s{S_A2}, {vi * 262144 + m * 4096}"]
                    jobs.append((done_at[v_t + n] + 3, pack_store(acc(v_t + n, 2 * m), acc(v_t + n, 2 * m + 1),
                                                                  S_T1, e * 128, pre)))
        fill = []
        for j in range(20):
            if j % 2 == 0:
                a(f"s_waitcnt lgkmcnt({4 if j <= 16 else 0})")
            while jobs and jobs[0][0] <= j:
                fill += jobs.pop(0)[1]
            wr = wread(1, j + 4, last_order) if j + 4 < 20 else []
            xr = [xread(1, 1, 2 * j), xread(1, 1, 2 * j + 1)] if j < 2 else []
            slots = [xr[:1] + wr[:1], xr[1:] + wr[1:], [], []]
            for tt in range(4):
                a(mfma(j, tt, last_order))
                for f in slots[tt]:
                    a(f)
                for _ in range(2):
                    if fill:
                        a(fill.pop(0))
        assert not jobs
        for f in fill:
            a(f)
        st.stamp(2)
        tmp = XF[0]
        a(f"s_lshr_b32 s{S_T1}, s{TB}, 2")
        a(f"s_mul_i32 s{S_T1}, s{S_T1}, {AF_KB}")
        a(f"s_add_u32 s{S_T1}, s{S_T1}, s{S_FU}")
        a(f"s_lshl_b32 s{S_T1}, s{S_T1}, 13")
        a(f"s_and_b32 s{S_T2}, s{TB}, 2")
        a(f"s_lshl_b32 s{S_T2}, s{S_T2}, 11")
        a(f"s_add_u32 s{S_T1}, s{S_T1}, s{S_T2}")
        a(f"s_add_u32 s{S_H0}, s{S_T1}, {AF_BASE}")
        if variant == "E":
            a(f"s_add_u32 s{S_H1}, s{S_H0}, 8192")
        else:
            a(f"s_mov_b32 s{S_H1}, 0x7f000000")

        def raise_flag():
            a("s_waitcnt vmcnt(0)")
            a("s_barrier")
            a(f"s_cmp_lg_u32 s{S_WAVE}, 0")
            a(f"s_cbranch_scc1 L_p1_{variant}_flag")
            a(f"s_lshl_b32 s{S_T2}, s2, 7")
            a(f"s_add_u32 s{S_T2}, s{S_T2}, {FLAG_BASE}")
            a(f"v_mov_b32 v{G0}, 1")
            a(f"v_mov_b32 v{G1}, 0")
            a("s_mov_b64 exec, 1")
            a(f"buffer_store_dword v{G0}, v{G1}, {WS}, s{S_T2} offen sc1")
            a("s_mov_b64 exec, -1")
            a.label(f"L_p1_{variant}_flag")
            st.stamp(3)

        ftp = FLAG_TP_E if variant == "E" else FLAG_TP_O
        if ftp < 0:
            raise_flag()
        for ui, (gt, ut) in enumerate(hunits):
            for tp in range(2):
                regs = []
                for tt in (2 * tp, 2 * tp + 1):
                    for t in range(2):
                        regs.append((acc(gt + t, tt), acc(ut + t, tt)))
                tb = tmp + tp * 16
                for i, (G, U) in enumerate(regs):
                    for h in range(2):
                        a(f"v_pk_mul_f32 {vr(tb + 4*i + 2*h, 2)}, {vr(G + 2*h, 2)}, {sr(S_NL2E, 2)}")
                for r in range(16):
                    a(f"v_exp_f32 v{tb + r}, v{tb + r}")
                for r in range(8):
                    a(f"v_pk_add_f32 {vr(tb + 2*r, 2)}, {vr(tb + 2*r, 2)}, {sr(S_ONE, 2)}")
                for r in range(16):
                    a(f"v_rcp_f32 v{tb + r}, v{tb + r}")
                for i, (G, U) in enumerate(regs):
                    for h in range(2):
                        a(f"v_pk_mul_f32 {vr(G + 2*h, 2)}, {vr(G + 2*h, 2)}, {vr(tb + 4*i + 2*h, 2)}")
                for i, (G, U) in enumerate(regs):
                    for h in range(2):
                        a(f"v_pk_mul_f32 {vr(G + 2*h, 2)}, {vr(G + 2*h, 2)}, {vr(U + 2*h, 2)}")
                for tt in (2 * tp, 2 * tp + 1):
                    P = V_H + (ui * 4 + tt) * 4
                    r0, r1 = acc(gt, tt), acc(gt + 1, tt)
                    a(f"v_cvt_pk_bf16_f32 v{P}, v{r0}, v{r0+1}")
                    a(f"v_cvt_pk_bf16_f32 v{P+1}, v{r0+2}, v{r0+3}")
                    a(f"v_cvt_pk_bf16_f32 v{P+2}, v{r1}, v{r1+1}")
                    a(f"v_cvt_pk_bf16_f32 v{P+3}, v{r1+2}, v{r1+3}")
                if ui == 0 and tp == ftp:
                    raise_flag()
        if variant == "E":
            a("s_branch L_p1_gate")

    a.label("L_p1_gate")
    a(f"v_mov_b32 v{GA}, 0")
    for i in range(8):
        a(f"v_lshlrev_b32 v{G0}, 16, v{GX+i}")
        a(f"v_lshlrev_b32 v{G1}, 16, v{GW_+i}")
        a(f"v_mul_f32 v{G0}, v{G0}, v{G1}")
        a(f"v_and_b32 v{GX+i}, 0xffff0000, v{GX+i}")
        a(f"v_and_b32 v{GW_+i}, 0xffff0000, v{GW_+i}")
        a(f"v_mul_f32 v{GX+i}, v{GX+i}, v{GW_+i}")
        a(f"v_cvt_pk_bf16_f32 v{G0}, v{G0}, v{GX+i}")
        a(f"v_lshlrev_b32 v{G1}, 16, v{G0}")
        a(f"v_and_b32 v{G0}, 0xffff0000, v{G0}")
        a(f"v_add_f32 v{GA}, v{GA}, v{G1}")
        a(f"v_add_f32 v{GA}, v{GA}, v{G0}")
    for dpp in ("row_shr:1 bound_ctrl:0", "row_shr:2 bound_ctrl:0", "row_shr:4 bound_ctrl:0", "row_shr:8 bound_ctrl:0",
                "row_bcast:15 row_mask:0xa", "row_bcast:31 row_mask:0xc"):
        a("s_nop 1")
        a(f"v_add_f32_dpp v{GA}, v{GA}, v{GA} {dpp}")
    a(f"v_cvt_pk_bf16_f32 v{G0}, v{GA}, v{GA}")
    a(f"v_and_b32 v{G0}, 0xffff0000, v{G0}")
    a(f"v_mul_f32 v{G0}, s{S_NL2E}, v{G0}")
    a(f"v_exp_f32 v{G0}, v{G0}")
    a("s_nop 0")
    a(f"v_add_f32 v{G0}, 1.0, v{G0}")
    a(f"v_rcp_f32 v{G0}, v{G0}")
    a("s_nop 0")
    a(f"v_cvt_pk_bf16_f32 v{G0}, v{G0}, v{G0}")
    a(f"v_and_b32 v{G0}, 0xffff0000, v{G0}")
    a(f"v_sub_f32 v{G1}, 1.0, v{G0}")
    a(f"v_cvt_pk_bf16_f32 v{G1}, v{G1}, v{G1}")
    a(f"v_and_b32 v{G1}, 0xffff0000, v{G1}")
    a(f"s_lshl_b32 s{S_T1}, s{S_TOK}, 3")
    a(f"s_add_u32 s{S_T1}, s{S_T1}, {G_BASE}")
    a(f"v_mov_b32 v{GA}, 0")
    a("s_mov_b32 exec_lo, 0")
    a("s_mov_b32 exec_hi, 0x80000000")
    a(f"buffer_store_dwordx2 {vr(G0, 2)}, v{GA}, {WS}, s{S_T1} offen sc1")
    a("s_mov_b64 exec, -1")
    st.stamp(4)


RB, STG, NB = 65536, 32768, 8
SW = 61440
SW_G, SW_A, SW_R = SW + 32, SW + 36, SW + 40
PART = [65536, 98304, 131072, 0]


def lds_arrive(a, word, vt, label):
    a(f"v_mov_b32 v{vt}, {word}")
    a(f"v_mov_b32 v{vt + 1}, 1")
    a("s_mov_b64 exec, 1")
    a(f"ds_add_rtn_u32 v{vt + 1}, v{vt}, v{vt + 1}")
    a("s_waitcnt lgkmcnt(0)")
    a(f"v_readfirstlane_b32 s80, v{vt + 1}")
    a("s_mov_b64 exec, -1")
    a("s_cmp_eq_u32 s80, 3")
    a(f"s_cbranch_scc0 {label}")


def global_arrive(a, off, vt, label):
    a(f"v_mov_b32 v{vt}, 1")
    a(f"v_mov_b32 v{vt + 1}, {off}")
    a("s_mov_b64 exec, 1")
    a(f"buffer_atomic_add v{vt}, v{vt + 1}, {DBG}, 0 offen sc0 sc1")
    a("s_waitcnt vmcnt(0)")
    a(f"v_readfirstlane_b32 s80, v{vt}")
    a("s_mov_b64 exec, -1")
    a("s_cmp_eq_u32 s80, 255")
    a(f"s_cbranch_scc0 {label}")
    a(f"v_mov_b32 v{vt}, 1")
    a("s_mov_b64 exec, 1")
    a(f"buffer_store_dword v{vt}, v{vt + 1}, {DBG}, 0 offen offset:128 sc1")
    a("s_mov_b64 exec, -1")


def lds_wait(a, label, word, value, vt, scnt):
    a(f"v_mov_b32 v{vt}, {word}")
    a(f"s_mov_b32 s{scnt}, 0")
    a.label(label)
    a(f"ds_read_b32 v{vt + 1}, v{vt}")
    a("s_waitcnt lgkmcnt(0)")
    a(f"v_cmp_gt_u32 vcc, {value}, v{vt + 1}")
    a("s_cmp_eq_u64 vcc, 0")
    a(f"s_cbranch_scc1 {label}_ok")
    a("s_sleep 2")
    a(f"s_add_u32 s{scnt}, s{scnt}, 1")
    a(f"s_cmp_lt_u32 s{scnt}, {SPIN_LIMIT * 8}")
    a(f"s_cbranch_scc1 {label}")
    a.label(f"{label}_ok")


def phase23(a, st):
    L = V_LANE
    S_KVD, S_OUT, S_UW = 12, 16, 20
    S_HEAD, S_QBLK, S_SRC, S_LDS, S_CNT = 24, 25, 26, 27, 28
    S_T0, S_T1, S_T2 = 29, 30, 31
    S_TOKB, S_KVB, S_BIG, S_SP = 32, 33, 34, 35
    S_MB, S_NB, S_KQ, S_ASRC, S_WSRC, S_STEPS, S_GOFF = 40, 41, 42, 43, 44, 45, 46
    S_RD = 47
    S_WL = 48
    V_DA, V_UA, V_UR = 232, 233, 234
    V_G = 240
    V_X = 248
    BUF = [128, 176]

    a(f"s_cmp_lt_u32 s{S_WAVE}, 4")
    a(f"s_cselect_b32 s{S_T0}, 16, 48")
    a(f"s_load_dwordx2 {sr(S_UW, 2)}, s[0:1], s{S_T0}")
    a(f"s_mov_b32 s{S_UW + 2}, {3584 * 2048}")
    a(f"s_cselect_b32 s{S_UW + 2}, {1024 * 2048}, s{S_UW + 2}")
    a(f"s_mov_b32 s{S_UW + 3}, 0x00020000")
    a(f"s_load_dwordx2 {sr(S_OUT, 2)}, s[0:1], 64")
    a(f"s_and_b32 s{S_T0}, s2, 7")
    a(f"s_lshl_b32 s{S_HEAD}, s{S_T0}, 2")
    a(f"s_lshr_b32 s{S_T1}, s2, 3")
    a(f"s_and_b32 s{S_T2}, s{S_T1}, 3")
    a(f"s_add_u32 s{S_HEAD}, s{S_HEAD}, s{S_T2}")
    a(f"s_lshr_b32 s{S_QBLK}, s2, 5")
    a(f"s_lshl_b32 s36, s{S_HEAD}, 2")
    a("s_and_b32 s36, s36, 8")
    a(f"s_add_u32 s36, s36, s{S_T0}")
    a("s_add_u32 s37, s36, 16")
    a(f"s_add_u32 s38, s{S_T0}, 24")
    a(f"s_lshl_b32 s39, s{S_QBLK}, 5")
    a("s_add_u32 s36, s36, s39")
    X0, X1, X2, X3, X4, X5 = (V_X + i for i in range(6))
    a(f"s_cmp_lg_u32 s{S_WAVE}, 4")
    a("s_cbranch_scc1 L_p2_polled")
    a(f"v_and_b32 v{X0}, 7, v{L}")
    a(f"v_lshlrev_b32 v{X0}, 5, v{X0}")
    a(f"v_add_u32 v{X1}, s37, v{X0}")
    a(f"v_add_u32 v{X2}, s38, v{X0}")
    a(f"v_mov_b32 v{X4}, s36")
    a(f"v_cmp_gt_u32 vcc, 16, v{L}")
    a("s_nop 1")
    a(f"v_cndmask_b32 v{X4}, v{X4}, v{X2}, vcc")
    a(f"v_cmp_gt_u32 vcc, 8, v{L}")
    a("s_nop 1")
    a(f"v_cndmask_b32 v{X4}, v{X4}, v{X1}, vcc")
    a(f"v_lshlrev_b32 v{X4}, 7, v{X4}")
    a(f"v_add_u32 v{X4}, {FLAG_BASE}, v{X4}")
    a(f"v_mov_b32 v{X0}, {C0}")
    a(f"v_mov_b32 v{X1}, 0x100")
    ld0 = f"buffer_load_dword v{V_C0}, v{X0}, {DBG}, 0 offen sc1"
    ld1 = f"buffer_load_dword v{X2}, v{X4}, {WS}, 0 offen sc1"
    spin(a, "L_p2_c0", ld0, V_C0, f"v{X1}", S_SP)
    a(ld1)
    a("s_waitcnt vmcnt(0)")
    spin(a, "L_p2_fl", ld1, X2, 1, S_SP)
    a.label("L_p2_polled")
    a(f"s_lshr_b32 s{S_MB}, s{S_T0}, 1")
    a(f"s_lshl_b32 s{S_MB}, s{S_MB}, 2")
    a(f"s_add_u32 s{S_MB}, s{S_MB}, s{S_T2}")
    a(f"s_and_b32 s{S_NB}, s{S_T0}, 1")
    a(f"s_lshl_b32 s{S_NB}, s{S_NB}, 3")
    a(f"s_add_u32 s{S_NB}, s{S_NB}, s{S_QBLK}")
    a(f"s_and_b32 s{S_KQ}, s{S_WAVE}, 3")
    a(f"s_cmp_lt_u32 s{S_WAVE}, 4")
    a(f"s_cselect_b32 s{S_T1}, {AF_O}, 0")
    a(f"s_cselect_b32 s{S_STEPS}, 4, 14")
    a(f"s_cselect_b32 s{S_GOFF}, 0, 4")
    a(f"s_add_u32 s{S_T1}, s{S_T1}, s{S_KQ}")
    a(f"s_mul_i32 s{S_ASRC}, s{S_MB}, {AF_KB}")
    a(f"s_add_u32 s{S_ASRC}, s{S_ASRC}, s{S_T1}")
    a(f"s_lshl_b32 s{S_ASRC}, s{S_ASRC}, 13")
    a(f"s_add_u32 s{S_ASRC}, s{S_ASRC}, {AF_BASE}")
    a(f"s_lshl_b32 s{S_WSRC}, s{S_KQ}, 16")
    a(f"s_lshl_b32 s{S_T1}, s{S_NB}, 7")
    a(f"s_add_u32 s{S_WSRC}, s{S_WSRC}, s{S_T1}")
    a(f"s_lshl_b32 s{S_WL}, s{S_KQ}, 13")
    a(f"s_add_u32 s{S_T1}, s{S_WL}, {RB}")
    a(f"s_cmp_lt_u32 s{S_WAVE}, 4")
    a(f"s_cselect_b32 s{S_WL}, s{S_T1}, s{S_WL}")
    a(f"v_lshrrev_b32 v{X0}, 3, v{L}")
    a(f"v_and_b32 v{X1}, 6, v{X0}")
    a(f"v_and_b32 v{X2}, 7, v{L}")
    a(f"v_xor_b32 v{X1}, v{X1}, v{X2}")
    a(f"v_lshlrev_b32 v{X1}, 4, v{X1}")
    a(f"v_lshlrev_b32 v{X0}, 11, v{X0}")
    a(f"v_add_u32 v{V_UA}, v{X0}, v{X1}")
    a(f"v_lshrrev_b32 v{X0}, 2, v{L}")
    a(f"v_lshlrev_b32 v{X0}, 7, v{X0}")
    a(f"v_lshlrev_b32 v{X1}, 2, v{L}")
    a(f"v_and_b32 v{X1}, 0x60, v{X1}")
    a(f"v_add_u32 v{X0}, v{X0}, v{X1}")
    a(f"v_and_b32 v{X1}, 3, v{L}")
    a(f"v_lshlrev_b32 v{X1}, 3, v{X1}")
    a(f"v_add_u32 v{X0}, v{X0}, v{X1}")
    a(f"v_add_u32 v{V_UR}, s{S_WL}, v{X0}")
    for q in range(1, 4):
        a(f"v_xor_b32 v{V_UR + q}, {q << 5}, v{V_UR}")
    a(f"s_lshl_b32 s{S_T1}, s{S_MB}, 10")
    a(f"s_add_u32 s{S_GOFF}, s{S_GOFF}, s{S_T1}")
    a(f"s_add_u32 s{S_GOFF}, s{S_GOFF}, {G_BASE}")
    a(f"v_add_u32 v{V_DA}, 4096, v{V_L16}")
    a(f"s_mov_b32 s{S_OUT + 2}, {2048 * 2048}")
    a(f"s_mov_b32 s{S_OUT + 3}, 0x00020000")
    a(f"s_lshl_b32 s{S_KVB}, s{S_HEAD}, 18")
    a(f"s_add_u32 s{S_KVB}, s{S_KVB}, {KV_BASE}")
    a(f"s_lshl_b32 s{S_LDS}, s{S_KQ}, 13")
    a(f"s_add_u32 s{S_SRC}, s{S_KVB}, s{S_LDS}")
    a(f"s_add_u32 s{S_LDS}, s{S_LDS}, {RB}")
    srd(a, S_KVD, S_WS, WS_USED)
    a(f"s_add_u32 s{S_KVD + 2}, s{S_KVB}, {8 * STG}")
    a(f"s_lshl_b32 s{S_T1}, s{S_KQ}, 13")
    a(f"v_add_u32 v{X5}, s{S_T1}, v{V_L16}")
    a(f"s_cmp_lt_u32 s{S_WAVE}, 4")
    a("s_cbranch_scc0 L_g_start")

    V_K, V_V, V_ONE = 0, 8, 16
    V_OS, V_KA, V_VA, V_PG, V_PW = 20, 21, 22, 23, 24
    V_PR = 28

    def R(q):
        b = 32 + q * 88
        return dict(Q=b, S=[b + 8, b + 24], C=b + 40, O=b + 56, P=b + 72, L=b + 80, M=b + 84)
    V_T = 208

    for k in range(8):
        a(f"ds_write_b128 v{X5}, {vr(V_H + 4 * k)} offset:{k * 1024}")
    a(f"v_mov_b32 v{V_PW}, {SW}")
    for i in range(4):
        a(f"v_mov_b32 v{V_PR + i}, 0")
    a(f"ds_write_b128 v{V_PW}, {vr(V_PR)}")
    a(f"ds_write_b128 v{V_PW}, {vr(V_PR)} offset:16")
    a(f"ds_write_b128 v{V_PW}, {vr(V_PR)} offset:32")
    a(f"s_lshl_b32 s{S_TOKB}, s{S_QBLK}, 3")
    a(f"s_lshl_b32 s{S_T1}, s{S_WAVE}, 1")
    a(f"s_add_u32 s{S_TOKB}, s{S_TOKB}, s{S_T1}")
    a(f"v_and_b32 v{X0}, 7, v{L}")
    a(f"v_lshrrev_b32 v{X1}, 1, v{L}")
    a(f"v_and_b32 v{X1}, 8, v{X1}")
    a(f"v_or_b32 v{X0}, v{X0}, v{X1}")
    a(f"v_lshrrev_b32 v{X1}, 3, v{L}")
    a(f"v_and_b32 v{X1}, 1, v{X1}")
    a(f"v_lshlrev_b32 v{V_OS}, 10, v{X1}")
    a(f"v_lshlrev_b32 v{X0}, 4, v{X0}")
    a(f"v_add_u32 v{V_OS}, v{V_OS}, v{X0}")
    a(f"v_lshrrev_b32 v{X0}, 5, v{L}")
    a(f"v_lshlrev_b32 v{X0}, 8, v{X0}")
    a(f"v_add_u32 v{V_OS}, v{V_OS}, v{X0}")
    a(f"v_lshrrev_b32 v{X0}, 4, v{L}")
    a(f"v_lshrrev_b32 v{X1}, 2, v{L}")
    a(f"v_xor_b32 v{X0}, v{X0}, v{X1}")
    a(f"v_and_b32 v{X0}, 1, v{X0}")
    a(f"v_cmp_eq_u32 vcc, 0, v{X0}")
    a(f"v_mov_b32 v{X1}, 0x3f803f80")
    a("s_nop 1")
    a(f"v_cndmask_b32 v{V_ONE}, 0, v{X1}, vcc")
    for i in range(1, 4):
        a(f"v_mov_b32 v{V_ONE + i}, v{V_ONE}")
    a("s_waitcnt lgkmcnt(0)")
    for q in range(2):
        r = R(q)
        for i in range(0, 16, 2):
            a(f"v_mov_b64 {vr(r['O'] + i, 2)}, 0")
        for i in range(0, 4, 2):
            a(f"v_mov_b64 {vr(r['L'] + i, 2)}, 0")
            a(f"v_mov_b64 {vr(r['P'] + 4 + i, 2)}, 0")
    a(f"v_mov_b64 {vr(V_V + 4, 2)}, 0")
    a(f"v_mov_b64 {vr(V_V + 6, 2)}, 0")
    a(f"v_add_u32 v{V_KA}, {RB}, v{V_L16}")
    a(f"v_mov_b32 v{V_VA}, v{V_KA}")
    a(f"s_mov_b32 s{S_RD}, {RB}")
    a(f"s_lshl_b32 s{S_T1}, s{S_WAVE}, 2")
    a(f"s_add_u32 s{S_T1}, s{S_T1}, {SW}")
    a(f"v_mov_b32 v{V_PW + 1}, s{S_T1}")
    a(f"v_mov_b32 v{V_PG}, 0")
    a(f"s_mov_b32 s{S_BIG}, {f32bits(2.0 ** 60):#x}")
    a(f"s_mov_b32 s{S_SP}, 0")
    a(f"s_lshl_b32 s{S_T0}, s{S_HEAD}, 17")
    a(f"s_lshl_b32 s{S_T1}, s{S_TOKB}, 11")
    a(f"s_add_u32 s{S_T0}, s{S_T0}, s{S_T1}")
    a("s_barrier")
    st.stamp(5)
    a("s_setprio 2")

    def dma_half(h):
        out = [f"s_add_u32 m0, s{S_LDS}, {h * 4096}\ns_add_u32 s{S_T1}, s{S_SRC}, {h * 4096}\n"
               f"buffer_load_dwordx4 v{V_L16}, {sr(S_KVD)}, s{S_T1} offen sc1 lds"]
        for i in range(1, 4):
            out.append(f"buffer_load_dwordx4 v{V_L16}, {sr(S_KVD)}, s{S_T1} offen offset:{i * 1024} sc1 lds")
        if h == 1:
            out[3] += (f"\ns_add_u32 s{S_SRC}, s{S_SRC}, {STG}\ns_add_u32 s{S_LDS}, s{S_LDS}, {STG}\n"
                       f"s_sub_u32 s{S_T1}, s{S_LDS}, {3 * STG}\ns_cmp_ge_u32 s{S_LDS}, {RB + 3 * STG}\n"
                       f"s_cselect_b32 s{S_LDS}, s{S_T1}, s{S_LDS}")
        return out

    for q in range(2):
        a(f"buffer_load_dwordx4 {vr(R(q)['Q'])}, v{V_L16}, {WS}, s{S_T0} offen offset:{q * 2048} sc1")
        a(f"buffer_load_dwordx4 {vr(R(q)['Q'] + 4)}, v{V_L16}, {WS}, s{S_T0} offen offset:{q * 2048 + 1024} sc1")
    for x in dma_half(0) + dma_half(1):
        a(x)
    a("s_waitcnt vmcnt(0)")
    a("s_barrier")
    st.stamp(6)

    def rdK(blk):
        o = (blk % NB) * 4096
        return [f"ds_read_b128 {vr(V_K)}, v{V_KA} offset:{o}", f"ds_read_b128 {vr(V_K + 4)}, v{V_KA} offset:{o + 1024}"]

    def rdV(blk):
        o = (blk % NB) * 4096 + 2048
        return [f"ds_read_b128 {vr(V_V)}, v{V_VA} offset:{o}", f"ds_read_b128 {vr(V_V + 4)}, v{V_VA} offset:{o + 1024}"]

    advK = (f"s_add_u32 s{S_RD}, s{S_RD}, {STG}\ns_cmp_ge_u32 s{S_RD}, {RB + 3 * STG}\n"
            f"s_cselect_b32 s{S_RD}, {RB}, s{S_RD}\nv_add_u32 v{V_KA}, s{S_RD}, v{V_L16}")
    advV = f"v_add_u32 v{V_VA}, s{S_RD}, v{V_L16}"

    def rowmax(dst, S, init=None):
        if init is None:
            a(f"v_max3_f32 v{dst}, v{S}, v{S+1}, v{S+2}")
            rest = list(range(3, 16))
        else:
            a(f"v_max3_f32 v{dst}, v{init}, v{S}, v{S+1}")
            rest = list(range(2, 16))
        while len(rest) >= 2:
            a(f"v_max3_f32 v{dst}, v{dst}, v{S + rest[0]}, v{S + rest[1]}")
            rest = rest[2:]
        if rest:
            a(f"v_max_f32 v{dst}, v{dst}, v{S + rest[0]}")

    def crosshalf_max(dst, tmp):
        a(f"v_mov_b32 v{tmp}, v{dst}")
        a("s_nop 1")
        a(f"v_permlane32_swap_b32 v{tmp}, v{dst}")
        a("s_nop 1")
        a(f"v_max_f32 v{dst}, v{dst}, v{tmp}")

    for x in rdK(0):
        a(x)
    a("s_waitcnt lgkmcnt(0)")
    for q in range(2):
        r = R(q)
        a(f"v_mfma_f32_32x32x16_bf16 {vr(r['S'][0], 16)}, {vr(V_K)}, {vr(r['Q'])}, 0")
        a(f"v_mfma_f32_32x32x16_bf16 {vr(r['S'][0], 16)}, {vr(V_K + 4)}, {vr(r['Q'] + 4)}, {vr(r['S'][0], 16)}")
    for x in rdK(1):
        a(x)
    a(rdV(0)[0])
    a(f"s_add_u32 s{S_SRC}, s{S_SRC}, {STG}")
    a(f"s_add_u32 s{S_LDS}, s{S_LDS}, {STG}")
    a("s_nop 12")
    for q in range(2):
        r = R(q)
        rowmax(r['M'], r['S'][0])
        crosshalf_max(r['M'], r['M'] + 1)
        for i in range(16):
            a(f"v_sub_f32 v{r['C'] + i}, 0, v{r['M']}")
        for i in range(16):
            a(f"v_sub_f32 v{r['S'][0] + i}, v{r['S'][0] + i}, v{r['M']}")

    def half_block(i, q, extra):
        extra = list(extra) + ["", "", ""]
        r = R(q)
        Sc, Sn = r['S'][i & 1], r['S'][(i + 1) & 1]
        P, O, Lr = r['P'], r['O'], r['L']
        ex = [f"v_exp_f32 v{Sc + k}, v{Sc + k}" for k in range(16)]
        cv = [f"v_cvt_pk_bf16_f32 v{P + d}, v{Sc + 2*d}, v{Sc + 2*d + 1}" for d in range(8)]
        kr = rdK(i + 2) if q == 1 else ["", ""]
        if q == 0:
            a("s_waitcnt lgkmcnt(1)")
        a(f"v_mfma_f32_32x32x16_bf16 {vr(Sn, 16)}, {vr(V_K)}, {vr(r['Q'])}, {vr(r['C'], 16)}")
        a(kr[0])
        for e in ex[0:3]:
            a(e)
        a(f"v_mfma_f32_32x32x16_bf16 {vr(Sn, 16)}, {vr(V_K + 4)}, {vr(r['Q'] + 4)}, {vr(Sn, 16)}")
        a(kr[1])
        a(extra[0])
        for e in ex[3:6]:
            a(e)
        a(f"v_mfma_f32_32x32x16_bf16 {vr(O, 16)}, {vr(V_V + 4)}, {vr(P + 4)}, {vr(O, 16)}")
        if q == 1:
            a(rdV(i)[1])
        a(ex[6])
        a(ex[7])
        a(cv[0])
        a(cv[1])
        a(f"v_mfma_f32_16x16x32_bf16 {vr(Lr)}, {vr(V_ONE)}, {vr(P + 4)}, {vr(Lr)}")
        a(cv[2])
        a(cv[3])
        a(ex[8])
        a(ex[9])
        if q == 0:
            a("s_waitcnt lgkmcnt(0)")
        if q == 1 and i % NB == NB - 1:
            a(advV)
        a(f"v_mfma_f32_32x32x16_bf16 {vr(O, 16)}, {vr(V_V)}, {vr(P)}, {vr(O, 16)}")
        if q == 1:
            a(rdV(i + 1)[0])
        a(extra[1])
        for e in ex[10:13]:
            a(e)
        a(f"v_mfma_f32_16x16x32_bf16 {vr(Lr)}, {vr(V_ONE)}, {vr(P)}, {vr(Lr)}")
        a(extra[2])
        for e in ex[13:16]:
            a(e)
        for c in cv[4:8]:
            a(c)

    V_PR2 = V_T
    rdprog = f"ds_read_b128 {vr(V_PR)}, v{V_PW}\nds_read_b128 {vr(V_PR2)}, v{V_PW} offset:16"
    a(f"s_mov_b32 s{S_CNT}, 0")
    a(".p2align 6")
    a.label("L_p2_loop")
    dq = dma_half(0) + dma_half(1)
    for i in range(NB):
        ex0, ex1 = [], []
        if i == 1:
            ex0 = ["", f"v_add_u32 v{V_PG}, 1, v{V_PG}\ns_waitcnt vmcnt(0)\nds_write_b32 v{V_PW + 1}, v{V_PG}"]
        if i == 3:
            ex0 = ["", rdprog]
        if i == 4:
            a("s_waitcnt lgkmcnt(1)")
            a.label("L_p2_chk")
            a(f"v_min3_u32 v{V_PR}, v{V_PR}, v{V_PR+1}, v{V_PR+2}")
            a(f"v_min3_u32 v{V_PR}, v{V_PR}, v{V_PR+3}, v{V_PR2}")
            a(f"v_min3_u32 v{V_PR}, v{V_PR}, v{V_PR2+1}, v{V_PR2+2}")
            a(f"v_min_u32 v{V_PR}, v{V_PR}, v{V_PR2+3}")
            a(f"v_cmp_gt_u32 vcc, v{V_PG}, v{V_PR}")
            a("s_cmp_eq_u64 vcc, 0")
            a("s_cbranch_scc0 L_p2_wait")
            a.label("L_p2_go")
            a(f"s_sub_u32 s{S_T0}, s{S_CNT}, 1")
            a(f"s_cmp_lt_u32 s{S_T0}, 5")
            a("s_cselect_b64 vcc, -1, 0")
            st.loop_stamp(48, S_CNT, 1, 0)
        if i >= 4:
            def guard(x, k):
                body = x.split("\n")
                j = [n for n, ln in enumerate(body) if ln.startswith("buffer_load")][0]
                return "\n".join(body[:j] + [f"s_cbranch_vccz L_p2_skip{k}", body[j], f"L_p2_skip{k}:"] + body[j + 1:])
            ex0 = [guard(dq[2 * (i - 4)], 2 * (i - 4))]
            ex1 = [guard(dq[2 * (i - 4) + 1], 2 * (i - 4) + 1)]
        if i == NB - 2:
            a(advK)
        half_block(i, 0, ex0)
        half_block(i, 1, ex1)
    a(f"s_add_u32 s{S_CNT}, s{S_CNT}, 1")
    a(f"s_cmp_lt_u32 s{S_CNT}, 8")
    a("s_cbranch_scc1 L_p2_loop")
    a("s_waitcnt lgkmcnt(0)")
    a("s_nop 0")
    for q in range(2):
        r = R(q)
        a(f"v_mfma_f32_32x32x16_bf16 {vr(r['O'], 16)}, {vr(V_V + 4)}, {vr(r['P'] + 4)}, {vr(r['O'], 16)}")
        a(f"v_mfma_f32_16x16x32_bf16 {vr(r['L'])}, {vr(V_ONE)}, {vr(r['P'] + 4)}, {vr(r['L'])}")
    a("s_nop 15")
    st.stamp(7)
    a(f"s_lshr_b32 s{S_T2}, s{S_TOKB}, 2")
    a(f"s_mul_i32 s{S_T2}, s{S_T2}, {AF_KB}")
    a(f"s_add_u32 s{S_T2}, s{S_T2}, s{S_HEAD}")
    a(f"s_lshl_b32 s{S_T2}, s{S_T2}, 13")
    a(f"s_and_b32 s{S_T1}, s{S_TOKB}, 2")
    a(f"s_lshl_b32 s{S_T1}, s{S_T1}, 11")
    a(f"s_add_u32 s{S_T2}, s{S_T2}, s{S_T1}")
    a(f"s_add_u32 s{S_T2}, s{S_T2}, {AF_BASE + AF_O * 8192}")
    for q in range(2):
        r = R(q)
        O, P = r['O'], r['P']
        a(f"v_max3_f32 v{V_T}, abs(v{O}), abs(v{O+1}), abs(v{O+2})")
        for i in range(3, 15, 2):
            a(f"v_max3_f32 v{V_T}, v{V_T}, abs(v{O+i}), abs(v{O+i+1})")
        a(f"v_max_f32 v{V_T}, v{V_T}, abs(v{O+15})")
        a(f"v_add_f32 v{V_T+1}, v{O}, v{O+1}")
        for i in range(2, 16):
            a(f"v_add_f32 v{V_T+1}, v{V_T+1}, v{O+i}")
        a(f"v_mov_b32 v{V_T+2}, 0x7c000000")
        a(f"v_cmp_lt_f32 vcc, v{V_T}, v{V_T+2}")
        a(f"v_cmp_gt_f32 s[36:37], s{S_BIG}, v{r['L']}")
        a(f"v_cmp_o_f32 s[38:39], v{V_T+1}, v{V_T+1}")
        a("s_and_b64 vcc, vcc, s[36:37]")
        a("s_and_b64 vcc, vcc, s[38:39]")
        a("s_cmp_eq_u64 vcc, exec")
        a(f"s_cbranch_scc0 L_p2_slow{q}")
        a.label(f"L_p2_fin{q}")
        a(f"v_rcp_f32 v{V_T}, v{r['L']}")
        a("s_nop 0")
        for i in range(16):
            a(f"v_mul_f32 v{O + i}, v{O + i}, v{V_T}")
        for d in range(8):
            a(f"v_cvt_pk_bf16_f32 v{P + d}, v{O + 2*d}, v{O + 2*d + 1}")
        a(f"buffer_store_dwordx4 {vr(P)}, v{V_OS}, {WS}, s{S_T2} offen sc1")
        a(f"buffer_store_dwordx4 {vr(P + 4)}, v{V_OS}, {WS}, s{S_T2} offen offset:512 sc1")
        if q == 0:
            a(f"s_add_u32 s{S_T2}, s{S_T2}, 2048")
    a("s_setprio 0")
    a("s_waitcnt vmcnt(0)")
    lds_arrive(a, SW_A, X0, "L_a_sig")
    global_arrive(a, C3, X0, "L_a_sig")
    a.label("L_a_sig")
    st.stamp(8)
    a(f"v_and_b32 v{X0}, 1, v{L}")
    a(f"v_lshlrev_b32 v{X0}, 2, v{X0}")
    a(f"v_add_u32 v{X0}, {C2}, v{X0}")
    a("s_branch L_gemm")

    a.label("L_p2_wait")
    a(f"s_add_u32 s{S_SP}, s{S_SP}, 1")
    a(f"s_cmp_gt_u32 s{S_SP}, {SPIN_LIMIT * 8}")
    a("s_cbranch_scc1 L_p2_go")
    a("s_sleep 1")
    a(rdprog)
    a("s_waitcnt lgkmcnt(0)")
    a("s_branch L_p2_chk")

    for q in range(2):
        r = R(q)
        S0, Q = r['S'][0], r['Q']
        a.label(f"L_p2_slow{q}")
        a(f"v_mov_b32 v{V_T}, 0xff800000")
        a(f"s_mov_b32 s{S_T0}, s{S_KVB}")
        a(f"s_mov_b32 s{S_CNT}, 0")
        a.label(f"L_p2_slow_max{q}")
        a(f"buffer_load_dwordx4 {vr(V_K)}, v{V_L16}, {WS}, s{S_T0} offen sc1")
        a(f"buffer_load_dwordx4 {vr(V_K + 4)}, v{V_L16}, {WS}, s{S_T0} offen offset:1024 sc1")
        a("s_waitcnt vmcnt(0)")
        a(f"v_mfma_f32_32x32x16_bf16 {vr(S0, 16)}, {vr(V_K)}, {vr(Q)}, 0")
        a(f"v_mfma_f32_32x32x16_bf16 {vr(S0, 16)}, {vr(V_K + 4)}, {vr(Q + 4)}, {vr(S0, 16)}")
        a("s_nop 15")
        rowmax(V_T, S0, init=V_T)
        a(f"s_add_u32 s{S_T0}, s{S_T0}, 4096")
        a(f"s_add_u32 s{S_CNT}, s{S_CNT}, 1")
        a(f"s_cmp_lt_u32 s{S_CNT}, 64")
        a(f"s_cbranch_scc1 L_p2_slow_max{q}")
        crosshalf_max(V_T, V_T + 1)
        for i in range(16):
            a(f"v_sub_f32 v{r['C'] + i}, 0, v{V_T}")
            a(f"v_mov_b32 v{r['O'] + i}, 0")
        for i in range(4):
            a(f"v_mov_b32 v{r['L'] + i}, 0")
        a(f"s_mov_b32 s{S_T0}, s{S_KVB}")
        a(f"s_mov_b32 s{S_CNT}, 0")
        a.label(f"L_p2_slow_pv{q}")
        a(f"buffer_load_dwordx4 {vr(V_K)}, v{V_L16}, {WS}, s{S_T0} offen sc1")
        a(f"buffer_load_dwordx4 {vr(V_K + 4)}, v{V_L16}, {WS}, s{S_T0} offen offset:1024 sc1")
        a(f"buffer_load_dwordx4 {vr(V_V)}, v{V_L16}, {WS}, s{S_T0} offen offset:2048 sc1")
        a(f"buffer_load_dwordx4 {vr(V_V + 4)}, v{V_L16}, {WS}, s{S_T0} offen offset:3072 sc1")
        a("s_waitcnt vmcnt(0)")
        a(f"v_mfma_f32_32x32x16_bf16 {vr(S0, 16)}, {vr(V_K)}, {vr(Q)}, {vr(r['C'], 16)}")
        a(f"v_mfma_f32_32x32x16_bf16 {vr(S0, 16)}, {vr(V_K + 4)}, {vr(Q + 4)}, {vr(S0, 16)}")
        a("s_nop 15")
        for k in range(16):
            a(f"v_exp_f32 v{S0 + k}, v{S0 + k}")
        a("s_nop 0")
        for d in range(8):
            a(f"v_cvt_pk_bf16_f32 v{r['P'] + d}, v{S0 + 2*d}, v{S0 + 2*d + 1}")
        a("s_nop 1")
        a(f"v_mfma_f32_32x32x16_bf16 {vr(r['O'], 16)}, {vr(V_V)}, {vr(r['P'])}, {vr(r['O'], 16)}")
        a(f"v_mfma_f32_32x32x16_bf16 {vr(r['O'], 16)}, {vr(V_V + 4)}, {vr(r['P'] + 4)}, {vr(r['O'], 16)}")
        a(f"v_mfma_f32_16x16x32_bf16 {vr(r['L'])}, {vr(V_ONE)}, {vr(r['P'])}, {vr(r['L'])}")
        a(f"v_mfma_f32_16x16x32_bf16 {vr(r['L'])}, {vr(V_ONE)}, {vr(r['P'] + 4)}, {vr(r['L'])}")
        a("s_nop 15")
        a(f"s_add_u32 s{S_T0}, s{S_T0}, 4096")
        a(f"s_add_u32 s{S_CNT}, s{S_CNT}, 1")
        a(f"s_cmp_lt_u32 s{S_CNT}, 64")
        a(f"s_cbranch_scc1 L_p2_slow_pv{q}")
        a(f"s_branch L_p2_fin{q}")

    a.label("L_g_start")
    a("s_waitcnt lgkmcnt(0)")
    a("s_barrier")
    st.stamp(5)
    for k in range(8):
        a(f"ds_read_b128 {vr(4 * k)}, v{X5} offset:{k * 1024}")
    a(f"s_add_u32 s{S_SRC}, s{S_SRC}, {STG}")
    a(f"s_add_u32 s{S_LDS}, s{S_LDS}, {STG}")
    a("s_waitcnt vmcnt(0) lgkmcnt(0)")
    for x in dma_half(0) + dma_half(1):
        a(x)
    a("s_barrier")
    st.stamp(6)
    for x in dma_half(0) + dma_half(1):
        a(x)
    TH = int(([o[2:] for o in OPT if o.startswith("th")] or ["8"])[0])
    a(f"s_lshl_b32 s{S_T1}, s{S_WAVE}, 2")
    a(f"s_add_u32 s{S_T1}, s{S_T1}, {SW}")
    a(f"v_mov_b32 v{X0}, s{S_T1}")
    a(f"v_mov_b32 v{X1}, 99")
    st.stamp(12)
    a("s_waitcnt vmcnt(0)")
    a(f"ds_write_b32 v{X0}, v{X1}")
    st.stamp(13)
    for k in range(8):
        a(f"buffer_store_dwordx4 {vr(V_H + 4 * k)}, v{V_L16}, {WS}, s{(S_H0, S_H1)[k // 4]} offen offset:{(k % 4) * 1024} sc1")
        a(f"s_waitcnt vmcnt({TH})")
    a(f"s_sub_u32 s{S_H0}, s{S_H0}, {8 * AF_KB * 1024}")
    a(f"s_sub_u32 s{S_H1}, s{S_H1}, {8 * AF_KB * 1024}")
    for k in range(8):
        a(f"buffer_store_dwordx4 {vr(4 * k)}, v{V_L16}, {WS}, s{(S_H0, S_H1)[k // 4]} offen offset:{(k % 4) * 1024} sc1")
        a(f"s_waitcnt vmcnt({TH})")
    st.stamp(27)
    st.stamp(28)
    a("s_waitcnt vmcnt(0)")
    st.stamp(29)
    for o in OPT:
        if o.startswith("late"):
            lds_wait(a, "L_g_hold", SW, int(o[4:]), X0, S_SP)
    lds_arrive(a, SW_G, X0, "L_g_sig")
    global_arrive(a, C2, X0, "L_g_sig")
    a.label("L_g_sig")
    st.stamp(7)
    st.stamp(8)
    a(f"v_mov_b32 v{X0}, {C2}")

    a.label("L_gemm")

    def wdma(slot, i):
        x = (f"s_add_u32 m0, s{S_WL}, {slot * 4096 + i * 1024}\ns_add_u32 s{S_T1}, s{S_WSRC}, {i * 16384}\n"
             f"buffer_load_dwordx4 v{V_UA}, {sr(S_UW)}, s{S_T1} offen lds")
        if i == 3:
            x += f"\ns_add_u32 s{S_WSRC}, s{S_WSRC}, {128 * 2048}"
        return x

    def wreads(slot):
        return [f"ds_read_b64_tr_b16 {vr(BUF[slot] + 32 + q * 4 + t * 2, 2)}, v{V_UR + q} offset:{slot * 4096 + t * 2048}"
                for q in range(4) for t in range(2)]

    for slot in range(2):
        for i in range(4):
            a(wdma(slot, i))
    for i in range(0, 128, 2):
        a(f"v_mov_b64 {vr(i, 2)}, 0")
    a("s_waitcnt vmcnt(4)")
    for x in wreads(0):
        a(x)
    a("s_waitcnt lgkmcnt(0)")
    for i in range(4):
        a(wdma(0, i))
    ldc = f"buffer_load_dword v{X2}, v{X0}, {DBG}, 0 offen offset:128 sc1"
    a(ldc)
    a("s_waitcnt vmcnt(0)")
    spin(a, "L_gemm_c", "s_sleep 8\n" + ldc, X2, 1, S_SP)
    st.stamp(9)
    srd(a, S_KVD, S_WS, WS_USED)
    GA = sr(S_KVD)

    def aload(u, tt):
        x = (f"buffer_load_dwordx4 {vr(BUF[u] + tt * 4)}, v{V_L16 if tt < 4 else V_DA}, {GA}, s{S_ASRC} "
             f"offen offset:{(tt & 3) * 1024} sc1")
        if tt == 7:
            x += f"\ns_add_u32 s{S_ASRC}, s{S_ASRC}, 32768"
        return x

    a(f"v_and_b32 v{X0}, 15, v{L}")
    a(f"v_lshlrev_b32 v{X0}, 3, v{X0}")
    for tt in range(4, 8):
        a(f"buffer_load_dword v{V_G + tt}, v{X0}, {WS}, s{S_GOFF} offen offset:{tt * 128} sc1")
    for tt in range(8):
        a(aload(0, tt))
    for tt in range(4):
        a(f"buffer_load_dword v{V_G + tt}, v{X0}, {WS}, s{S_GOFF} offen offset:{tt * 128} sc1")
    for tt in range(8):
        a(aload(1, tt))
    a(".p2align 6")
    a.label("L_gemm_loop")
    gate = [o for o in OPT if o.startswith('gate')]
    if gate:
        a(f"s_cmp_eq_u32 s{S_STEPS}, {gate[0][4:]}")
        a("s_cbranch_scc0 L_gemm_ng_ok")
        lds_wait(a, "L_gemm_ng", SW_A, 4, X3, S_SP)
    a(f"s_cmp_eq_u32 s{S_STEPS}, 1")
    a(f"s_cselect_b32 s{S_KVD + 2}, 0, s{S_KVD + 2}")
    for u in range(2):
        a("s_waitcnt vmcnt(12) lgkmcnt(0)")
        rd = wreads(u ^ 1)
        for tt in range(8):
            if tt == 3:
                a("s_waitcnt lgkmcnt(0)")
            for nt in range(4):
                d = vr((tt * 4 + nt) * 4)
                a(f"v_mfma_f32_16x16x32_bf16 {d}, {vr(BUF[u] + 32 + nt * 4)}, {vr(BUF[u] + tt * 4)}, {d}")
                if tt < 2:
                    a(rd[tt * 4 + nt])
                if 3 <= tt < 7 and nt == 1:
                    a(wdma(u ^ 1, tt - 3))
            a(aload(u, tt))
    a(f"s_sub_u32 s{S_STEPS}, s{S_STEPS}, 1")
    a(f"s_cmp_lg_u32 s{S_STEPS}, 0")
    a("s_cbranch_scc1 L_gemm_loop")
    a("s_waitcnt vmcnt(0) lgkmcnt(0)")
    st.stamp(10)
    for tt in range(8):
        for i in range(16):
            a(f"v_mul_f32 v{tt * 16 + i}, v{tt * 16 + i}, v{V_G + tt}")
    a(f"s_add_u32 s{S_T0}, s{S_KQ}, 2")
    a(f"s_lshl_b32 s{S_T0}, s{S_T0}, 15")
    a(f"s_cmp_eq_u32 s{S_KQ}, 3")
    a(f"s_cselect_b32 s{S_T0}, 0, s{S_T0}")
    a(f"v_add_u32 v{X3}, s{S_T0}, v{V_L16}")
    a(f"s_lshl_b32 s{S_T0}, s{S_KQ}, 13")
    a(f"v_add_u32 v{X4}, s{S_T0}, v{V_L16}")
    a(f"v_add_u32 v{X5}, {PART[0]}, v{X4}")
    a(f"v_add_u32 v{X2}, {PART[2]}, v{X4}")

    def write_partial():
        for i in range(32):
            a(f"ds_write_b128 v{X3}, {vr(4 * i)} offset:{i * 1024}")

    def gather(dst_acc, first):
        src = [(X5, 0), (X5, 32768), (X2, 0), (X4, 0)]
        for p in range(4):
            for i in range(8):
                a(f"ds_read_b128 {vr(32 * p + 4 * i)}, v{src[p][0]} offset:{src[p][1] + i * 1024}")
            if p in (1, 3):
                a("s_waitcnt lgkmcnt(0)")
                for i in range(0, 32, 2):
                    a(f"v_pk_add_f32 {vr(32 * p + i, 2)}, {vr(32 * p + i, 2)}, {vr(32 * (p - 1) + i, 2)}")
        for i in range(0, 32, 2):
            if first:
                a(f"v_pk_add_f32 {vr(dst_acc + i, 2)}, {vr(32 + i, 2)}, {vr(96 + i, 2)}")
            else:
                a(f"v_pk_add_f32 {vr(32 + i, 2)}, {vr(32 + i, 2)}, {vr(96 + i, 2)}")
                a(f"v_pk_add_f32 {vr(dst_acc + i, 2)}, {vr(dst_acc + i, 2)}, {vr(32 + i, 2)}")

    a(f"s_cmp_lt_u32 s{S_WAVE}, 4")
    a("s_cbranch_scc0 L_g_red")
    a("s_barrier")
    write_partial()
    a("s_waitcnt lgkmcnt(0)")
    a("s_barrier")
    st.stamp(11)
    st.finish(100)
    a("s_endpgm")

    a.label("L_g_red")
    SUM = 128
    lds_wait(a, "L_g_wa", SW_A, 4, X0, S_SP)

    def slice_addr(dst, src, j):
        a(f"s_cmp_gt_u32 {j}, {src}")
        a(f"s_cselect_b32 s{S_T1}, 1, 0")
        a(f"s_sub_u32 s{S_T1}, {j}, s{S_T1}")
        a(f"s_lshl_b32 s{S_T2}, {src}, 1")
        a(f"s_add_u32 s{S_T2}, s{S_T2}, s{S_T1}")
        a(f"s_add_u32 s{S_T2}, s{S_T2}, 11")
        a(f"s_cmp_eq_u32 s{S_T1}, 0")
        a(f"s_cselect_b32 s{S_T2}, {src}, s{S_T2}")
        a(f"s_lshl_b32 s{S_T2}, s{S_T2}, 13")
        a(f"v_add_u32 v{dst}, s{S_T2}, v{V_L16}")

    for j in range(4):
        slice_addr(X0, f"s{S_KQ}", j)
        a(f"s_cmp_eq_u32 s{S_KQ}, {j}")
        a(f"s_cbranch_scc1 L_g_own{j}")
        for i in range(8):
            a(f"ds_write_b128 v{X0}, {vr(32 * j + 4 * i)} offset:{i * 1024}")
        a(f"s_branch L_g_nxt{j}")
        a.label(f"L_g_own{j}")
        for i in range(0, 32, 2):
            a(f"v_mov_b64 {vr(SUM + i, 2)}, {vr(32 * j + i, 2)}")
        a.label(f"L_g_nxt{j}")
    a("s_waitcnt lgkmcnt(0)")
    lds_arrive(a, SW_R, X0, "L_g_arr")
    a.label("L_g_arr")
    lds_wait(a, "L_g_wr", SW_R, 4, X0, S_SP)
    for p in range(4):
        a(f"s_cmp_eq_u32 s{S_KQ}, {p}")
        a(f"s_cbranch_scc1 L_g_skip{p}")
        slice_addr(X0, p, f"s{S_KQ}")
        for i in range(8):
            a(f"ds_read_b128 {vr(4 * i)}, v{X0} offset:{i * 1024}")
        a("s_waitcnt lgkmcnt(0)")
        for i in range(0, 32, 2):
            a(f"v_pk_add_f32 {vr(SUM + i, 2)}, {vr(SUM + i, 2)}, {vr(i, 2)}")
        a.label(f"L_g_skip{p}")
    a("s_barrier")
    a(f"v_and_b32 v{X0}, 15, v{L}")
    a(f"s_lshl_b32 s{S_T0}, s{S_MB}, 7")
    a(f"s_lshl_b32 s{S_T1}, s{S_KQ}, 5")
    a(f"s_add_u32 s{S_T0}, s{S_T0}, s{S_T1}")
    a(f"v_add_u32 v{X0}, s{S_T0}, v{X0}")
    a(f"v_lshlrev_b32 v{X0}, 11, v{X0}")
    a(f"v_lshlrev_b32 v{X1}, 1, v{L}")
    a(f"v_and_b32 v{X1}, 32, v{X1}")
    a(f"v_add_u32 v{X0}, v{X0}, v{X1}")
    a(f"v_lshrrev_b32 v{X1}, 1, v{L}")
    a(f"v_and_b32 v{X1}, 16, v{X1}")
    a(f"v_add_u32 v{X0}, v{X0}, v{X1}")
    a(f"s_lshl_b32 s{S_T0}, s{S_NB}, 7")
    a(f"s_add_u32 s{S_T1}, s{S_T0}, {16 * 2048}")
    a("s_barrier")
    gather(SUM, False)
    P = 160
    for i in range(16):
        a(f"v_cvt_pk_bf16_f32 v{P + i}, v{SUM + 2*i}, v{SUM + 2*i + 1}")
    a("s_nop 1")
    for m in range(4):
        a(f"v_permlane16_swap_b32 v{P + 4*m}, v{P + 4*m + 2}")
        a(f"v_permlane16_swap_b32 v{P + 4*m + 1}, v{P + 4*m + 3}")
    for m in range(4):
        a(f"buffer_store_dwordx4 {vr(P + 4*m)}, v{X0}, {sr(S_OUT)}, s{S_T0 if m < 2 else S_T1} offen offset:{64 * (m & 1)}")
    if STAMPS:
        a("s_waitcnt vmcnt(0)")
    st.stamp(11)
    st.finish(100)


def main():
    global STAMPS
    if "--stamps" in sys.argv:
        STAMPS = True
        sys.argv.remove("--stamps")
    for x in list(sys.argv):
        if x.startswith("--opt="):
            OPT.update(x[6:].split(","))
            sys.argv.remove(x)
    global FLAG_TP_O
    if 'fo1' in OPT:
        FLAG_TP_O = 1
    if 'fom' in OPT:
        FLAG_TP_O = -1
    out = sys.argv[1] if len(sys.argv) > 1 else f"cdna_kernels/{NAME}.s"
    ref = open(f"cdna_kernels/{NAME}.s.ref").read().split("\n")
    head = [ln for ln in ref if ln.startswith(";") and "@launch" not in ln and "Override launch" not in ln
            and "grid=ceil" not in ln]
    a = Asm()
    a(f".globl {KNAME}")
    a(".p2align 8")
    a(f".type {KNAME},@function")
    a.label(KNAME)
    a("s_cmp_ge_u32 s2, 256")
    a("s_cbranch_scc1 L_end")
    st = Stamper(a)
    st.start()
    phase1(a, st)
    phase23(a, st)
    a.label("L_end")
    a("s_endpgm")
    a.label("L_code_end")
    txt = "\n".join(head) + "\n"
    if "list" in OPT:
        txt += f"; @launch kernel={KNAME} grid=(256,1,1) block=(512,1,1) lds=163840\n"
    else:
        txt += "; @launch grid=(256,1,1) block=(512,1,1) lds=163840\n"
    txt += '.amdgcn_target "amdgcn-amd-amdhsa--gfx950"\n.text\n'
    txt += a.text()
    txt += f""".section .rodata,"a"
.p2align 6
.amdhsa_kernel {KNAME}
  .amdhsa_next_free_vgpr 256
  .amdhsa_next_free_sgpr 102
  .amdhsa_accum_offset 256
  .amdhsa_group_segment_fixed_size 0
  .amdhsa_kernarg_size 88
  .amdhsa_user_sgpr_count 2
  .amdhsa_user_sgpr_kernarg_segment_ptr 1
  .amdhsa_system_sgpr_workgroup_id_x 1
.end_amdhsa_kernel
"""
    open(out, "w").write(txt)


if __name__ == "__main__":
    main()
```

```python
import struct
import sys

NAME = "gated_mix__softmax_full_mha__swiglu_ffn__prompt"
KNAME = NAME + "_kernel"

QF_BASE = 0
KV_BASE = 4 << 20
AF_BASE = 12 << 20
AF_KB = 144
AF_O = 112
G_BASE = AF_BASE + 128 * AF_KB * 1024
FLAG_BASE = G_BASE + 2048 * 8
WS_USED = FLAG_BASE + 256 * 128
STAMP_BASE = 64 << 20
STAMPS = False
OPT = set()
LOG2E = 1.4426950408889634
QSCALE = (32 ** -0.5) * LOG2E
C0, C2, C3 = 0, 4, 8
SPIN_LIMIT = 1 << 22


def f32bits(x):
    return struct.unpack("<I", struct.pack("<f", x))[0]


class Asm:
    def __init__(self):
        self.lines = []

    def __call__(self, s):
        for ln in s.split("\n"):
            ln = ln.strip()
            if not ln:
                continue
            if ln.endswith(":") or ln.startswith("."):
                self.lines.append(ln)
            else:
                self.lines.append("    " + ln)

    def label(self, name):
        self.lines.append(name + ":")

    def text(self):
        return "\n".join(self.lines) + "\n"


def vr(base, n=4):
    return f"v[{base}:{base + n - 1}]"


def sr(base, n=4):
    return f"s[{base}:{base + n - 1}]"


def srd(a, dst, lo, nbytes):
    a(f"s_mov_b32 s{dst}, s{lo}")
    a(f"s_mov_b32 s{dst + 1}, s{lo + 1}")
    a(f"s_mov_b32 s{dst + 2}, {nbytes}")
    a(f"s_mov_b32 s{dst + 3}, 0x00020000")


class Stamper:
    def __init__(self, a):
        self.a = a

    def start(self):
        self.stamp(-1)

    def stamp(self, idx):
        if not STAMPS:
            return
        self.a("s_memrealtime s[80:81]")
        self.a("s_memtime s[82:83]")
        self.a("s_waitcnt lgkmcnt(0)")
        self.a(f"v_writelane_b32 v255, s80, {2 * (idx + 1)}")
        self.a(f"v_writelane_b32 v255, s82, {2 * (idx + 1) + 1}")

    def loop_stamp(self, base, scnt, mul, add):
        if not STAMPS:
            return
        self.a("s_memtime s[82:83]")
        self.a(f"s_mul_i32 s80, s{scnt}, {mul}")
        self.a(f"s_add_u32 m0, s80, {base + add}")
        self.a("s_waitcnt lgkmcnt(0)")
        self.a("v_writelane_b32 v255, s82, m0")

    def finish(self, vt):
        if not STAMPS:
            return
        a = self.a
        a("s_mov_b64 exec, -1")
        a("s_lshl_b32 s80, s2, 3")
        a(f"s_add_u32 s80, s80, s{S_WAVE}")
        a("s_lshl_b32 s80, s80, 8")
        a(f"s_add_u32 s80, s80, {STAMP_BASE}")
        a(f"s_mov_b32 s{S_WS + 2}, 0x10000000")
        a(f"v_lshlrev_b32 v{vt}, 2, v{V_LANE}")
        a(f"buffer_store_dword v255, v{vt}, {sr(S_WS)}, s80 offen")


S_WAVE = 3
S_WS, S_DBG = 4, 8
V_LANE, V_L16 = 228, 229
V_C0 = 251
SW = 147456
SW_G, SW_A, SW_R, SW_F, SW_D, SW_H = SW + 32, SW + 36, SW + 40, SW + 44, SW + 48, SW + 64
V_H = 192
S_H0, S_H1 = 78, 79
FLAG_TP_E, FLAG_TP_O = -1, -1
NEARLY = 9
WS = sr(S_WS)
DBG = sr(S_DBG)


def signal(a, off, vt, label):
    a(f"s_cmp_lg_u32 s{S_WAVE}, 0")
    a(f"s_cbranch_scc1 {label}")
    a(f"v_mov_b32 v{vt}, 1")
    a(f"v_mov_b32 v{vt + 1}, {off}")
    a("s_mov_b64 exec, 1")
    a(f"buffer_atomic_add v{vt}, v{vt + 1}, {DBG}, 0 offen sc1")
    a("s_mov_b64 exec, -1")
    a.label(label)


def spin(a, label, load, vval, expect, scnt):
    a(f"s_mov_b32 s{scnt}, 0")
    a.label(label)
    a(f"v_cmp_{'ne' if expect == 1 else 'gt'}_u32 vcc, {expect}, v{vval}")
    a("s_cmp_eq_u64 vcc, 0")
    a(f"s_cbranch_scc1 {label}_ok")
    a("s_sleep 1")
    a(load)
    a("s_waitcnt vmcnt(0)")
    a(f"s_add_u32 s{scnt}, s{scnt}, 1")
    a(f"s_cmp_lt_u32 s{scnt}, {SPIN_LIMIT}")
    a(f"s_cbranch_scc1 {label}")
    a.label(f"{label}_ok")


def phase1(a, st):
    XBUF = [0, 32768]
    WBASE = 65536
    WSTRIDE = 40960
    S_X, S_QKV, S_G, S_U, S_GW, S_PF = 12, 16, 20, 24, 28, 32
    S_W1024, S_ROWBLK, S_XCD, S_COLSUB, S_KX = 36, 37, 38, 39, 40
    S_WO = 41
    S_CNT = 46
    S_T0, S_T1, S_T2, S_T3 = 47, 48, 49, 50
    S_WN = 51
    S_NL2E, S_ONE, S_QS = 52, 54, 56
    S_FU, S_QKU, S_VU, S_TOK, S_E = 58, 59, 60, 61, 62
    S_PFO, S_PFS = 63, 100
    XF = [160, 176]
    WF = 192
    V_XA = 212
    V_WA, V_WB = 214, 218
    V_DX = 220
    V_DW6, V_DW7 = 224, 225
    V_PF, V_PFD = 226, 227
    V_ST = 230
    V_T = 232
    L = V_LANE
    T0, T1, T2, T3, T4 = V_T, V_T + 1, V_T + 2, V_T + 3, V_T + 4

    def acc(nt, tt):
        return (nt * 4 + tt) * 4

    for dst, off in ((S_X, 0), (S_QKV, 8), (S_G, 32), (S_U, 40), (S_WS, 80), (S_DBG, 72), (64, 56)):
        a(f"s_load_dwordx2 {sr(dst, 2)}, s[0:1], {off}")
    a(f"v_and_b32 v{L}, 63, v0")
    a(f"v_lshrrev_b32 v{T0}, 6, v0")
    a(f"v_lshlrev_b32 v{V_L16}, 4, v{L}")
    a(f"v_readfirstlane_b32 s{S_WAVE}, v{T0}")
    a("s_getpc_b64 s[28:29]")
    a.label("L_p1_pc")
    a(f"s_sub_u32 s28, s28, L_p1_pc-{KNAME}")
    a("s_subb_u32 s29, s29, 0")
    a(f"s_cmp_eq_u32 s{S_WAVE}, 7")
    a(f"s_cselect_b32 s30, L_code_end-{KNAME}, 0")
    a("s_mov_b32 s31, 0x00020000")
    a(f"s_lshr_b32 s{S_COLSUB}, s2, 3")
    a(f"s_and_b32 s{S_COLSUB}, s{S_COLSUB}, 3")
    a(f"s_lshl_b32 s{S_T0}, s{S_COLSUB}, 13")
    a(f"v_lshlrev_b32 v{T1}, 7, v{L}")
    a(f"buffer_load_dword v{V_PFD}, v{T1}, s[28:31], s{S_T0} offen")
    a(f"s_and_b32 s{S_XCD}, s2, 7")
    a(f"s_lshr_b32 s{S_ROWBLK}, s2, 5")
    a(f"s_lshl_b32 s{S_W1024}, s{S_WAVE}, 10")
    a(f"s_and_b32 s{S_WN}, s{S_WAVE}, 1")
    a(f"s_lshl_b32 s{S_T0}, s{S_WN}, 2")
    a(f"v_lshrrev_b32 v{T0}, 4, v{L}")
    a(f"v_add_u32 v{T0}, s{S_T0}, v{T0}")
    a(f"v_and_b32 v{T1}, 7, v{L}")
    a(f"v_xor_b32 v{T0}, v{T0}, v{T1}")
    a(f"v_lshlrev_b32 v{T0}, 4, v{T0}")
    a(f"v_lshrrev_b32 v{T2}, 3, v{L}")
    a(f"s_lshl_b32 s{S_T0}, s{S_ROWBLK}, 8")
    a(f"s_lshl_b32 s{S_T1}, s{S_WAVE}, 3")
    a(f"s_add_u32 s{S_T0}, s{S_T0}, s{S_T1}")
    a(f"v_add_u32 v{T3}, s{S_T0}, v{T2}")
    a(f"v_lshlrev_b32 v{T3}, 11, v{T3}")
    a(f"v_add_u32 v{V_DX}, v{T3}, v{T0}")
    for j in range(1, 4):
        a(f"v_add_u32 v{V_DX + j}, {j * 64 * 2048}, v{V_DX}")
    a(f"v_and_b32 v{T0}, 2, v{T2}")
    a(f"s_lshl_b32 s{S_T0}, s{S_WN}, 2")
    a(f"v_or_b32 v{T0}, s{S_T0}, v{T0}")
    a(f"v_xor_b32 v{T0}, v{T0}, v{T1}")
    a(f"v_lshlrev_b32 v{T0}, 4, v{T0}")
    a(f"v_add_u32 v{T3}, s{S_T1}, v{T2}")
    a(f"v_mul_u32_u24 v{V_DW6}, 6144, v{T3}")
    a(f"v_add_u32 v{V_DW6}, v{V_DW6}, v{T0}")
    a(f"v_mul_u32_u24 v{V_DW7}, 7168, v{T3}")
    a(f"v_add_u32 v{V_DW7}, v{V_DW7}, v{T0}")
    a(f"s_mov_b32 s{S_KX}, 0")
    a(f"s_mul_i32 s{S_E}, s{S_XCD}, 3")
    a(f"s_add_u32 s{S_E}, s{S_E}, s{S_COLSUB}")
    a(f"s_lshl_b32 s{S_T0}, s{S_E}, 8")
    a(f"s_lshl_b32 s{S_T1}, s{S_XCD}, 7")
    a(f"s_add_u32 s{S_T2}, s{S_T1}, 6144")
    a(f"s_cmp_eq_u32 s{S_COLSUB}, 3")
    a(f"s_cselect_b32 s{S_WO}, s{S_T2}, s{S_T0}")
    a(f"s_mov_b32 s{S_WO+1}, s{S_WO}")
    a(f"s_add_u32 s{S_T0}, s{S_T0}, 128")
    a(f"s_lshl_b32 s{S_QKU}, s{S_XCD}, 1")
    a(f"s_and_b32 s{S_T2}, s{S_COLSUB}, 1")
    a(f"s_add_u32 s{S_QKU}, s{S_QKU}, s{S_T2}")
    a(f"s_lshr_b32 s{S_T2}, s{S_COLSUB}, 1")
    a(f"s_lshl_b32 s{S_T2}, s{S_T2}, 4")
    a(f"s_add_u32 s{S_QKU}, s{S_QKU}, s{S_T2}")
    a(f"s_lshl_b32 s{S_T2}, s{S_QKU}, 7")
    a(f"s_lshl_b32 s{S_T1}, s{S_XCD}, 8")
    a(f"s_add_u32 s{S_T1}, s{S_T1}, 4096")
    a(f"s_add_u32 s{S_T3}, s{S_T1}, 128")
    a(f"s_cmp_eq_u32 s{S_COLSUB}, 3")
    a(f"s_cselect_b32 s{S_WO+2}, s{S_T2}, s{S_T0}")
    a(f"s_cselect_b32 s{S_WO+3}, s{S_T1}, s{S_T0}")
    a(f"s_cselect_b32 s{S_WO+4}, s{S_T3}, s{S_T2}")
    a(f"s_lshl_b32 s{S_QKU}, s{S_QKU}, 1")
    a(f"s_add_u32 s{S_QKU}, s{S_QKU}, s{S_WN}")
    a(f"s_and_b32 s{S_T0}, s{S_WAVE}, 1")
    a(f"s_lshl_b32 s{S_T0}, s{S_T0}, 3")
    a(f"s_add_u32 s{S_T0}, s{S_T0}, 32")
    a(f"s_cmp_eq_u32 s{S_COLSUB}, 3")
    a(f"s_cselect_b32 s{S_T1}, 2, 4")
    a(f"s_cmp_ge_u32 s{S_WAVE}, s{S_T1}")
    a(f"s_cselect_b32 s{S_T0}, 8, s{S_T0}")
    a(f"s_mov_b32 s{S_T3}, 7168")
    a(f"s_cselect_b32 s{S_T3}, 6144, s{S_T3}")
    a(f"s_cmp_ge_u32 s{S_WAVE}, 5")
    a(f"s_cselect_b32 s{S_T0}, 0, s{S_T0}")
    a(f"s_cselect_b32 s{S_T3}, 2048, s{S_T3}")
    a(f"s_cmp_eq_u32 s{S_WAVE}, 6")
    a(f"s_cselect_b32 s{S_T0}, 48, s{S_T0}")
    a(f"s_cmp_eq_u32 s{S_WAVE}, 7")
    a(f"s_cselect_b32 s{S_T0}, 16, s{S_T0}")
    a(f"s_load_dwordx2 {sr(S_PF, 2)}, s[0:1], s{S_T0}")
    a(f"s_lshl_b32 s{S_PF+2}, s{S_T3}, 10")
    a(f"s_lshl_b32 s{S_PFS}, s{S_T3}, 6")
    a(f"s_mov_b32 s{S_PFO}, 0")
    for p_ in range(5):
        a(f"s_cmp_eq_u32 s{S_WAVE}, {p_}")
        a(f"s_cselect_b32 s{S_PFO}, s{S_WO+p_}, s{S_PFO}")
    a(f"s_cmp_eq_u32 s{S_WAVE}, 5")
    a(f"s_cselect_b32 s{S_PF+2}, {2048 * 2048}, s{S_PF+2}")
    a(f"s_cselect_b32 s{S_PFS}, 128, s{S_PFS}")
    a(f"s_cmp_gt_u32 s{S_WAVE}, 5")
    a(f"s_cselect_b32 s{S_PF+2}, 0, s{S_PF+2}")
    a(f"s_mov_b32 s{S_PF+3}, 0x00020000")
    a(f"s_lshl_b32 s{S_T0}, s{S_ROWBLK}, 3")
    a(f"s_lshl_b32 s{S_T1}, s{S_ROWBLK}, 8")
    a(f"s_lshl_b32 s{S_T2}, s{S_COLSUB}, 6")
    a(f"s_add_u32 s{S_T1}, s{S_T1}, s{S_T2}")
    a(f"s_cmp_lt_u32 s{S_WAVE}, 5")
    a(f"s_cselect_b32 s{S_T0}, s{S_T0}, s{S_T1}")
    a(f"s_cselect_b32 s{S_T1}, 7, 63")
    a(f"v_and_b32 v{V_PF}, s{S_T1}, v{L}")
    a(f"v_add_u32 v{V_PF}, s{S_T0}, v{V_PF}")
    a(f"v_mul_lo_u32 v{V_PF}, v{V_PF}, s{S_T3}")
    for dst, nb in ((S_X, 2048 * 2048), (S_QKV, 1024 * 6144), (S_G, 1024 * 7168), (S_U, 1024 * 7168),
                    (S_WS, WS_USED), (S_DBG, 256)):
        a(f"s_mov_b32 s{dst + 2}, {nb}")
        a(f"s_mov_b32 s{dst + 3}, 0x00020000")
    pf = (f"buffer_load_dword v{V_PFD}, v{V_PF}, {sr(S_PF)}, s{S_PFO} offen\n"
          f"s_add_u32 s{S_PFO}, s{S_PFO}, s{S_PFS}")
    a("s_waitcnt lgkmcnt(0)")
    po = ([o[2:] for o in OPT if o.startswith("po")] or ["220"])[0]
    for _ in range(int(po[0])):
        a(pf)
    a(f"s_cmp_eq_u32 s{S_COLSUB}, 3")
    a("s_cbranch_scc1 L_p1_O")

    for variant in ("E", "O"):
        a.label(f"L_p1_{variant}")
        if variant == "E":
            blocks = [S_G, S_U, S_G, S_U, S_QKV]
            tiles = [(V_WB + 0, 0, 0), (V_WB + 1, 0, 0),
                     (V_WA + 0, 0, 0), (V_WA + 1, 0, 0), (V_WA + 0, 8192, 0), (V_WA + 1, 8192, 0),
                     (V_WA + 2, 0, 0), (V_WA + 3, 0, 0), (V_WA + 2, 8192, 0), (V_WA + 3, 8192, 0)]
            hunits = [(2, 4), (6, 8)]
            qk_t, v_t = 0, None
            last_order = [(0, 0), (0, 1), (0, 2), (0, 3), (1, 0), (1, 1)] + [(0, n) for n in range(4, 10)] + \
                         [(1, n) for n in range(2, 10)]
        else:
            blocks = [S_G, S_U, S_QKV, S_QKV, S_QKV]
            tiles = [(V_WB + 0, 16384, 0), (V_WB + 1, 16384, 0),
                     (V_WA + 0, 0, 1), (V_WA + 1, 0, 1), (V_WA + 2, 0, 1), (V_WA + 3, 0, 1),
                     (V_WB + 0, 0, 0), (V_WB + 1, 0, 0), (V_WB + 0, 8192, 0), (V_WB + 1, 8192, 0)]
            hunits = [(6, 8)]
            qk_t, v_t = 0, 2
            last_order = [(0, 0), (0, 1), (0, 2), (0, 3), (1, 0), (1, 1), (1, 2), (1, 3), (0, 4), (1, 4),
                          (0, 5), (1, 5)] + [(k, n) for n in range(6, 10) for k in range(2)]

        def dma_list(buf):
            out = []
            for j in range(4):
                out.append(f"s_add_u32 m0, s{S_W1024}, {XBUF[buf] + j * 8192}\ns_nop 0\n"
                           f"buffer_load_dwordx4 v{V_DX + j}, {sr(S_X)}, s{S_KX} offen lds")
            for p in range(5):
                b = blocks[p]
                vd = V_DW6 if b == S_QKV else V_DW7
                pitch = 6144 if b == S_QKV else 7168
                out.append(f"s_add_u32 m0, s{S_W1024}, {WBASE + buf * WSTRIDE + p * 8192}\ns_nop 0\n"
                           f"buffer_load_dwordx4 v{vd}, {sr(b)}, s{S_WO + p} offen lds\n"
                           f"s_add_u32 s{S_WO + p}, s{S_WO + p}, {64 * pitch}")
            out[3] += f"\ns_add_u32 s{S_KX}, s{S_KX}, 128"
            return out

        for d in dma_list(0):
            a(d)
        for _ in range(int(po[1])):
            a(pf)
        d1 = dma_list(1)
        srd(a, S_GW, 64, 2048)
        if True:
            a(f"s_cmp_eq_u32 s{S_WAVE}, 6")
            a(f"s_cselect_b32 s{S_T0}, 14, 4")
            a(f"s_lshl_b32 s{S_T0}, s{S_T0}, 11")
            a(f"s_mul_i32 s{S_T1}, s{S_T0}, s2")
            a(f"s_add_u32 s{S_T0}, s{S_T0}, s{S_T1}")
            a(f"v_and_b32 v{T0}, 15, v{L}")
            a(f"v_lshlrev_b32 v{T0}, 7, v{T0}")
            a(f"s_cmp_gt_u32 s{S_WAVE}, 5")
            a(f"s_cselect_b32 s{S_PF+2}, s{S_T0}, s{S_PF+2}")
            a(f"s_cselect_b32 s{S_PFO}, s{S_T1}, s{S_PFO}")
            a(f"s_cselect_b32 s{S_PFS}, 2048, s{S_PFS}")
            a("s_cselect_b64 vcc, -1, 0")
            a("s_nop 1")
            a(f"v_cndmask_b32 v{V_PF}, v{V_PF}, v{T0}, vcc")
        a("s_lshr_b32 s65, s2, 6")
        a("s_add_u32 s65, s65, 1")
        a(f"s_lshr_b32 s{S_T0}, s{S_WAVE}, 1")
        a(f"s_lshl_b32 s{S_T0}, s{S_T0}, 13")
        a(f"v_and_b32 v{T1}, 15, v{L}")
        a(f"v_lshlrev_b32 v{T1}, 7, v{T1}")
        a(f"v_add_u32 v{T3}, s{S_T0}, v{T1}")
        a(f"v_lshrrev_b32 v{T1}, 1, v{L}")
        a(f"v_and_b32 v{T1}, 7, v{T1}")
        a(f"v_lshrrev_b32 v{T4}, 4, v{L}")
        a(f"v_xor_b32 v{T1}, v{T1}, v{T4}")
        a(f"v_lshlrev_b32 v{T1}, 4, v{T1}")
        a(f"v_add_u32 v{V_XA}, v{T3}, v{T1}")
        a(f"v_xor_b32 v{V_XA+1}, 64, v{V_XA}")
        a(f"v_lshlrev_b32 v{T4}, 10, v{T4}")
        a(f"v_lshrrev_b32 v{T1}, 2, v{L}")
        a(f"v_and_b32 v{T1}, 3, v{T1}")
        a(f"v_lshlrev_b32 v{T3}, 7, v{T1}")
        a(f"v_add_u32 v{T4}, v{T4}, v{T3}")
        a(f"v_lshlrev_b32 v{T1}, 2, v{L}")
        a(f"v_and_b32 v{T1}, 0x60, v{T1}")
        a(f"v_add_u32 v{T4}, v{T4}, v{T1}")
        a(f"v_and_b32 v{T1}, 3, v{L}")
        a(f"v_lshlrev_b32 v{T1}, 3, v{T1}")
        a(f"v_add_u32 v{T4}, v{T4}, v{T1}")

        if variant == "E":
            a(f"s_lshl_b32 s{S_T0}, s{S_WN}, 14")
            a(f"s_add_u32 s{S_T0}, s{S_T0}, {WBASE}")
            a(f"s_mov_b32 s{S_T1}, {WBASE + 4 * 8192}")
            a(f"s_lshl_b32 s{S_FU}, s{S_E}, 2")
            a(f"s_lshl_b32 s{S_T2}, s{S_WN}, 1")
            a(f"s_add_u32 s{S_FU}, s{S_FU}, s{S_T2}")
        else:
            a(f"s_lshl_b32 s{S_T0}, s{S_WN}, 13")
            a(f"s_add_u32 s{S_T0}, s{S_T0}, {WBASE + 3 * 8192}")
            a(f"s_mov_b32 s{S_T1}, {WBASE}")
            a(f"s_lshl_b32 s{S_FU}, s{S_XCD}, 1")
            a(f"s_add_u32 s{S_FU}, s{S_FU}, 96")
            a(f"s_add_u32 s{S_FU}, s{S_FU}, s{S_WN}")
            a(f"s_lshl_b32 s{S_VU}, s{S_XCD}, 2")
            a(f"s_lshl_b32 s{S_T2}, s{S_WN}, 1")
            a(f"s_add_u32 s{S_VU}, s{S_VU}, s{S_T2}")
        for q in range(4):
            a(f"v_xor_b32 v{V_WA + q}, {q << 5}, v{T4}")
            a(f"v_add_u32 v{V_WA + q}, s{S_T0}, v{V_WA + q}")
        a(f"s_lshl_b32 s{S_T2}, s{S_WN}, 6")
        a(f"v_xor_b32 v{V_WB}, s{S_T2}, v{T4}")
        a(f"v_add_u32 v{V_WB}, s{S_T1}, v{V_WB}")
        a(f"v_xor_b32 v{V_WB+1}, 32, v{V_WB}")
        a(f"v_lshrrev_b32 v{T1}, 3, v{L}")
        a(f"v_lshlrev_b32 v{T1}, 8, v{T1}")
        a(f"v_and_b32 v{T2}, 7, v{L}")
        a(f"v_lshlrev_b32 v{T2}, 4, v{T2}")
        a(f"v_add_u32 v{V_ST}, v{T1}, v{T2}")
        a(f"s_mov_b32 s{S_NL2E}, {f32bits(-LOG2E):#x}")
        a(f"s_mov_b32 s{S_NL2E+1}, {f32bits(-LOG2E):#x}")
        a(f"s_mov_b32 s{S_ONE}, 1.0")
        a(f"s_mov_b32 s{S_ONE+1}, 1.0")
        a(f"s_lshl_b32 s{S_T0}, s2, 3")
        a(f"s_add_u32 s{S_TOK}, s{S_T0}, s{S_WAVE}")
        for i in range(0, 160, 2):
            a(f"v_mov_b64 {vr(i, 2)}, 0")

        normal_order = [divmod(j, 10) for j in range(20)]

        def wread(buf, j, order=normal_order):
            ks, nt = order[j]
            va, imm, _ = tiles[nt]
            F = WF + (j % 5) * 4
            return [f"ds_read_b64_tr_b16 {vr(F + 2 * t, 2)}, v{va} offset:{buf * WSTRIDE + imm + (32 * ks + 4 * t) * 128}"
                    for t in range(2)]

        def xread(buf, ks, tt):
            return f"ds_read_b128 {vr(XF[ks] + 4 * tt)}, v{V_XA + ks} offset:{XBUF[buf] + tt * 2048}"

        def mfma(j, tt, order=normal_order):
            ks, nt = order[j]
            W = vr(WF + (j % 5) * 4)
            X = vr(XF[ks] + 4 * tt)
            A, B = (X, W) if tiles[nt][2] else (W, X)
            d = vr(acc(nt, tt))
            return f"v_mfma_f32_16x16x32_bf16 {d}, {A}, {B}, {d}"

        a(f"v_lshlrev_b32 v{T1}, 2, v{L}")
        a(f"v_add_u32 v{T1}, {SW}, v{T1}")
        a(f"v_mov_b32 v{T0}, 0")
        a(f"ds_write_b32 v{T1}, v{T0}")
        a("s_waitcnt lgkmcnt(0)")
        a(f"s_lshl_b32 s{S_T0}, s2, 7")
        a(f"s_add_u32 s{S_T0}, s{S_T0}, {FLAG_BASE}")
        a(f"v_mov_b32 v{T0}, 0")
        a(f"buffer_store_dword v{T0}, v{T0}, {WS}, s{S_T0} offen sc1")
        st.stamp(0)
        a(f"s_waitcnt vmcnt({1 + int(po[1])})")
        a("s_barrier")
        st.stamp(1)
        for tt in range(4):
            a(xread(0, 0, tt))
        for j in range(4):
            for r in wread(0, j):
                a(r)
        for d in d1[:2]:
            a(d)
        for _ in range(int(po[2])):
            a(pf)

        def stage(buf, post_barrier=None):
            for j in range(20):
                if j == 16:
                    a("s_waitcnt vmcnt(1) lgkmcnt(0)")
                    a("s_barrier")
                    st.loop_stamp(32, S_CNT, 2, buf)
                    assert not stage.pending
                    stage.pending = dma_list(buf) + [pf]
                    if post_barrier:
                        post_barrier()
                elif j % 2 == 0 and j < 16:
                    a("s_waitcnt lgkmcnt(4)")
                wr = wread(buf, j + 4) if j + 4 < 20 else wread(buf ^ 1, j + 4 - 20)
                xr = []
                if 2 <= j <= 5:
                    xr = [xread(buf, 1, j - 2)]
                if j in (16, 17):
                    xr = [xread(buf ^ 1, 0, 2 * (j - 16)), xread(buf ^ 1, 0, 2 * (j - 16) + 1)]
                dm, dm2 = [], []
                if stage.pending and j not in (16, 17):
                    if 'dma2' in OPT and not xr and j < 16:
                        dm2 = [stage.pending.pop(0)]
                if stage.pending and j not in (16, 17):
                    dm = [stage.pending.pop(0)]
                slots = [wr[:1], wr[1:] + dm2, xr[:1], xr[1:] + dm]
                for tt in range(4):
                    a(mfma(j, tt))
                    for f in slots[tt]:
                        a(f)

        GX, GW_, G0, G1, GA = V_T, V_T + 8, V_T + 16, V_T + 17, V_T + 18

        def events():
            a(f"s_cmp_eq_u32 s{S_CNT}, s65")
            a(f"s_cbranch_scc0 L_p1_{variant}_e0")
            signal(a, C0, G0, f"L_p1_{variant}_e0")
            a(f"s_cmp_eq_u32 s{S_CNT}, 7")
            a(f"s_cbranch_scc0 L_p1_{variant}_e7")
            a(f"v_mov_b32 v{G1}, {C0}")
            a(f"buffer_load_dword v{V_C0}, v{G1}, {DBG}, 0 offen sc1")
            a(f"s_lshl_b32 s{S_T0}, s{S_TOK}, 11")
            a(f"v_lshlrev_b32 v{G0}, 5, v{L}")
            a(f"buffer_load_dwordx4 {vr(GX)}, v{G0}, {sr(S_X)}, s{S_T0} offen")
            a(f"buffer_load_dwordx4 {vr(GX+4)}, v{G0}, {sr(S_X)}, s{S_T0} offen offset:16")
            a(f"buffer_load_dwordx4 {vr(GW_)}, v{G0}, {sr(S_GW)}, 0 offen")
            a(f"buffer_load_dwordx4 {vr(GW_+4)}, v{G0}, {sr(S_GW)}, 0 offen offset:16")
            for s_ in (S_X, S_QKV, S_G, S_U, S_PF):
                a(f"s_mov_b32 s{s_ + 2}, 0")
            a.label(f"L_p1_{variant}_e7")

        stage.pending = d1[2:] + [pf]
        a(f"s_mov_b32 s{S_CNT}, 0")
        a(".p2align 6")
        a.label(f"L_p1_{variant}_loop")
        saved = list(stage.pending)
        stage(0, post_barrier=events)
        a(f"s_cmp_eq_u32 s{S_CNT}, 7")
        a(f"s_cbranch_scc1 L_p1_{variant}_last")
        stage(1)
        assert stage.pending == saved
        a(f"s_add_u32 s{S_CNT}, s{S_CNT}, 1")
        a(f"s_branch L_p1_{variant}_loop")

        a.label(f"L_p1_{variant}_last")
        a(f"s_lshl_b32 s{S_T0}, s{S_ROWBLK}, 3")
        a(f"s_and_b32 s{S_T1}, s{S_WAVE}, 6")
        a(f"s_add_u32 s{S_T0}, s{S_T0}, s{S_T1}")
        TB = S_T0
        S_A0, S_A1, S_A2 = S_WO, S_WO + 1, S_WO + 2
        a(f"s_cmp_lt_u32 s{S_QKU}, 32")
        a(f"s_cselect_b32 s{S_QS}, {f32bits(QSCALE):#x}, 1.0")
        a(f"s_mov_b32 s{S_QS+1}, s{S_QS}")
        a(f"s_lshl_b32 s{S_T1}, s{S_QKU}, 17")
        a(f"s_lshl_b32 s{S_T2}, s{TB}, 11")
        a(f"s_add_u32 s{S_T1}, s{S_T1}, s{S_T2}")
        a(f"s_sub_u32 s{S_T3}, s{S_QKU}, 32")
        a(f"s_lshl_b32 s{S_T3}, s{S_T3}, 18")
        a(f"s_lshl_b32 s{S_T2}, s{TB}, 12")
        a(f"s_add_u32 s{S_T3}, s{S_T3}, s{S_T2}")
        a(f"s_add_u32 s{S_T3}, s{S_T3}, {KV_BASE}")
        a(f"s_cmp_lt_u32 s{S_QKU}, 32")
        a(f"s_cselect_b32 s{S_A0}, s{S_T1}, s{S_T3}")
        a(f"s_cselect_b32 s{S_T1}, 1, 2")
        a(f"s_lshl_b32 s{S_T1}, s{S_T1}, 11")
        a(f"s_add_u32 s{S_A1}, s{S_A0}, s{S_T1}")
        if v_t is not None:
            a(f"s_lshl_b32 s{S_A2}, s{S_VU}, 18")
            a(f"s_add_u32 s{S_A2}, s{S_A2}, s{S_T2}")
            a(f"s_add_u32 s{S_A2}, s{S_A2}, {KV_BASE + 2048}")

        def pack_store(r0, r1, soff, imm, pre=()):
            return list(pre) + [
                f"v_cvt_pk_bf16_f32 v{r0}, v{r0}, v{r0+1}", f"v_cvt_pk_bf16_f32 v{r0+1}, v{r0+2}, v{r0+3}",
                f"v_cvt_pk_bf16_f32 v{r0+2}, v{r1}, v{r1+1}", f"v_cvt_pk_bf16_f32 v{r0+3}, v{r1+2}, v{r1+3}",
                f"buffer_store_dwordx4 {vr(r0)}, v{V_ST}, {WS}, s{soff} offen offset:{imm} sc1"]

        done_at = {}
        for j, (ks, nt) in enumerate(last_order):
            done_at[nt] = j
        jobs = []
        for tt in range(4):
            pre = [f"v_pk_mul_f32 {vr(acc(qk_t + t, tt) + 2*h, 2)}, {vr(acc(qk_t + t, tt) + 2*h, 2)}, {sr(S_QS, 2)}"
                   for t in range(2) for h in range(2)]
            jobs.append((done_at[qk_t + 1] + 3, pack_store(acc(qk_t, tt), acc(qk_t + 1, tt),
                                                           S_A0 if tt < 2 else S_A1, (tt & 1) * 128, pre)))
        if v_t is not None:
            for n in range(4):
                vi, e = divmod(n, 2)
                for m in range(2):
                    pre = [f"s_add_u32 s{S_T1}, s{S_A2}, {vi * 262144 + m * 4096}"]
                    jobs.append((done_at[v_t + n] + 3, pack_store(acc(v_t + n, 2 * m), acc(v_t + n, 2 * m + 1),
                                                                  S_T1, e * 128, pre)))
        fill = []
        for j in range(20):
            if j % 2 == 0:
                a(f"s_waitcnt lgkmcnt({4 if j <= 16 else 0})")
            while jobs and jobs[0][0] <= j:
                fill += jobs.pop(0)[1]
            wr = wread(1, j + 4, last_order) if j + 4 < 20 else []
            xr = [xread(1, 1, 2 * j), xread(1, 1, 2 * j + 1)] if j < 2 else []
            slots = [xr[:1] + wr[:1], xr[1:] + wr[1:], [], []]
            for tt in range(4):
                a(mfma(j, tt, last_order))
                for f in slots[tt]:
                    a(f)
                for _ in range(int(([o[4:] for o in OPT if o.startswith("fill")] or ["2"])[0])):
                    if fill:
                        a(fill.pop(0))
        assert not jobs
        for f in fill:
            a(f)
        st.stamp(2)
        tmp = XF[0]
        a(f"s_lshr_b32 s{S_T1}, s{TB}, 2")
        a(f"s_mul_i32 s{S_T1}, s{S_T1}, {AF_KB}")
        a(f"s_add_u32 s{S_T1}, s{S_T1}, s{S_FU}")
        a(f"s_lshl_b32 s{S_T1}, s{S_T1}, 13")
        a(f"s_and_b32 s{S_T2}, s{TB}, 2")
        a(f"s_lshl_b32 s{S_T2}, s{S_T2}, 11")
        a(f"s_add_u32 s{S_T1}, s{S_T1}, s{S_T2}")
        a(f"s_add_u32 s{S_H0}, s{S_T1}, {AF_BASE}")
        if variant == "E":
            a(f"s_add_u32 s{S_H1}, s{S_H0}, 8192")
        else:
            a(f"s_mov_b32 s{S_H1}, 0x7f000000")

        def raise_flag():
            a("s_waitcnt vmcnt(0)")
            a("s_barrier")
            a(f"s_cmp_lg_u32 s{S_WAVE}, 0")
            a(f"s_cbranch_scc1 L_p1_{variant}_flag")
            a(f"s_lshl_b32 s{S_T2}, s2, 7")
            a(f"s_add_u32 s{S_T2}, s{S_T2}, {FLAG_BASE}")
            a(f"v_mov_b32 v{G0}, 1")
            a(f"v_mov_b32 v{G1}, 0")
            a("s_mov_b64 exec, 1")
            a(f"buffer_store_dword v{G0}, v{G1}, {WS}, s{S_T2} offen sc1")
            a("s_mov_b64 exec, -1")
            a.label(f"L_p1_{variant}_flag")
            st.stamp(3)

        ftp = FLAG_TP_E if variant == "E" else FLAG_TP_O
        if ftp < 0:
            raise_flag()
        for ui, (gt, ut) in enumerate(hunits):
            for tp in range(2):
                regs = []
                for tt in (2 * tp, 2 * tp + 1):
                    for t in range(2):
                        regs.append((acc(gt + t, tt), acc(ut + t, tt)))
                tb = tmp + tp * 16
                for i, (G, U) in enumerate(regs):
                    for h in range(2):
                        a(f"v_pk_mul_f32 {vr(tb + 4*i + 2*h, 2)}, {vr(G + 2*h, 2)}, {sr(S_NL2E, 2)}")
                for r in range(16):
                    a(f"v_exp_f32 v{tb + r}, v{tb + r}")
                for r in range(8):
                    a(f"v_pk_add_f32 {vr(tb + 2*r, 2)}, {vr(tb + 2*r, 2)}, {sr(S_ONE, 2)}")
                for r in range(16):
                    a(f"v_rcp_f32 v{tb + r}, v{tb + r}")
                for i, (G, U) in enumerate(regs):
                    for h in range(2):
                        a(f"v_pk_mul_f32 {vr(G + 2*h, 2)}, {vr(G + 2*h, 2)}, {vr(tb + 4*i + 2*h, 2)}")
                for i, (G, U) in enumerate(regs):
                    for h in range(2):
                        a(f"v_pk_mul_f32 {vr(G + 2*h, 2)}, {vr(G + 2*h, 2)}, {vr(U + 2*h, 2)}")
                for tt in (2 * tp, 2 * tp + 1):
                    P = V_H + (ui * 4 + tt) * 4
                    r0, r1 = acc(gt, tt), acc(gt + 1, tt)
                    a(f"v_cvt_pk_bf16_f32 v{P}, v{r0}, v{r0+1}")
                    a(f"v_cvt_pk_bf16_f32 v{P+1}, v{r0+2}, v{r0+3}")
                    a(f"v_cvt_pk_bf16_f32 v{P+2}, v{r1}, v{r1+1}")
                    a(f"v_cvt_pk_bf16_f32 v{P+3}, v{r1+2}, v{r1+3}")
                if ui == 0 and tp == ftp:
                    raise_flag()
        if variant == "E":
            a("s_branch L_p1_gate")

    a.label("L_p1_gate")
    a(f"v_mov_b32 v{GA}, 0")
    for i in range(8):
        a(f"v_lshlrev_b32 v{G0}, 16, v{GX+i}")
        a(f"v_lshlrev_b32 v{G1}, 16, v{GW_+i}")
        a(f"v_mul_f32 v{G0}, v{G0}, v{G1}")
        a(f"v_and_b32 v{GX+i}, 0xffff0000, v{GX+i}")
        a(f"v_and_b32 v{GW_+i}, 0xffff0000, v{GW_+i}")
        a(f"v_mul_f32 v{GX+i}, v{GX+i}, v{GW_+i}")
        a(f"v_cvt_pk_bf16_f32 v{G0}, v{G0}, v{GX+i}")
        a(f"v_lshlrev_b32 v{G1}, 16, v{G0}")
        a(f"v_and_b32 v{G0}, 0xffff0000, v{G0}")
        a(f"v_add_f32 v{GA}, v{GA}, v{G1}")
        a(f"v_add_f32 v{GA}, v{GA}, v{G0}")
    for dpp in ("row_shr:1 bound_ctrl:0", "row_shr:2 bound_ctrl:0", "row_shr:4 bound_ctrl:0", "row_shr:8 bound_ctrl:0",
                "row_bcast:15 row_mask:0xa", "row_bcast:31 row_mask:0xc"):
        a("s_nop 1")
        a(f"v_add_f32_dpp v{GA}, v{GA}, v{GA} {dpp}")
    a(f"v_cvt_pk_bf16_f32 v{G0}, v{GA}, v{GA}")
    a(f"v_and_b32 v{G0}, 0xffff0000, v{G0}")
    a(f"v_mul_f32 v{G0}, s{S_NL2E}, v{G0}")
    a(f"v_exp_f32 v{G0}, v{G0}")
    a("s_nop 0")
    a(f"v_add_f32 v{G0}, 1.0, v{G0}")
    a(f"v_rcp_f32 v{G0}, v{G0}")
    a("s_nop 0")
    a(f"v_cvt_pk_bf16_f32 v{G0}, v{G0}, v{G0}")
    a(f"v_and_b32 v{G0}, 0xffff0000, v{G0}")
    a(f"v_sub_f32 v{G1}, 1.0, v{G0}")
    a(f"v_cvt_pk_bf16_f32 v{G1}, v{G1}, v{G1}")
    a(f"v_and_b32 v{G1}, 0xffff0000, v{G1}")
    a(f"s_lshl_b32 s{S_T1}, s{S_TOK}, 3")
    a(f"s_add_u32 s{S_T1}, s{S_T1}, {G_BASE}")
    a(f"v_mov_b32 v{GA}, 0")
    a("s_mov_b32 exec_lo, 0")
    a("s_mov_b32 exec_hi, 0x80000000")
    a(f"buffer_store_dwordx2 {vr(G0, 2)}, v{GA}, {WS}, s{S_T1} offen sc1")
    a("s_mov_b64 exec, -1")
    st.stamp(4)


RB, STG, NB = 49152, 32768, 8


def lds_arrive(a, word, vt, label):
    a(f"v_mov_b32 v{vt}, {word}")
    a(f"v_mov_b32 v{vt + 1}, 1")
    a("s_mov_b64 exec, 1")
    a(f"ds_add_rtn_u32 v{vt + 1}, v{vt}, v{vt + 1}")
    a("s_waitcnt lgkmcnt(0)")
    a(f"v_readfirstlane_b32 s80, v{vt + 1}")
    a("s_mov_b64 exec, -1")
    a("s_cmp_eq_u32 s80, 3")
    a(f"s_cbranch_scc0 {label}")


def global_arrive(a, off, vt, label):
    a(f"v_mov_b32 v{vt}, 1")
    a(f"v_mov_b32 v{vt + 1}, {off}")
    a("s_mov_b64 exec, 1")
    a(f"buffer_atomic_add v{vt}, v{vt + 1}, {DBG}, 0 offen sc0 sc1")
    a("s_waitcnt vmcnt(0)")
    a(f"v_readfirstlane_b32 s80, v{vt}")
    a("s_mov_b64 exec, -1")
    a("s_cmp_eq_u32 s80, 255")
    a(f"s_cbranch_scc0 {label}")
    a(f"v_mov_b32 v{vt}, 1")
    a("s_mov_b64 exec, 1")
    a(f"buffer_store_dword v{vt}, v{vt + 1}, {DBG}, 0 offen offset:128 sc1")
    a("s_mov_b64 exec, -1")


def lds_wait(a, label, word, value, vt, scnt):
    a(f"v_mov_b32 v{vt}, {word}")
    a(f"s_mov_b32 s{scnt}, 0")
    a.label(label)
    a(f"ds_read_b32 v{vt + 1}, v{vt}")
    a("s_waitcnt lgkmcnt(0)")
    a(f"v_cmp_gt_u32 vcc, {value}, v{vt + 1}")
    a("s_cmp_eq_u64 vcc, 0")
    a(f"s_cbranch_scc1 {label}_ok")
    a("s_sleep 2")
    a(f"s_add_u32 s{scnt}, s{scnt}, 1")
    a(f"s_cmp_lt_u32 s{scnt}, {SPIN_LIMIT * 8}")
    a(f"s_cbranch_scc1 {label}")
    a.label(f"{label}_ok")


def phase23(a, st):
    L = V_LANE
    S_KVD, S_OUT, S_UW = 12, 16, 20
    S_HEAD, S_QBLK, S_SRC, S_LDS, S_CNT = 24, 25, 26, 27, 28
    S_T0, S_T1, S_T2 = 29, 30, 31
    S_TOKB, S_KVB, S_BIG, S_SP = 32, 33, 34, 35
    S_MB, S_NB, S_KQ, S_ASRC, S_WSRC, S_STEPS, S_GOFF = 40, 41, 42, 43, 44, 45, 46
    S_RD = 47
    S_WL = 48
    V_DA, V_UA, V_UR = 232, 233, 234
    V_G = 240
    V_X = 248
    BUF = [128, 176]

    a(f"s_cmp_lt_u32 s{S_WAVE}, 4")
    a(f"s_cselect_b32 s{S_T0}, 16, 48")
    a(f"s_load_dwordx2 {sr(S_UW, 2)}, s[0:1], s{S_T0}")
    a(f"s_mov_b32 s{S_UW + 2}, {3584 * 2048}")
    a(f"s_cselect_b32 s{S_UW + 2}, {1024 * 2048}, s{S_UW + 2}")
    a(f"s_mov_b32 s{S_UW + 3}, 0x00020000")
    a(f"s_load_dwordx2 {sr(S_OUT, 2)}, s[0:1], 64")
    a(f"s_and_b32 s{S_T0}, s2, 7")
    a(f"s_lshl_b32 s{S_HEAD}, s{S_T0}, 2")
    a(f"s_lshr_b32 s{S_T1}, s2, 3")
    a(f"s_and_b32 s{S_T2}, s{S_T1}, 3")
    a(f"s_add_u32 s{S_HEAD}, s{S_HEAD}, s{S_T2}")
    a(f"s_lshr_b32 s{S_QBLK}, s2, 5")
    a(f"s_lshl_b32 s36, s{S_HEAD}, 2")
    a("s_and_b32 s36, s36, 8")
    a(f"s_add_u32 s36, s36, s{S_T0}")
    a("s_add_u32 s37, s36, 16")
    a(f"s_add_u32 s38, s{S_T0}, 24")
    a(f"s_lshl_b32 s39, s{S_QBLK}, 5")
    a("s_add_u32 s36, s36, s39")
    X0, X1, X2, X3, X4, X5 = (V_X + i for i in range(6))
    a(f"s_lshr_b32 s{S_MB}, s{S_T0}, 1")
    a(f"s_lshl_b32 s{S_MB}, s{S_MB}, 2")
    a(f"s_add_u32 s{S_MB}, s{S_MB}, s{S_T2}")
    a(f"s_and_b32 s{S_NB}, s{S_T0}, 1")
    a(f"s_lshl_b32 s{S_NB}, s{S_NB}, 3")
    a(f"s_add_u32 s{S_NB}, s{S_NB}, s{S_QBLK}")
    a(f"s_and_b32 s{S_KQ}, s{S_WAVE}, 3")
    a(f"s_cmp_lt_u32 s{S_WAVE}, 4")
    a(f"s_cselect_b32 s{S_T1}, {AF_O}, 0")
    a(f"s_cselect_b32 s{S_STEPS}, 4, 14")
    a(f"s_cselect_b32 s{S_GOFF}, 0, 4")
    a(f"s_add_u32 s{S_T1}, s{S_T1}, s{S_KQ}")
    a(f"s_mul_i32 s{S_ASRC}, s{S_MB}, {AF_KB}")
    a(f"s_add_u32 s{S_ASRC}, s{S_ASRC}, s{S_T1}")
    a(f"s_lshl_b32 s{S_ASRC}, s{S_ASRC}, 13")
    a(f"s_add_u32 s{S_ASRC}, s{S_ASRC}, {AF_BASE}")
    a(f"s_lshl_b32 s{S_WSRC}, s{S_KQ}, 16")
    a(f"s_lshl_b32 s{S_T1}, s{S_NB}, 7")
    a(f"s_add_u32 s{S_WSRC}, s{S_WSRC}, s{S_T1}")
    a(f"s_lshl_b32 s{S_WL}, s{S_KQ}, 13")
    a(f"s_add_u32 s{S_T1}, s{S_WL}, {RB}")
    a(f"s_cmp_lt_u32 s{S_WAVE}, 4")
    a(f"s_cselect_b32 s{S_WL}, s{S_T1}, s{S_WL}")
    a(f"v_lshrrev_b32 v{X0}, 3, v{L}")
    a(f"v_and_b32 v{X1}, 6, v{X0}")
    a(f"v_and_b32 v{X2}, 7, v{L}")
    a(f"v_xor_b32 v{X1}, v{X1}, v{X2}")
    a(f"v_lshlrev_b32 v{X1}, 4, v{X1}")
    a(f"v_lshlrev_b32 v{X0}, 11, v{X0}")
    a(f"v_add_u32 v{V_UA}, v{X0}, v{X1}")
    a(f"v_lshrrev_b32 v{X0}, 2, v{L}")
    a(f"v_lshlrev_b32 v{X0}, 7, v{X0}")
    a(f"v_lshlrev_b32 v{X1}, 2, v{L}")
    a(f"v_and_b32 v{X1}, 0x60, v{X1}")
    a(f"v_add_u32 v{X0}, v{X0}, v{X1}")
    a(f"v_and_b32 v{X1}, 3, v{L}")
    a(f"v_lshlrev_b32 v{X1}, 3, v{X1}")
    a(f"v_add_u32 v{X0}, v{X0}, v{X1}")
    a(f"v_add_u32 v{V_UR}, s{S_WL}, v{X0}")
    for q in range(1, 4):
        a(f"v_xor_b32 v{V_UR + q}, {q << 5}, v{V_UR}")
    a(f"s_lshl_b32 s{S_T1}, s{S_MB}, 10")
    a(f"s_add_u32 s{S_GOFF}, s{S_GOFF}, s{S_T1}")
    a(f"s_add_u32 s{S_GOFF}, s{S_GOFF}, {G_BASE}")
    a(f"v_add_u32 v{V_DA}, 4096, v{V_L16}")
    a(f"s_mov_b32 s{S_OUT + 2}, {2048 * 2048}")
    a(f"s_mov_b32 s{S_OUT + 3}, 0x00020000")
    a(f"s_lshl_b32 s{S_KVB}, s{S_HEAD}, 18")
    a(f"s_add_u32 s{S_KVB}, s{S_KVB}, {KV_BASE}")
    a(f"s_lshl_b32 s{S_LDS}, s{S_KQ}, 13")
    a(f"s_add_u32 s{S_SRC}, s{S_KVB}, s{S_LDS}")
    a(f"s_add_u32 s{S_LDS}, s{S_LDS}, {RB}")
    srd(a, S_KVD, S_WS, WS_USED)
    a(f"s_add_u32 s{S_KVD + 2}, s{S_KVB}, {8 * STG}")
    a(f"s_lshl_b32 s{S_T1}, s{S_KQ}, 13")
    a(f"v_add_u32 v{X5}, s{S_T1}, v{V_L16}")
    a(f"s_cmp_lt_u32 s{S_WAVE}, 4")
    a("s_cbranch_scc0 L_g_start")

    V_K, V_V, V_ONE = 0, 8, 16
    V_OS, V_KA, V_VA, V_PG, V_PW = 20, 21, 22, 23, 24
    V_IDX = 26
    V_PR = 28

    def R(q):
        b = 32 + q * 88
        return dict(Q=b, S=[b + 8, b + 24], C=b + 40, O=b + 56, P=b + 72, L=b + 80, M=b + 84)
    V_T = 208

    for k in range(8):
        a(f"ds_write_b128 v{X5}, {vr(V_H + 4 * k)} offset:{k * 1024}")
    a(f"v_mov_b32 v{V_PW}, {SW}")
    a(f"s_lshl_b32 s{S_TOKB}, s{S_QBLK}, 3")
    a(f"s_lshl_b32 s{S_T1}, s{S_WAVE}, 1")
    a(f"s_add_u32 s{S_TOKB}, s{S_TOKB}, s{S_T1}")
    a(f"v_and_b32 v{X0}, 7, v{L}")
    a(f"v_lshrrev_b32 v{X1}, 1, v{L}")
    a(f"v_and_b32 v{X1}, 8, v{X1}")
    a(f"v_or_b32 v{X0}, v{X0}, v{X1}")
    a(f"v_lshrrev_b32 v{X1}, 3, v{L}")
    a(f"v_and_b32 v{X1}, 1, v{X1}")
    a(f"v_lshlrev_b32 v{V_OS}, 10, v{X1}")
    a(f"v_lshlrev_b32 v{X0}, 4, v{X0}")
    a(f"v_add_u32 v{V_OS}, v{V_OS}, v{X0}")
    a(f"v_lshrrev_b32 v{X0}, 5, v{L}")
    a(f"v_lshlrev_b32 v{X0}, 8, v{X0}")
    a(f"v_add_u32 v{V_OS}, v{V_OS}, v{X0}")
    a(f"v_and_b32 v{X0}, 4, v{L}")
    a(f"v_cmp_eq_u32 vcc, 0, v{X0}")
    a(f"v_mov_b32 v{X1}, 0x3f803f80")
    a("s_nop 1")
    a(f"v_cndmask_b32 v{V_ONE}, 0, v{X1}, vcc")
    a(f"v_mov_b32 v{V_ONE + 1}, v{V_ONE}")
    a(f"v_xor_b32 v{V_ONE + 2}, v{X1}, v{V_ONE}")
    a(f"v_mov_b32 v{V_ONE + 3}, v{V_ONE + 2}")
    a(f"v_and_b32 v{X0}, 1, v{L}")
    a(f"v_cmp_eq_u32 vcc, 0, v{X0}")
    a(f"v_mov_b32 v{X0}, 0xeeeeeeee")
    a(f"v_mov_b32 v{X1}, 0x44444444")
    a(f"v_cndmask_b32 v{V_IDX}, v{X0}, v{X1}, vcc")
    a("s_waitcnt lgkmcnt(0)")
    a(f"s_lshl_b32 s{S_T1}, s{S_WAVE}, 2")
    a(f"s_add_u32 s{S_T1}, s{S_T1}, {SW_H}")
    a(f"v_mov_b32 v{X0}, s{S_T1}")
    a(f"v_mov_b32 v{X1}, 1")
    a(f"ds_write_b32 v{X0}, v{X1}")
    for q in range(2):
        r = R(q)
        for i in range(0, 16, 2):
            a(f"v_mov_b64 {vr(r['O'] + i, 2)}, 0")
        for i in range(0, 4, 2):
            a(f"v_mov_b64 {vr(r['L'] + i, 2)}, 0")
            a(f"v_mov_b64 {vr(r['P'] + 4 + i, 2)}, 0")
    a(f"v_mov_b64 {vr(V_V + 4, 2)}, 0")
    a(f"v_mov_b64 {vr(V_V + 6, 2)}, 0")
    a(f"v_add_u32 v{V_KA}, {RB}, v{V_L16}")
    a(f"v_mov_b32 v{V_VA}, v{V_KA}")
    a(f"s_mov_b32 s{S_RD}, {RB}")
    a(f"s_lshl_b32 s{S_T1}, s{S_WAVE}, 2")
    a(f"s_add_u32 s{S_T1}, s{S_T1}, {SW}")
    a(f"v_mov_b32 v{V_PW + 1}, s{S_T1}")
    a(f"v_mov_b32 v{V_PG}, 0")
    a(f"s_mov_b32 s{S_BIG}, {f32bits(2.0 ** 60):#x}")
    a(f"s_mov_b32 s{S_SP}, 0")
    a(f"s_lshl_b32 s{S_T0}, s{S_HEAD}, 17")
    a(f"s_lshl_b32 s{S_T1}, s{S_TOKB}, 11")
    a(f"s_add_u32 s{S_T0}, s{S_T0}, s{S_T1}")
    a(f"s_cmp_lg_u32 s{S_WAVE}, 0")
    a("s_cbranch_scc1 L_p2_polled")
    a(f"v_and_b32 v{X0}, 7, v{L}")
    a(f"v_lshlrev_b32 v{X0}, 5, v{X0}")
    a(f"v_add_u32 v{X1}, s37, v{X0}")
    a(f"v_add_u32 v{X2}, s38, v{X0}")
    a(f"v_mov_b32 v{X4}, s36")
    a(f"v_cmp_gt_u32 vcc, 16, v{L}")
    a("s_nop 1")
    a(f"v_cndmask_b32 v{X4}, v{X4}, v{X2}, vcc")
    a(f"v_cmp_gt_u32 vcc, 8, v{L}")
    a("s_nop 1")
    a(f"v_cndmask_b32 v{X4}, v{X4}, v{X1}, vcc")
    a(f"v_lshlrev_b32 v{X4}, 7, v{X4}")
    a(f"v_add_u32 v{X4}, {FLAG_BASE}, v{X4}")
    a(f"v_mov_b32 v{X0}, {C0}")
    a(f"v_mov_b32 v{X1}, 0x100")
    ld0 = f"buffer_load_dword v{V_C0}, v{X0}, {DBG}, 0 offen sc1"
    ld1 = f"buffer_load_dword v{X2}, v{X4}, {WS}, 0 offen sc1"
    spin(a, "L_p2_c0", ld0, V_C0, f"v{X1}", S_SP)
    a(ld1)
    a("s_waitcnt vmcnt(0)")
    spin(a, "L_p2_fl", ld1, X2, 1, S_SP)
    a(f"v_mov_b32 v{X0}, {SW_F}")
    a(f"v_mov_b32 v{X1}, 1")
    a(f"ds_write_b32 v{X0}, v{X1}")
    a.label("L_p2_polled")
    lds_wait(a, "L_a_fl", SW_F, 1, X0, S_SP)
    a(f"s_mov_b32 s{S_SP}, 0")
    st.stamp(5)
    a("s_setprio 2")

    def dma_half(h):
        out = [f"s_add_u32 m0, s{S_LDS}, {h * 4096}\ns_add_u32 s{S_T1}, s{S_SRC}, {h * 4096}\n"
               f"buffer_load_dwordx4 v{V_L16}, {sr(S_KVD)}, s{S_T1} offen sc1 lds"]
        for i in range(1, 4):
            out.append(f"buffer_load_dwordx4 v{V_L16}, {sr(S_KVD)}, s{S_T1} offen offset:{i * 1024} sc1 lds")
        if h == 1:
            out[3] += (f"\ns_add_u32 s{S_SRC}, s{S_SRC}, {STG}\ns_add_u32 s{S_LDS}, s{S_LDS}, {STG}\n"
                       f"s_sub_u32 s{S_T1}, s{S_LDS}, {3 * STG}\ns_cmp_ge_u32 s{S_LDS}, {RB + 3 * STG}\n"
                       f"s_cselect_b32 s{S_LDS}, s{S_T1}, s{S_LDS}")
        return out

    for q in range(2):
        a(f"buffer_load_dwordx4 {vr(R(q)['Q'])}, v{V_L16}, {WS}, s{S_T0} offen offset:{q * 2048} sc1")
        a(f"buffer_load_dwordx4 {vr(R(q)['Q'] + 4)}, v{V_L16}, {WS}, s{S_T0} offen offset:{q * 2048 + 1024} sc1")
    if 'd1early' not in OPT:
        for x in dma_half(0) + dma_half(1):
            a(x)
        a("s_waitcnt vmcnt(0)")
        lds_arrive(a, SW_D, X0, "L_a_d0")
        a.label("L_a_d0")
        for x in dma_half(0) + dma_half(1):
            a(x)
    else:
        for x in dma_half(0) + dma_half(1) + dma_half(0) + dma_half(1):
            a(x)
        a("s_waitcnt vmcnt(8)")
        lds_arrive(a, SW_D, X0, "L_a_d0")
        a.label("L_a_d0")
    lds_wait(a, "L_a_dw", SW_D, 4, X0, S_SP)
    a(f"s_mov_b32 s{S_SP}, 0")
    st.stamp(6)

    def rdK(blk):
        o = (blk % NB) * 4096
        return [f"ds_read_b128 {vr(V_K)}, v{V_KA} offset:{o}", f"ds_read_b128 {vr(V_K + 4)}, v{V_KA} offset:{o + 1024}"]

    def rdV(blk):
        o = (blk % NB) * 4096 + 2048
        return [f"ds_read_b128 {vr(V_V)}, v{V_VA} offset:{o}", f"ds_read_b128 {vr(V_V + 4)}, v{V_VA} offset:{o + 1024}"]

    advK = (f"s_add_u32 s{S_RD}, s{S_RD}, {STG}\ns_cmp_ge_u32 s{S_RD}, {RB + 3 * STG}\n"
            f"s_cselect_b32 s{S_RD}, {RB}, s{S_RD}\nv_add_u32 v{V_KA}, s{S_RD}, v{V_L16}")
    advV = f"v_add_u32 v{V_VA}, s{S_RD}, v{V_L16}"

    def rowmax(dst, S, init=None):
        if init is None:
            a(f"v_max3_f32 v{dst}, v{S}, v{S+1}, v{S+2}")
            rest = list(range(3, 16))
        else:
            a(f"v_max3_f32 v{dst}, v{init}, v{S}, v{S+1}")
            rest = list(range(2, 16))
        while len(rest) >= 2:
            a(f"v_max3_f32 v{dst}, v{dst}, v{S + rest[0]}, v{S + rest[1]}")
            rest = rest[2:]
        if rest:
            a(f"v_max_f32 v{dst}, v{dst}, v{S + rest[0]}")

    def crosshalf_max(dst, tmp):
        a(f"v_mov_b32 v{tmp}, v{dst}")
        a("s_nop 1")
        a(f"v_permlane32_swap_b32 v{tmp}, v{dst}")
        a("s_nop 1")
        a(f"v_max_f32 v{dst}, v{dst}, v{tmp}")

    for x in rdK(0):
        a(x)
    a("s_waitcnt lgkmcnt(0)")
    for q in range(2):
        r = R(q)
        a(f"v_mfma_f32_32x32x16_bf16 {vr(r['S'][0], 16)}, {vr(V_K)}, {vr(r['Q'])}, 0")
        a(f"v_mfma_f32_32x32x16_bf16 {vr(r['S'][0], 16)}, {vr(V_K + 4)}, {vr(r['Q'] + 4)}, {vr(r['S'][0], 16)}")
    for x in rdK(1):
        a(x)
    a(rdV(0)[0])
    a("s_nop 14")
    for q in range(2):
        r = R(q)
        rowmax(r['M'], r['S'][0])
        crosshalf_max(r['M'], r['M'] + 1)
        for i in range(16):
            a(f"v_sub_f32 v{r['C'] + i}, 0, v{r['M']}")
        for i in range(16):
            a(f"v_sub_f32 v{r['S'][0] + i}, v{r['S'][0] + i}, v{r['M']}")

    def half_block(i, q, extra):
        extra = list(extra) + ["", "", ""]
        r = R(q)
        Sc, Sn = r['S'][i & 1], r['S'][(i + 1) & 1]
        P, O, Lr = r['P'], r['O'], r['L']
        ex = [f"v_exp_f32 v{Sc + k}, v{Sc + k}" for k in range(16)]
        cv = [f"v_cvt_pk_bf16_f32 v{P + d}, v{Sc + 2*d}, v{Sc + 2*d + 1}" for d in range(8)]
        kr = rdK(i + 2) if q == 1 else ["", ""]
        if q == 0:
            a("s_waitcnt lgkmcnt(1)")
        a(f"v_mfma_f32_32x32x16_bf16 {vr(Sn, 16)}, {vr(V_K)}, {vr(r['Q'])}, {vr(r['C'], 16)}")
        a(kr[0])
        for e in ex[0:3]:
            a(e)
        a(f"v_mfma_f32_32x32x16_bf16 {vr(Sn, 16)}, {vr(V_K + 4)}, {vr(r['Q'] + 4)}, {vr(Sn, 16)}")
        a(kr[1])
        a(extra[0])
        for e in ex[3:6]:
            a(e)
        a(f"v_mfma_f32_32x32x16_bf16 {vr(O, 16)}, {vr(V_V + 4)}, {vr(P + 4)}, {vr(O, 16)}")
        if q == 1:
            a(rdV(i)[1])
        a(ex[6])
        a(ex[7])
        a(cv[0])
        a(cv[1])
        a(cv[2])
        a(cv[3])
        a(ex[8])
        a(ex[9])
        if q == 0:
            a("s_waitcnt lgkmcnt(0)")
        if q == 1 and i % NB == NB - 1:
            a(advV)
        a(f"v_mfma_f32_32x32x16_bf16 {vr(O, 16)}, {vr(V_V)}, {vr(P)}, {vr(O, 16)}")
        if q == 1:
            a(rdV(i + 1)[0])
        a(extra[1])
        for e in ex[10:13]:
            a(e)
        a(f"v_smfmac_f32_16x16x64_bf16 {vr(Lr)}, {vr(V_ONE)}, {vr(P, 8)}, v{V_IDX}")
        a(extra[2])
        for e in ex[13:16]:
            a(e)
        for c in cv[4:8]:
            a(c)

    V_PR2 = V_T
    rdprog = f"ds_read_b128 {vr(V_PR)}, v{V_PW}\nds_read_b128 {vr(V_PR2)}, v{V_PW} offset:16"
    a(f"s_mov_b32 s{S_CNT}, 0")
    a(".p2align 6")
    a.label("L_p2_loop")
    dq = dma_half(0) + dma_half(1)
    for i in range(NB):
        ex0, ex1 = [], []
        if i == 1:
            ex0 = ["", f"v_add_u32 v{V_PG}, 1, v{V_PG}\ns_waitcnt vmcnt(0)\nds_write_b32 v{V_PW + 1}, v{V_PG}"]
        if i == 3:
            ex0 = ["", rdprog]
        if i == 4:
            a("s_waitcnt lgkmcnt(1)")
            a.label("L_p2_chk")
            a(f"v_min3_u32 v{V_PR}, v{V_PR}, v{V_PR+1}, v{V_PR+2}")
            a(f"v_min3_u32 v{V_PR2}, v{V_PR2}, v{V_PR2+1}, v{V_PR2+2}")
            a(f"v_min_u32 v{V_PR2}, v{V_PR2}, v{V_PR2+3}")
            a(f"v_add_u32 v{V_PR2}, 1, v{V_PR2}")
            a(f"v_min3_u32 v{V_PR}, v{V_PR}, v{V_PR+3}, v{V_PR2}")
            a(f"v_cmp_gt_u32 vcc, v{V_PG}, v{V_PR}")
            a("s_cmp_eq_u64 vcc, 0")
            a("s_cbranch_scc0 L_p2_wait")
            a.label("L_p2_go")
            a(f"s_sub_u32 s{S_T0}, s{S_CNT}, 1")
            a(f"s_cmp_lt_u32 s{S_T0}, 5")
            a("s_cselect_b64 vcc, -1, 0")
            st.loop_stamp(48, S_CNT, 1, 0)
        if i >= 4:
            def guard(x, k):
                body = x.split("\n")
                j = [n for n, ln in enumerate(body) if ln.startswith("buffer_load")][0]
                return "\n".join(body[:j] + [f"s_cbranch_vccz L_p2_skip{k}", body[j], f"L_p2_skip{k}:"] + body[j + 1:])
            ex0 = [guard(dq[2 * (i - 4)], 2 * (i - 4))]
            ex1 = [guard(dq[2 * (i - 4) + 1], 2 * (i - 4) + 1)]
        if i == NB - 2:
            a(advK)
        half_block(i, 0, ex0)
        half_block(i, 1, ex1)
    a(f"s_add_u32 s{S_CNT}, s{S_CNT}, 1")
    a(f"s_cmp_lt_u32 s{S_CNT}, 8")
    a("s_cbranch_scc1 L_p2_loop")
    for q in range(2):
        a(f"v_mov_b64 {vr(R(q)['P'], 2)}, 0")
        a(f"v_mov_b64 {vr(R(q)['P'] + 2, 2)}, 0")
    a("s_waitcnt lgkmcnt(0)")
    a("s_nop 0")
    for q in range(2):
        r = R(q)
        a(f"v_mfma_f32_32x32x16_bf16 {vr(r['O'], 16)}, {vr(V_V + 4)}, {vr(r['P'] + 4)}, {vr(r['O'], 16)}")
        a(f"v_smfmac_f32_16x16x64_bf16 {vr(r['L'])}, {vr(V_ONE)}, {vr(r['P'], 8)}, v{V_IDX}")
    a("s_nop 15")
    st.stamp(7)
    a(f"s_lshr_b32 s{S_T2}, s{S_TOKB}, 2")
    a(f"s_mul_i32 s{S_T2}, s{S_T2}, {AF_KB}")
    a(f"s_add_u32 s{S_T2}, s{S_T2}, s{S_HEAD}")
    a(f"s_lshl_b32 s{S_T2}, s{S_T2}, 13")
    a(f"s_and_b32 s{S_T1}, s{S_TOKB}, 2")
    a(f"s_lshl_b32 s{S_T1}, s{S_T1}, 11")
    a(f"s_add_u32 s{S_T2}, s{S_T2}, s{S_T1}")
    a(f"s_add_u32 s{S_T2}, s{S_T2}, {AF_BASE + AF_O * 8192}")
    def finish_q(q):
        r = R(q)
        O, P = r['O'], r['P']
        a(f"v_add_f32 v{r['L']}, v{r['L']}, v{r['L'] + 1}")
        a(f"v_rcp_f32 v{V_T}, v{r['L']}")
        a("s_nop 0")
        for i in range(16):
            a(f"v_mul_f32 v{O + i}, v{O + i}, v{V_T}")
        for d in range(8):
            a(f"v_cvt_pk_bf16_f32 v{P + d}, v{O + 2*d}, v{O + 2*d + 1}")
        a(f"buffer_store_dwordx4 {vr(P)}, v{V_OS}, {WS}, s{S_T2} offen offset:{q * 2048} sc1")
        a(f"buffer_store_dwordx4 {vr(P + 4)}, v{V_OS}, {WS}, s{S_T2} offen offset:{q * 2048 + 512} sc1")

    finish_q(0)
    finish_q(1)
    a(f"v_mov_b32 v{V_T+2}, 0x7c000000")
    for q in range(2):
        r = R(q)
        O = r['O']
        a(f"v_add_f32 v{V_T+1}, abs(v{O}), abs(v{O+1})")
        for i in range(2, 16):
            a(f"v_add_f32 v{V_T+1}, v{V_T+1}, abs(v{O+i})")
        a(f"v_cmp_lt_f32 vcc, v{V_T+1}, v{V_T+2}")
        a(f"v_cmp_gt_f32 s[36:37], s{S_BIG}, v{r['L']}")
        a("s_and_b64 vcc, vcc, s[36:37]")
        a("s_cmp_eq_u64 vcc, exec")
        a(f"s_cbranch_scc0 L_p2_slow{q}")
        a.label(f"L_p2_fin{q}")
    a("s_setprio 0")
    a("s_waitcnt vmcnt(0)")
    lds_arrive(a, SW_A, X0, "L_a_sig")
    global_arrive(a, C3, X0, "L_a_sig")
    a.label("L_a_sig")
    st.stamp(8)
    a(f"v_and_b32 v{X0}, 1, v{L}")
    a(f"v_lshlrev_b32 v{X0}, 2, v{X0}")
    a(f"v_add_u32 v{X0}, {C2}, v{X0}")
    a("s_branch L_gemm")

    a.label("L_p2_wait")
    a(f"s_add_u32 s{S_SP}, s{S_SP}, 1")
    a(f"s_cmp_gt_u32 s{S_SP}, {SPIN_LIMIT * 8}")
    a("s_cbranch_scc1 L_p2_go")
    a("s_sleep 1")
    a(rdprog)
    a("s_waitcnt lgkmcnt(0)")
    a("s_branch L_p2_chk")

    for q in range(2):
        r = R(q)
        S0, Q = r['S'][0], r['Q']
        a.label(f"L_p2_slow{q}")
        a(f"v_mov_b32 v{V_T}, 0xff800000")
        a(f"s_mov_b32 s{S_T0}, s{S_KVB}")
        a(f"s_mov_b32 s{S_CNT}, 0")
        a.label(f"L_p2_slow_max{q}")
        a(f"buffer_load_dwordx4 {vr(V_K)}, v{V_L16}, {WS}, s{S_T0} offen sc1")
        a(f"buffer_load_dwordx4 {vr(V_K + 4)}, v{V_L16}, {WS}, s{S_T0} offen offset:1024 sc1")
        a("s_waitcnt vmcnt(0)")
        a(f"v_mfma_f32_32x32x16_bf16 {vr(S0, 16)}, {vr(V_K)}, {vr(Q)}, 0")
        a(f"v_mfma_f32_32x32x16_bf16 {vr(S0, 16)}, {vr(V_K + 4)}, {vr(Q + 4)}, {vr(S0, 16)}")
        a("s_nop 15")
        rowmax(V_T, S0, init=V_T)
        a(f"s_add_u32 s{S_T0}, s{S_T0}, 4096")
        a(f"s_add_u32 s{S_CNT}, s{S_CNT}, 1")
        a(f"s_cmp_lt_u32 s{S_CNT}, 64")
        a(f"s_cbranch_scc1 L_p2_slow_max{q}")
        crosshalf_max(V_T, V_T + 1)
        for i in range(16):
            a(f"v_sub_f32 v{r['C'] + i}, 0, v{V_T}")
            a(f"v_mov_b32 v{r['O'] + i}, 0")
        for i in range(4):
            a(f"v_mov_b32 v{r['L'] + i}, 0")
        a(f"s_mov_b32 s{S_T0}, s{S_KVB}")
        a(f"s_mov_b32 s{S_CNT}, 0")
        a.label(f"L_p2_slow_pv{q}")
        a(f"buffer_load_dwordx4 {vr(V_K)}, v{V_L16}, {WS}, s{S_T0} offen sc1")
        a(f"buffer_load_dwordx4 {vr(V_K + 4)}, v{V_L16}, {WS}, s{S_T0} offen offset:1024 sc1")
        a(f"buffer_load_dwordx4 {vr(V_V)}, v{V_L16}, {WS}, s{S_T0} offen offset:2048 sc1")
        a(f"buffer_load_dwordx4 {vr(V_V + 4)}, v{V_L16}, {WS}, s{S_T0} offen offset:3072 sc1")
        a("s_waitcnt vmcnt(0)")
        a(f"v_mfma_f32_32x32x16_bf16 {vr(S0, 16)}, {vr(V_K)}, {vr(Q)}, {vr(r['C'], 16)}")
        a(f"v_mfma_f32_32x32x16_bf16 {vr(S0, 16)}, {vr(V_K + 4)}, {vr(Q + 4)}, {vr(S0, 16)}")
        a("s_nop 15")
        for k in range(16):
            a(f"v_exp_f32 v{S0 + k}, v{S0 + k}")
        a("s_nop 0")
        for d in range(8):
            a(f"v_cvt_pk_bf16_f32 v{r['P'] + d}, v{S0 + 2*d}, v{S0 + 2*d + 1}")
        a("s_nop 1")
        a(f"v_mfma_f32_32x32x16_bf16 {vr(r['O'], 16)}, {vr(V_V)}, {vr(r['P'])}, {vr(r['O'], 16)}")
        a(f"v_mfma_f32_32x32x16_bf16 {vr(r['O'], 16)}, {vr(V_V + 4)}, {vr(r['P'] + 4)}, {vr(r['O'], 16)}")
        a(f"v_smfmac_f32_16x16x64_bf16 {vr(r['L'])}, {vr(V_ONE)}, {vr(r['P'], 8)}, v{V_IDX}")
        a("s_nop 15")
        a(f"s_add_u32 s{S_T0}, s{S_T0}, 4096")
        a(f"s_add_u32 s{S_CNT}, s{S_CNT}, 1")
        a(f"s_cmp_lt_u32 s{S_CNT}, 64")
        a(f"s_cbranch_scc1 L_p2_slow_pv{q}")
        finish_q(q)
        a(f"s_branch L_p2_fin{q}")

    a.label("L_g_start")
    a(f"s_lshl_b32 s{S_T1}, s{S_KQ}, 2")
    a(f"s_add_u32 s{S_T1}, s{S_T1}, {SW_H}")
    lds_wait(a, "L_g_hw", f"s{S_T1}", 1, X0, S_SP)
    st.stamp(5)
    for k in range(8):
        a(f"ds_read_b128 {vr(4 * k)}, v{X5} offset:{k * 1024}")
    a(f"s_add_u32 s{S_SRC}, s{S_SRC}, {2 * STG}")
    a(f"s_add_u32 s{S_LDS}, s{S_LDS}, {2 * STG}")
    lds_wait(a, "L_g_dw", SW_D, 4, X0, S_SP)
    st.stamp(6)
    for x in dma_half(0) + dma_half(1):
        a(x)
    TH = int(([o[2:] for o in OPT if o.startswith("th")] or ["8"])[0])
    a(f"s_lshl_b32 s{S_T1}, s{S_WAVE}, 2")
    a(f"s_add_u32 s{S_T1}, s{S_T1}, {SW}")
    a(f"v_mov_b32 v{X0}, s{S_T1}")
    a(f"v_mov_b32 v{X1}, 99")
    st.stamp(12)
    a("s_waitcnt vmcnt(0)")
    a(f"ds_write_b32 v{X0}, v{X1}")
    st.stamp(13)
    for k in range(8):
        a(f"buffer_store_dwordx4 {vr(V_H + 4 * k)}, v{V_L16}, {WS}, s{(S_H0, S_H1)[k // 4]} offen offset:{(k % 4) * 1024} sc1")
        a(f"s_waitcnt vmcnt({TH})")
    a(f"s_sub_u32 s{S_H0}, s{S_H0}, {8 * AF_KB * 1024}")
    a(f"s_sub_u32 s{S_H1}, s{S_H1}, {8 * AF_KB * 1024}")
    for k in range(8):
        a(f"buffer_store_dwordx4 {vr(4 * k)}, v{V_L16}, {WS}, s{(S_H0, S_H1)[k // 4]} offen offset:{(k % 4) * 1024} sc1")
        a(f"s_waitcnt vmcnt({TH})")
    st.stamp(27)
    st.stamp(28)
    a("s_waitcnt vmcnt(0)")
    st.stamp(29)
    for o in OPT:
        if o.startswith("late"):
            lds_wait(a, "L_g_hold", SW, int(o[4:]), X0, S_SP)
    lds_arrive(a, SW_G, X0, "L_g_sig")
    global_arrive(a, C2, X0, "L_g_sig")
    a.label("L_g_sig")
    st.stamp(7)
    st.stamp(8)
    a(f"v_mov_b32 v{X0}, {C2}")

    a.label("L_gemm")

    def wdma(slot, i):
        x = (f"s_add_u32 m0, s{S_WL}, {slot * 4096 + i * 1024}\ns_add_u32 s{S_T1}, s{S_WSRC}, {i * 16384}\n"
             f"buffer_load_dwordx4 v{V_UA}, {sr(S_UW)}, s{S_T1} offen lds")
        if i == 3:
            x += f"\ns_add_u32 s{S_WSRC}, s{S_WSRC}, {128 * 2048}"
        return x

    def wreads(slot):
        return [f"ds_read_b64_tr_b16 {vr(BUF[slot] + 32 + q * 4 + t * 2, 2)}, v{V_UR + q} offset:{slot * 4096 + t * 2048}"
                for q in range(4) for t in range(2)]

    for slot in range(2):
        for i in range(4):
            a(wdma(slot, i))
    for i in range(0, 128, 2):
        a(f"v_mov_b64 {vr(i, 2)}, 0")
    a("s_waitcnt vmcnt(4)")
    for x in wreads(0):
        a(x)
    a("s_waitcnt lgkmcnt(0)")
    for i in range(4):
        a(wdma(0, i))
    ldc = f"buffer_load_dword v{X2}, v{X0}, {DBG}, 0 offen offset:128 sc1"
    a(ldc)
    a("s_waitcnt vmcnt(0)")
    spin(a, "L_gemm_c", "s_sleep 8\n" + ldc, X2, 1, S_SP)
    st.stamp(9)
    srd(a, S_KVD, S_WS, WS_USED)
    GA = sr(S_KVD)

    def aload(u, tt):
        x = (f"buffer_load_dwordx4 {vr(BUF[u] + tt * 4)}, v{V_L16 if tt < 4 else V_DA}, {GA}, s{S_ASRC} "
             f"offen offset:{(tt & 3) * 1024} sc1")
        if tt == 7:
            x += f"\ns_add_u32 s{S_ASRC}, s{S_ASRC}, 32768"
        return x

    a(f"v_and_b32 v{X0}, 15, v{L}")
    a(f"v_lshlrev_b32 v{X0}, 3, v{X0}")
    for tt in range(4, 8):
        a(f"buffer_load_dword v{V_G + tt}, v{X0}, {WS}, s{S_GOFF} offen offset:{tt * 128} sc1")
    for tt in range(8):
        a(aload(0, tt))
    for tt in range(4):
        a(f"buffer_load_dword v{V_G + tt}, v{X0}, {WS}, s{S_GOFF} offen offset:{tt * 128} sc1")
    for tt in range(8):
        a(aload(1, tt))
    a(".p2align 6")
    a.label("L_gemm_loop")
    gate = [o for o in OPT if o.startswith('gate')]
    if gate:
        a(f"s_cmp_eq_u32 s{S_STEPS}, {gate[0][4:]}")
        a("s_cbranch_scc0 L_gemm_ng_ok")
        lds_wait(a, "L_gemm_ng", SW_A, 4, X3, S_SP)
    a(f"s_cmp_eq_u32 s{S_STEPS}, 1")
    a(f"s_cselect_b32 s{S_KVD + 2}, 0, s{S_KVD + 2}")
    for u in range(2):
        a("s_waitcnt vmcnt(12) lgkmcnt(0)")
        rd = wreads(u ^ 1)
        for tt in range(8):
            if tt == 3:
                a("s_waitcnt lgkmcnt(0)")
            for nt in range(4):
                d = vr((tt * 4 + nt) * 4)
                a(f"v_mfma_f32_16x16x32_bf16 {d}, {vr(BUF[u] + 32 + nt * 4)}, {vr(BUF[u] + tt * 4)}, {d}")
                if tt < 2:
                    a(rd[tt * 4 + nt])
                if 3 <= tt < 7 and nt == 1:
                    a(wdma(u ^ 1, tt - 3))
            a(aload(u, tt))
    a(f"s_sub_u32 s{S_STEPS}, s{S_STEPS}, 1")
    a(f"s_cmp_lg_u32 s{S_STEPS}, 0")
    a("s_cbranch_scc1 L_gemm_loop")
    a("s_waitcnt vmcnt(0) lgkmcnt(0)")
    st.stamp(10)
    a(f"s_lshl_b32 s{S_T0}, s{S_KQ}, 15")
    a(f"v_add_u32 v{X3}, s{S_T0}, v{V_L16}")
    a(f"s_lshl_b32 s{S_T0}, s{S_KQ}, 13")
    a(f"v_add_u32 v{X4}, s{S_T0}, v{V_L16}")
    a(f"v_add_u32 v{X5}, 65536, v{X4}")

    def write_partial():
        for i in range(32):
            a(f"ds_write_b128 v{X3}, {vr(4 * i)} offset:{i * 1024}")

    def gather(dst_acc, first):
        src = [(X4, 0), (X4, 32768), (X5, 0), (X5, 32768)]
        for p in range(4):
            for i in range(8):
                a(f"ds_read_b128 {vr(32 * p + 4 * i)}, v{src[p][0]} offset:{src[p][1] + i * 1024}")
            if p in (1, 3):
                a("s_waitcnt lgkmcnt(0)")
                for i in range(0, 32, 2):
                    a(f"v_pk_add_f32 {vr(32 * p + i, 2)}, {vr(32 * p + i, 2)}, {vr(32 * (p - 1) + i, 2)}")
        for i in range(0, 32, 2):
            if first:
                a(f"v_pk_add_f32 {vr(dst_acc + i, 2)}, {vr(32 + i, 2)}, {vr(96 + i, 2)}")
            else:
                a(f"v_pk_add_f32 {vr(32 + i, 2)}, {vr(32 + i, 2)}, {vr(96 + i, 2)}")
                a(f"v_fmac_f32 v{dst_acc + i}, v{32 + i}, v{V_G + i // 16}")
                a(f"v_fmac_f32 v{dst_acc + i + 1}, v{33 + i}, v{V_G + i // 16}")

    a(f"s_cmp_lt_u32 s{S_WAVE}, 4")
    a("s_cbranch_scc0 L_g_red")
    a("s_barrier")
    write_partial()
    a("s_waitcnt lgkmcnt(0)")
    a("s_barrier")
    st.stamp(11)
    st.finish(100)
    a("s_endpgm")

    a.label("L_g_red")
    SUM = 128
    for tt in range(8):
        for i in range(16):
            a(f"v_mul_f32 v{tt * 16 + i}, v{tt * 16 + i}, v{V_G + tt}")
    a(f"v_and_b32 v{X0}, 15, v{L}")
    a(f"v_lshlrev_b32 v{X0}, 3, v{X0}")
    a(f"s_lshl_b32 s{S_T0}, s{S_KQ}, 8")
    a(f"s_add_u32 s{S_T0}, s{S_T0}, s{S_GOFF}")
    a(f"s_sub_u32 s{S_T0}, s{S_T0}, 4")
    a(f"buffer_load_dword v{V_G}, v{X0}, {WS}, s{S_T0} offen sc1")
    a(f"buffer_load_dword v{V_G + 1}, v{X0}, {WS}, s{S_T0} offen offset:128 sc1")
    lds_wait(a, "L_g_wa", SW_A, 4, X0, S_SP)

    def slice_addr(dst, src, j):
        a(f"s_cmp_gt_u32 {j}, {src}")
        a(f"s_cselect_b32 s{S_T1}, 1, 0")
        a(f"s_sub_u32 s{S_T1}, {j}, s{S_T1}")
        a(f"s_lshl_b32 s{S_T2}, {src}, 1")
        a(f"s_add_u32 s{S_T2}, s{S_T2}, s{S_T1}")
        a(f"s_add_u32 s{S_T2}, s{S_T2}, 9")
        a(f"s_cmp_eq_u32 s{S_T1}, 0")
        a(f"s_cselect_b32 s{S_T2}, {src}, s{S_T2}")
        a(f"s_lshl_b32 s{S_T2}, s{S_T2}, 13")
        a(f"v_add_u32 v{dst}, s{S_T2}, v{V_L16}")

    for j in range(4):
        slice_addr(X0, f"s{S_KQ}", j)
        a(f"s_cmp_eq_u32 s{S_KQ}, {j}")
        a(f"s_cbranch_scc1 L_g_own{j}")
        for i in range(8):
            a(f"ds_write_b128 v{X0}, {vr(32 * j + 4 * i)} offset:{i * 1024}")
        a(f"s_branch L_g_nxt{j}")
        a.label(f"L_g_own{j}")
        for i in range(0, 32, 2):
            a(f"v_mov_b64 {vr(SUM + i, 2)}, {vr(32 * j + i, 2)}")
        a.label(f"L_g_nxt{j}")
    a("s_waitcnt lgkmcnt(0)")
    lds_arrive(a, SW_R, X0, "L_g_arr")
    a.label("L_g_arr")
    lds_wait(a, "L_g_wr", SW_R, 4, X0, S_SP)
    for p in range(4):
        a(f"s_cmp_eq_u32 s{S_KQ}, {p}")
        a(f"s_cbranch_scc1 L_g_skip{p}")
        slice_addr(X0, p, f"s{S_KQ}")
        for i in range(8):
            a(f"ds_read_b128 {vr(4 * i)}, v{X0} offset:{i * 1024}")
        a("s_waitcnt lgkmcnt(0)")
        for i in range(0, 32, 2):
            a(f"v_pk_add_f32 {vr(SUM + i, 2)}, {vr(SUM + i, 2)}, {vr(i, 2)}")
        a.label(f"L_g_skip{p}")
    a("s_barrier")
    a(f"v_and_b32 v{X0}, 15, v{L}")
    a(f"s_lshl_b32 s{S_T0}, s{S_MB}, 7")
    a(f"s_lshl_b32 s{S_T1}, s{S_KQ}, 5")
    a(f"s_add_u32 s{S_T0}, s{S_T0}, s{S_T1}")
    a(f"v_add_u32 v{X0}, s{S_T0}, v{X0}")
    a(f"v_lshlrev_b32 v{X0}, 11, v{X0}")
    a(f"v_lshlrev_b32 v{X1}, 1, v{L}")
    a(f"v_and_b32 v{X1}, 32, v{X1}")
    a(f"v_add_u32 v{X0}, v{X0}, v{X1}")
    a(f"v_lshrrev_b32 v{X1}, 1, v{L}")
    a(f"v_and_b32 v{X1}, 16, v{X1}")
    a(f"v_add_u32 v{X0}, v{X0}, v{X1}")
    a(f"s_lshl_b32 s{S_T0}, s{S_NB}, 7")
    a(f"s_add_u32 s{S_T1}, s{S_T0}, {16 * 2048}")
    a("s_waitcnt vmcnt(0)")
    a("s_barrier")
    gather(SUM, False)
    P = 160
    for i in range(16):
        a(f"v_cvt_pk_bf16_f32 v{P + i}, v{SUM + 2*i}, v{SUM + 2*i + 1}")
    a("s_nop 1")
    for m in range(4):
        a(f"v_permlane16_swap_b32 v{P + 4*m}, v{P + 4*m + 2}")
        a(f"v_permlane16_swap_b32 v{P + 4*m + 1}, v{P + 4*m + 3}")
    for m in range(4):
        a(f"buffer_store_dwordx4 {vr(P + 4*m)}, v{X0}, {sr(S_OUT)}, s{S_T0 if m < 2 else S_T1} offen offset:{64 * (m & 1)}")
    if STAMPS:
        a("s_waitcnt vmcnt(0)")
    st.stamp(11)
    st.finish(100)


def main():
    global STAMPS
    if "--stamps" in sys.argv:
        STAMPS = True
        sys.argv.remove("--stamps")
    for x in list(sys.argv):
        if x.startswith("--opt="):
            OPT.update(x[6:].split(","))
            sys.argv.remove(x)
    global FLAG_TP_O
    if 'fo1' in OPT:
        FLAG_TP_O = 1
    if 'fom' in OPT:
        FLAG_TP_O = -1
    if 'fo0' in OPT:
        FLAG_TP_O = 0
    out = sys.argv[1] if len(sys.argv) > 1 else f"cdna_kernels/{NAME}.s"
    ref = open(f"cdna_kernels/{NAME}.s.ref").read().split("\n")
    head = [ln for ln in ref if ln.startswith(";") and "@launch" not in ln and "Override launch" not in ln
            and "grid=ceil" not in ln]
    a = Asm()
    a(f".globl {KNAME}")
    a(".p2align 8")
    a(f".type {KNAME},@function")
    a.label(KNAME)
    a("s_cmp_ge_u32 s2, 256")
    a("s_cbranch_scc1 L_end")
    st = Stamper(a)
    st.start()
    phase1(a, st)
    phase23(a, st)
    a.label("L_end")
    a("s_endpgm")
    a.label("L_code_end")
    txt = "\n".join(head) + "\n"
    if "list" in OPT:
        txt += f"; @launch kernel={KNAME} grid=(256,1,1) block=(512,1,1) lds=163840\n"
    else:
        txt += "; @launch grid=(256,1,1) block=(512,1,1) lds=163840\n"
    txt += '.amdgcn_target "amdgcn-amd-amdhsa--gfx950"\n.text\n'
    txt += a.text()
    txt += f""".section .rodata,"a"
.p2align 6
.amdhsa_kernel {KNAME}
  .amdhsa_next_free_vgpr 256
  .amdhsa_next_free_sgpr 102
  .amdhsa_accum_offset 256
  .amdhsa_group_segment_fixed_size 0
  .amdhsa_kernarg_size 88
  .amdhsa_user_sgpr_count 2
  .amdhsa_user_sgpr_kernarg_segment_ptr 1
  .amdhsa_system_sgpr_workgroup_id_x 1
.end_amdhsa_kernel
"""
    open(out, "w").write(txt)


if __name__ == "__main__":
    main()
```

```python
import struct
import sys

NAME = "gated_mix__softmax_full_mha__swiglu_ffn__prompt"
KNAME = NAME + "_kernel"

QF_BASE = 0
KV_BASE = 4 << 20
AF_BASE = 12 << 20
AF_KB = 144
AF_O = 112
G_BASE = AF_BASE + 128 * AF_KB * 1024
FLAG_BASE = G_BASE + 2048 * 8
WS_USED = FLAG_BASE + 256 * 128
STAMP_BASE = 64 << 20
STAMPS = True
OPT = set()
LOG2E = 1.4426950408889634
QSCALE = (32 ** -0.5) * LOG2E
C0, C2, C3 = 0, 4, 8
SPIN_LIMIT = 1 << 22


def f32bits(x):
    return struct.unpack("<I", struct.pack("<f", x))[0]


class Asm:
    def __init__(self):
        self.lines = []

    def __call__(self, s):
        for ln in s.split("\n"):
            ln = ln.strip()
            if not ln:
                continue
            if ln.endswith(":") or ln.startswith("."):
                self.lines.append(ln)
            else:
                self.lines.append("    " + ln)

    def label(self, name):
        self.lines.append(name + ":")

    def text(self):
        return "\n".join(self.lines) + "\n"


def vr(base, n=4):
    return f"v[{base}:{base + n - 1}]"


def sr(base, n=4):
    return f"s[{base}:{base + n - 1}]"


def srd(a, dst, lo, nbytes):
    a(f"s_mov_b32 s{dst}, s{lo}")
    a(f"s_mov_b32 s{dst + 1}, s{lo + 1}")
    a(f"s_mov_b32 s{dst + 2}, {nbytes}")
    a(f"s_mov_b32 s{dst + 3}, 0x00020000")


class Stamper:
    MAP = {-1: 4, 1: 5, 2: 6, 6: 7, 7: 8, 9: 9, 10: 10, 11: 11}

    def __init__(self, a):
        self.a = a

    def start(self):
        self.stamp(-1)

    def stamp(self, idx):
        if idx not in self.MAP:
            return
        self.a("s_memrealtime s[80:81]")
        self.a("s_waitcnt lgkmcnt(0)")
        self.a(f"v_writelane_b32 v255, s80, {self.MAP[idx]}")
        if idx == -1:
            self.a("s_not_b32 s80, s80")
            self.a("v_writelane_b32 v255, s80, 3")

    def loop_stamp(self, *args):
        pass

    def finish(self, vt):
        a = self.a
        a(f"v_lshlrev_b32 v{vt}, 2, v{V_LANE}")
        a(f"s_cmp_lt_u32 s{S_WAVE}, 4")
        a("s_mov_b32 exec_hi, 0")
        a("s_mov_b32 exec_lo, 0x800")
        a("s_cselect_b32 exec_lo, 0xff8, exec_lo")
        a(f"s_and_b32 s80, s{S_WAVE}, 3")
        a("s_cmp_eq_u32 s80, 0")
        a(f"s_cbranch_scc0 L_fin{id(self) % 1000}_{len(a.lines)}")
        lab = a.lines[-1].split()[-1]
        a(f"buffer_atomic_umax v255, v{vt}, {sr(S_DBG)}, 0 offen sc1")
        a.label(lab)


S_WAVE = 3
S_WS, S_DBG = 4, 8
V_LANE, V_L16 = 228, 229
V_C0 = 251
SW = 147456
SW_G, SW_A, SW_R, SW_F, SW_D, SW_H = SW + 32, SW + 36, SW + 40, SW + 44, SW + 48, SW + 64
V_H = 192
S_H0, S_H1 = 78, 79
FLAG_TP_E, FLAG_TP_O = -1, -1
NEARLY = 9
WS = sr(S_WS)
DBG = sr(S_DBG)


def signal(a, off, vt, label):
    a(f"s_cmp_lg_u32 s{S_WAVE}, 0")
    a(f"s_cbranch_scc1 {label}")
    a(f"v_mov_b32 v{vt}, 1")
    a(f"v_mov_b32 v{vt + 1}, {off}")
    a("s_mov_b64 exec, 1")
    a(f"buffer_atomic_add v{vt}, v{vt + 1}, {DBG}, 0 offen sc1")
    a("s_mov_b64 exec, -1")
    a.label(label)


def spin(a, label, load, vval, expect, scnt):
    a(f"s_mov_b32 s{scnt}, 0")
    a.label(label)
    a(f"v_cmp_{'ne' if expect == 1 else 'gt'}_u32 vcc, {expect}, v{vval}")
    a("s_cmp_eq_u64 vcc, 0")
    a(f"s_cbranch_scc1 {label}_ok")
    a("s_sleep 1")
    a(load)
    a("s_waitcnt vmcnt(0)")
    a(f"s_add_u32 s{scnt}, s{scnt}, 1")
    a(f"s_cmp_lt_u32 s{scnt}, {SPIN_LIMIT}")
    a(f"s_cbranch_scc1 {label}")
    a.label(f"{label}_ok")


def phase1(a, st):
    XBUF = [0, 32768]
    WBASE = 65536
    WSTRIDE = 40960
    S_X, S_QKV, S_G, S_U, S_GW, S_PF = 12, 16, 20, 24, 28, 32
    S_W1024, S_ROWBLK, S_XCD, S_COLSUB, S_KX = 36, 37, 38, 39, 40
    S_WO = 41
    S_CNT = 46
    S_T0, S_T1, S_T2, S_T3 = 47, 48, 49, 50
    S_WN = 51
    S_NL2E, S_ONE, S_QS = 52, 54, 56
    S_FU, S_QKU, S_VU, S_TOK, S_E = 58, 59, 60, 61, 62
    S_PFO, S_PFS = 63, 100
    XF = [160, 176]
    WF = 192
    V_XA = 212
    V_WA, V_WB = 214, 218
    V_DX = 220
    V_DW6, V_DW7 = 224, 225
    V_PF, V_PFD = 226, 227
    V_ST = 230
    V_T = 232
    L = V_LANE
    T0, T1, T2, T3, T4 = V_T, V_T + 1, V_T + 2, V_T + 3, V_T + 4

    def acc(nt, tt):
        return (nt * 4 + tt) * 4

    for dst, off in ((S_X, 0), (S_QKV, 8), (S_G, 32), (S_U, 40), (S_WS, 80), (S_DBG, 72), (64, 56)):
        a(f"s_load_dwordx2 {sr(dst, 2)}, s[0:1], {off}")
    a(f"v_and_b32 v{L}, 63, v0")
    a(f"v_lshrrev_b32 v{T0}, 6, v0")
    a(f"v_lshlrev_b32 v{V_L16}, 4, v{L}")
    a(f"v_readfirstlane_b32 s{S_WAVE}, v{T0}")
    a("s_getpc_b64 s[28:29]")
    a.label("L_p1_pc")
    a(f"s_sub_u32 s28, s28, L_p1_pc-{KNAME}")
    a("s_subb_u32 s29, s29, 0")
    a(f"s_cmp_eq_u32 s{S_WAVE}, 7")
    a(f"s_cselect_b32 s30, L_code_end-{KNAME}, 0")
    a("s_mov_b32 s31, 0x00020000")
    a(f"s_lshr_b32 s{S_COLSUB}, s2, 3")
    a(f"s_and_b32 s{S_COLSUB}, s{S_COLSUB}, 3")
    a(f"s_lshl_b32 s{S_T0}, s{S_COLSUB}, 13")
    a(f"v_lshlrev_b32 v{T1}, 7, v{L}")
    a(f"buffer_load_dword v{V_PFD}, v{T1}, s[28:31], s{S_T0} offen")
    a(f"s_and_b32 s{S_XCD}, s2, 7")
    a(f"s_lshr_b32 s{S_ROWBLK}, s2, 5")
    a(f"s_lshl_b32 s{S_W1024}, s{S_WAVE}, 10")
    a(f"s_and_b32 s{S_WN}, s{S_WAVE}, 1")
    a(f"s_lshl_b32 s{S_T0}, s{S_WN}, 2")
    a(f"v_lshrrev_b32 v{T0}, 4, v{L}")
    a(f"v_add_u32 v{T0}, s{S_T0}, v{T0}")
    a(f"v_and_b32 v{T1}, 7, v{L}")
    a(f"v_xor_b32 v{T0}, v{T0}, v{T1}")
    a(f"v_lshlrev_b32 v{T0}, 4, v{T0}")
    a(f"v_lshrrev_b32 v{T2}, 3, v{L}")
    a(f"s_lshl_b32 s{S_T0}, s{S_ROWBLK}, 8")
    a(f"s_lshl_b32 s{S_T1}, s{S_WAVE}, 3")
    a(f"s_add_u32 s{S_T0}, s{S_T0}, s{S_T1}")
    a(f"v_add_u32 v{T3}, s{S_T0}, v{T2}")
    a(f"v_lshlrev_b32 v{T3}, 11, v{T3}")
    a(f"v_add_u32 v{V_DX}, v{T3}, v{T0}")
    for j in range(1, 4):
        a(f"v_add_u32 v{V_DX + j}, {j * 64 * 2048}, v{V_DX}")
    a(f"v_and_b32 v{T0}, 2, v{T2}")
    a(f"s_lshl_b32 s{S_T0}, s{S_WN}, 2")
    a(f"v_or_b32 v{T0}, s{S_T0}, v{T0}")
    a(f"v_xor_b32 v{T0}, v{T0}, v{T1}")
    a(f"v_lshlrev_b32 v{T0}, 4, v{T0}")
    a(f"v_add_u32 v{T3}, s{S_T1}, v{T2}")
    a(f"v_mul_u32_u24 v{V_DW6}, 6144, v{T3}")
    a(f"v_add_u32 v{V_DW6}, v{V_DW6}, v{T0}")
    a(f"v_mul_u32_u24 v{V_DW7}, 7168, v{T3}")
    a(f"v_add_u32 v{V_DW7}, v{V_DW7}, v{T0}")
    a(f"s_mov_b32 s{S_KX}, 0")
    a(f"s_mul_i32 s{S_E}, s{S_XCD}, 3")
    a(f"s_add_u32 s{S_E}, s{S_E}, s{S_COLSUB}")
    a(f"s_lshl_b32 s{S_T0}, s{S_E}, 8")
    a(f"s_lshl_b32 s{S_T1}, s{S_XCD}, 7")
    a(f"s_add_u32 s{S_T2}, s{S_T1}, 6144")
    a(f"s_cmp_eq_u32 s{S_COLSUB}, 3")
    a(f"s_cselect_b32 s{S_WO}, s{S_T2}, s{S_T0}")
    a(f"s_mov_b32 s{S_WO+1}, s{S_WO}")
    a(f"s_add_u32 s{S_T0}, s{S_T0}, 128")
    a(f"s_lshl_b32 s{S_QKU}, s{S_XCD}, 1")
    a(f"s_and_b32 s{S_T2}, s{S_COLSUB}, 1")
    a(f"s_add_u32 s{S_QKU}, s{S_QKU}, s{S_T2}")
    a(f"s_lshr_b32 s{S_T2}, s{S_COLSUB}, 1")
    a(f"s_lshl_b32 s{S_T2}, s{S_T2}, 4")
    a(f"s_add_u32 s{S_QKU}, s{S_QKU}, s{S_T2}")
    a(f"s_lshl_b32 s{S_T2}, s{S_QKU}, 7")
    a(f"s_lshl_b32 s{S_T1}, s{S_XCD}, 8")
    a(f"s_add_u32 s{S_T1}, s{S_T1}, 4096")
    a(f"s_add_u32 s{S_T3}, s{S_T1}, 128")
    a(f"s_cmp_eq_u32 s{S_COLSUB}, 3")
    a(f"s_cselect_b32 s{S_WO+2}, s{S_T2}, s{S_T0}")
    a(f"s_cselect_b32 s{S_WO+3}, s{S_T1}, s{S_T0}")
    a(f"s_cselect_b32 s{S_WO+4}, s{S_T3}, s{S_T2}")
    a(f"s_lshl_b32 s{S_QKU}, s{S_QKU}, 1")
    a(f"s_add_u32 s{S_QKU}, s{S_QKU}, s{S_WN}")
    a(f"s_and_b32 s{S_T0}, s{S_WAVE}, 1")
    a(f"s_lshl_b32 s{S_T0}, s{S_T0}, 3")
    a(f"s_add_u32 s{S_T0}, s{S_T0}, 32")
    a(f"s_cmp_eq_u32 s{S_COLSUB}, 3")
    a(f"s_cselect_b32 s{S_T1}, 2, 4")
    a(f"s_cmp_ge_u32 s{S_WAVE}, s{S_T1}")
    a(f"s_cselect_b32 s{S_T0}, 8, s{S_T0}")
    a(f"s_mov_b32 s{S_T3}, 7168")
    a(f"s_cselect_b32 s{S_T3}, 6144, s{S_T3}")
    a(f"s_cmp_ge_u32 s{S_WAVE}, 5")
    a(f"s_cselect_b32 s{S_T0}, 0, s{S_T0}")
    a(f"s_cselect_b32 s{S_T3}, 2048, s{S_T3}")
    a(f"s_cmp_eq_u32 s{S_WAVE}, 6")
    a(f"s_cselect_b32 s{S_T0}, 48, s{S_T0}")
    a(f"s_cmp_eq_u32 s{S_WAVE}, 7")
    a(f"s_cselect_b32 s{S_T0}, 16, s{S_T0}")
    a(f"s_load_dwordx2 {sr(S_PF, 2)}, s[0:1], s{S_T0}")
    a(f"s_lshl_b32 s{S_PF+2}, s{S_T3}, 10")
    a(f"s_lshl_b32 s{S_PFS}, s{S_T3}, 6")
    a(f"s_mov_b32 s{S_PFO}, 0")
    for p_ in range(5):
        a(f"s_cmp_eq_u32 s{S_WAVE}, {p_}")
        a(f"s_cselect_b32 s{S_PFO}, s{S_WO+p_}, s{S_PFO}")
    a(f"s_cmp_eq_u32 s{S_WAVE}, 5")
    a(f"s_cselect_b32 s{S_PF+2}, {2048 * 2048}, s{S_PF+2}")
    a(f"s_cselect_b32 s{S_PFS}, 128, s{S_PFS}")
    a(f"s_cmp_gt_u32 s{S_WAVE}, 5")
    a(f"s_cselect_b32 s{S_PF+2}, 0, s{S_PF+2}")
    a(f"s_mov_b32 s{S_PF+3}, 0x00020000")
    a(f"s_lshl_b32 s{S_T0}, s{S_ROWBLK}, 3")
    a(f"s_lshl_b32 s{S_T1}, s{S_ROWBLK}, 8")
    a(f"s_lshl_b32 s{S_T2}, s{S_COLSUB}, 6")
    a(f"s_add_u32 s{S_T1}, s{S_T1}, s{S_T2}")
    a(f"s_cmp_lt_u32 s{S_WAVE}, 5")
    a(f"s_cselect_b32 s{S_T0}, s{S_T0}, s{S_T1}")
    a(f"s_cselect_b32 s{S_T1}, 7, 63")
    a(f"v_and_b32 v{V_PF}, s{S_T1}, v{L}")
    a(f"v_add_u32 v{V_PF}, s{S_T0}, v{V_PF}")
    a(f"v_mul_lo_u32 v{V_PF}, v{V_PF}, s{S_T3}")
    for dst, nb in ((S_X, 2048 * 2048), (S_QKV, 1024 * 6144), (S_G, 1024 * 7168), (S_U, 1024 * 7168),
                    (S_WS, WS_USED), (S_DBG, 256)):
        a(f"s_mov_b32 s{dst + 2}, {nb}")
        a(f"s_mov_b32 s{dst + 3}, 0x00020000")
    pf = (f"buffer_load_dword v{V_PFD}, v{V_PF}, {sr(S_PF)}, s{S_PFO} offen\n"
          f"s_add_u32 s{S_PFO}, s{S_PFO}, s{S_PFS}")
    a("s_waitcnt lgkmcnt(0)")
    po = ([o[2:] for o in OPT if o.startswith("po")] or ["220"])[0]
    for _ in range(int(po[0])):
        a(pf)
    a(f"s_cmp_eq_u32 s{S_COLSUB}, 3")
    a("s_cbranch_scc1 L_p1_O")

    for variant in ("E", "O"):
        a.label(f"L_p1_{variant}")
        if variant == "E":
            blocks = [S_G, S_U, S_G, S_U, S_QKV]
            tiles = [(V_WB + 0, 0, 0), (V_WB + 1, 0, 0),
                     (V_WA + 0, 0, 0), (V_WA + 1, 0, 0), (V_WA + 0, 8192, 0), (V_WA + 1, 8192, 0),
                     (V_WA + 2, 0, 0), (V_WA + 3, 0, 0), (V_WA + 2, 8192, 0), (V_WA + 3, 8192, 0)]
            hunits = [(2, 4), (6, 8)]
            qk_t, v_t = 0, None
            last_order = [(0, 0), (0, 1), (0, 2), (0, 3), (1, 0), (1, 1)] + [(0, n) for n in range(4, 10)] + \
                         [(1, n) for n in range(2, 10)]
        else:
            blocks = [S_G, S_U, S_QKV, S_QKV, S_QKV]
            tiles = [(V_WB + 0, 16384, 0), (V_WB + 1, 16384, 0),
                     (V_WA + 0, 0, 1), (V_WA + 1, 0, 1), (V_WA + 2, 0, 1), (V_WA + 3, 0, 1),
                     (V_WB + 0, 0, 0), (V_WB + 1, 0, 0), (V_WB + 0, 8192, 0), (V_WB + 1, 8192, 0)]
            hunits = [(6, 8)]
            qk_t, v_t = 0, 2
            last_order = [(0, 0), (0, 1), (0, 2), (0, 3), (1, 0), (1, 1), (1, 2), (1, 3), (0, 4), (1, 4),
                          (0, 5), (1, 5)] + [(k, n) for n in range(6, 10) for k in range(2)]

        def dma_list(buf):
            out = []
            for j in range(4):
                out.append(f"s_add_u32 m0, s{S_W1024}, {XBUF[buf] + j * 8192}\ns_nop 0\n"
                           f"buffer_load_dwordx4 v{V_DX + j}, {sr(S_X)}, s{S_KX} offen lds")
            for p in range(5):
                b = blocks[p]
                vd = V_DW6 if b == S_QKV else V_DW7
                pitch = 6144 if b == S_QKV else 7168
                out.append(f"s_add_u32 m0, s{S_W1024}, {WBASE + buf * WSTRIDE + p * 8192}\ns_nop 0\n"
                           f"buffer_load_dwordx4 v{vd}, {sr(b)}, s{S_WO + p} offen lds\n"
                           f"s_add_u32 s{S_WO + p}, s{S_WO + p}, {64 * pitch}")
            out[3] += f"\ns_add_u32 s{S_KX}, s{S_KX}, 128"
            return out

        for d in dma_list(0):
            a(d)
        for _ in range(int(po[1])):
            a(pf)
        d1 = dma_list(1)
        srd(a, S_GW, 64, 2048)
        if True:
            a(f"s_cmp_eq_u32 s{S_WAVE}, 6")
            a(f"s_cselect_b32 s{S_T0}, 14, 4")
            a(f"s_lshl_b32 s{S_T0}, s{S_T0}, 11")
            a(f"s_mul_i32 s{S_T1}, s{S_T0}, s2")
            a(f"s_add_u32 s{S_T0}, s{S_T0}, s{S_T1}")
            a(f"v_and_b32 v{T0}, 15, v{L}")
            a(f"v_lshlrev_b32 v{T0}, 7, v{T0}")
            a(f"s_cmp_gt_u32 s{S_WAVE}, 5")
            a(f"s_cselect_b32 s{S_PF+2}, s{S_T0}, s{S_PF+2}")
            a(f"s_cselect_b32 s{S_PFO}, s{S_T1}, s{S_PFO}")
            a(f"s_cselect_b32 s{S_PFS}, 2048, s{S_PFS}")
            a("s_cselect_b64 vcc, -1, 0")
            a("s_nop 1")
            a(f"v_cndmask_b32 v{V_PF}, v{V_PF}, v{T0}, vcc")
        a("s_lshr_b32 s65, s2, 6")
        a("s_add_u32 s65, s65, 1")
        a(f"s_lshr_b32 s{S_T0}, s{S_WAVE}, 1")
        a(f"s_lshl_b32 s{S_T0}, s{S_T0}, 13")
        a(f"v_and_b32 v{T1}, 15, v{L}")
        a(f"v_lshlrev_b32 v{T1}, 7, v{T1}")
        a(f"v_add_u32 v{T3}, s{S_T0}, v{T1}")
        a(f"v_lshrrev_b32 v{T1}, 1, v{L}")
        a(f"v_and_b32 v{T1}, 7, v{T1}")
        a(f"v_lshrrev_b32 v{T4}, 4, v{L}")
        a(f"v_xor_b32 v{T1}, v{T1}, v{T4}")
        a(f"v_lshlrev_b32 v{T1}, 4, v{T1}")
        a(f"v_add_u32 v{V_XA}, v{T3}, v{T1}")
        a(f"v_xor_b32 v{V_XA+1}, 64, v{V_XA}")
        a(f"v_lshlrev_b32 v{T4}, 10, v{T4}")
        a(f"v_lshrrev_b32 v{T1}, 2, v{L}")
        a(f"v_and_b32 v{T1}, 3, v{T1}")
        a(f"v_lshlrev_b32 v{T3}, 7, v{T1}")
        a(f"v_add_u32 v{T4}, v{T4}, v{T3}")
        a(f"v_lshlrev_b32 v{T1}, 2, v{L}")
        a(f"v_and_b32 v{T1}, 0x60, v{T1}")
        a(f"v_add_u32 v{T4}, v{T4}, v{T1}")
        a(f"v_and_b32 v{T1}, 3, v{L}")
        a(f"v_lshlrev_b32 v{T1}, 3, v{T1}")
        a(f"v_add_u32 v{T4}, v{T4}, v{T1}")

        if variant == "E":
            a(f"s_lshl_b32 s{S_T0}, s{S_WN}, 14")
            a(f"s_add_u32 s{S_T0}, s{S_T0}, {WBASE}")
            a(f"s_mov_b32 s{S_T1}, {WBASE + 4 * 8192}")
            a(f"s_lshl_b32 s{S_FU}, s{S_E}, 2")
            a(f"s_lshl_b32 s{S_T2}, s{S_WN}, 1")
            a(f"s_add_u32 s{S_FU}, s{S_FU}, s{S_T2}")
        else:
            a(f"s_lshl_b32 s{S_T0}, s{S_WN}, 13")
            a(f"s_add_u32 s{S_T0}, s{S_T0}, {WBASE + 3 * 8192}")
            a(f"s_mov_b32 s{S_T1}, {WBASE}")
            a(f"s_lshl_b32 s{S_FU}, s{S_XCD}, 1")
            a(f"s_add_u32 s{S_FU}, s{S_FU}, 96")
            a(f"s_add_u32 s{S_FU}, s{S_FU}, s{S_WN}")
            a(f"s_lshl_b32 s{S_VU}, s{S_XCD}, 2")
            a(f"s_lshl_b32 s{S_T2}, s{S_WN}, 1")
            a(f"s_add_u32 s{S_VU}, s{S_VU}, s{S_T2}")
        for q in range(4):
            a(f"v_xor_b32 v{V_WA + q}, {q << 5}, v{T4}")
            a(f"v_add_u32 v{V_WA + q}, s{S_T0}, v{V_WA + q}")
        a(f"s_lshl_b32 s{S_T2}, s{S_WN}, 6")
        a(f"v_xor_b32 v{V_WB}, s{S_T2}, v{T4}")
        a(f"v_add_u32 v{V_WB}, s{S_T1}, v{V_WB}")
        a(f"v_xor_b32 v{V_WB+1}, 32, v{V_WB}")
        a(f"v_lshrrev_b32 v{T1}, 3, v{L}")
        a(f"v_lshlrev_b32 v{T1}, 8, v{T1}")
        a(f"v_and_b32 v{T2}, 7, v{L}")
        a(f"v_lshlrev_b32 v{T2}, 4, v{T2}")
        a(f"v_add_u32 v{V_ST}, v{T1}, v{T2}")
        a(f"s_mov_b32 s{S_NL2E}, {f32bits(-LOG2E):#x}")
        a(f"s_mov_b32 s{S_NL2E+1}, {f32bits(-LOG2E):#x}")
        a(f"s_mov_b32 s{S_ONE}, 1.0")
        a(f"s_mov_b32 s{S_ONE+1}, 1.0")
        a(f"s_lshl_b32 s{S_T0}, s2, 3")
        a(f"s_add_u32 s{S_TOK}, s{S_T0}, s{S_WAVE}")
        for i in range(0, 160, 2):
            a(f"v_mov_b64 {vr(i, 2)}, 0")

        normal_order = [divmod(j, 10) for j in range(20)]

        def wread(buf, j, order=normal_order):
            ks, nt = order[j]
            va, imm, _ = tiles[nt]
            F = WF + (j % 5) * 4
            return [f"ds_read_b64_tr_b16 {vr(F + 2 * t, 2)}, v{va} offset:{buf * WSTRIDE + imm + (32 * ks + 4 * t) * 128}"
                    for t in range(2)]

        def xread(buf, ks, tt):
            return f"ds_read_b128 {vr(XF[ks] + 4 * tt)}, v{V_XA + ks} offset:{XBUF[buf] + tt * 2048}"

        def mfma(j, tt, order=normal_order):
            ks, nt = order[j]
            W = vr(WF + (j % 5) * 4)
            X = vr(XF[ks] + 4 * tt)
            A, B = (X, W) if tiles[nt][2] else (W, X)
            d = vr(acc(nt, tt))
            return f"v_mfma_f32_16x16x32_bf16 {d}, {A}, {B}, {d}"

        a(f"v_lshlrev_b32 v{T1}, 2, v{L}")
        a(f"v_add_u32 v{T1}, {SW}, v{T1}")
        a(f"v_mov_b32 v{T0}, 0")
        a(f"ds_write_b32 v{T1}, v{T0}")
        a("s_waitcnt lgkmcnt(0)")
        a(f"s_lshl_b32 s{S_T0}, s2, 7")
        a(f"s_add_u32 s{S_T0}, s{S_T0}, {FLAG_BASE}")
        a(f"v_mov_b32 v{T0}, 0")
        a(f"buffer_store_dword v{T0}, v{T0}, {WS}, s{S_T0} offen sc1")
        st.stamp(0)
        a(f"s_waitcnt vmcnt({1 + int(po[1])})")
        a("s_barrier")
        st.stamp(1)
        for tt in range(4):
            a(xread(0, 0, tt))
        for j in range(4):
            for r in wread(0, j):
                a(r)
        for d in d1[:2]:
            a(d)
        for _ in range(int(po[2])):
            a(pf)

        def stage(buf, post_barrier=None):
            for j in range(20):
                if j == 16:
                    a("s_waitcnt vmcnt(1) lgkmcnt(0)")
                    a("s_barrier")
                    st.loop_stamp(32, S_CNT, 2, buf)
                    assert not stage.pending
                    stage.pending = dma_list(buf) + [pf]
                    if post_barrier:
                        post_barrier()
                elif j % 2 == 0 and j < 16:
                    a("s_waitcnt lgkmcnt(4)")
                wr = wread(buf, j + 4) if j + 4 < 20 else wread(buf ^ 1, j + 4 - 20)
                xr = []
                if 2 <= j <= 5:
                    xr = [xread(buf, 1, j - 2)]
                if j in (16, 17):
                    xr = [xread(buf ^ 1, 0, 2 * (j - 16)), xread(buf ^ 1, 0, 2 * (j - 16) + 1)]
                dm, dm2 = [], []
                if stage.pending and j not in (16, 17):
                    if 'dma2' in OPT and not xr and j < 16:
                        dm2 = [stage.pending.pop(0)]
                if stage.pending and j not in (16, 17):
                    dm = [stage.pending.pop(0)]
                slots = [wr[:1], wr[1:] + dm2, xr[:1], xr[1:] + dm]
                for tt in range(4):
                    a(mfma(j, tt))
                    for f in slots[tt]:
                        a(f)

        GX, GW_, G0, G1, GA = V_T, V_T + 8, V_T + 16, V_T + 17, V_T + 18

        def events():
            a(f"s_cmp_eq_u32 s{S_CNT}, s65")
            a(f"s_cbranch_scc0 L_p1_{variant}_e0")
            signal(a, C0, G0, f"L_p1_{variant}_e0")
            a(f"s_cmp_eq_u32 s{S_CNT}, 7")
            a(f"s_cbranch_scc0 L_p1_{variant}_e7")
            a(f"v_mov_b32 v{G1}, {C0}")
            a(f"buffer_load_dword v{V_C0}, v{G1}, {DBG}, 0 offen sc1")
            a(f"s_lshl_b32 s{S_T0}, s{S_TOK}, 11")
            a(f"v_lshlrev_b32 v{G0}, 5, v{L}")
            a(f"buffer_load_dwordx4 {vr(GX)}, v{G0}, {sr(S_X)}, s{S_T0} offen")
            a(f"buffer_load_dwordx4 {vr(GX+4)}, v{G0}, {sr(S_X)}, s{S_T0} offen offset:16")
            a(f"buffer_load_dwordx4 {vr(GW_)}, v{G0}, {sr(S_GW)}, 0 offen")
            a(f"buffer_load_dwordx4 {vr(GW_+4)}, v{G0}, {sr(S_GW)}, 0 offen offset:16")
            for s_ in (S_X, S_QKV, S_G, S_U, S_PF):
                a(f"s_mov_b32 s{s_ + 2}, 0")
            a.label(f"L_p1_{variant}_e7")

        stage.pending = d1[2:] + [pf]
        a(f"s_mov_b32 s{S_CNT}, 0")
        a(".p2align 6")
        a.label(f"L_p1_{variant}_loop")
        saved = list(stage.pending)
        stage(0, post_barrier=events)
        a(f"s_cmp_eq_u32 s{S_CNT}, 7")
        a(f"s_cbranch_scc1 L_p1_{variant}_last")
        stage(1)
        assert stage.pending == saved
        a(f"s_add_u32 s{S_CNT}, s{S_CNT}, 1")
        a(f"s_branch L_p1_{variant}_loop")

        a.label(f"L_p1_{variant}_last")
        a(f"s_lshl_b32 s{S_T0}, s{S_ROWBLK}, 3")
        a(f"s_and_b32 s{S_T1}, s{S_WAVE}, 6")
        a(f"s_add_u32 s{S_T0}, s{S_T0}, s{S_T1}")
        TB = S_T0
        S_A0, S_A1, S_A2 = S_WO, S_WO + 1, S_WO + 2
        a(f"s_cmp_lt_u32 s{S_QKU}, 32")
        a(f"s_cselect_b32 s{S_QS}, {f32bits(QSCALE):#x}, 1.0")
        a(f"s_mov_b32 s{S_QS+1}, s{S_QS}")
        a(f"s_lshl_b32 s{S_T1}, s{S_QKU}, 17")
        a(f"s_lshl_b32 s{S_T2}, s{TB}, 11")
        a(f"s_add_u32 s{S_T1}, s{S_T1}, s{S_T2}")
        a(f"s_sub_u32 s{S_T3}, s{S_QKU}, 32")
        a(f"s_lshl_b32 s{S_T3}, s{S_T3}, 18")
        a(f"s_lshl_b32 s{S_T2}, s{TB}, 12")
        a(f"s_add_u32 s{S_T3}, s{S_T3}, s{S_T2}")
        a(f"s_add_u32 s{S_T3}, s{S_T3}, {KV_BASE}")
        a(f"s_cmp_lt_u32 s{S_QKU}, 32")
        a(f"s_cselect_b32 s{S_A0}, s{S_T1}, s{S_T3}")
        a(f"s_cselect_b32 s{S_T1}, 1, 2")
        a(f"s_lshl_b32 s{S_T1}, s{S_T1}, 11")
        a(f"s_add_u32 s{S_A1}, s{S_A0}, s{S_T1}")
        if v_t is not None:
            a(f"s_lshl_b32 s{S_A2}, s{S_VU}, 18")
            a(f"s_add_u32 s{S_A2}, s{S_A2}, s{S_T2}")
            a(f"s_add_u32 s{S_A2}, s{S_A2}, {KV_BASE + 2048}")

        def pack_store(r0, r1, soff, imm, pre=()):
            return list(pre) + [
                f"v_cvt_pk_bf16_f32 v{r0}, v{r0}, v{r0+1}", f"v_cvt_pk_bf16_f32 v{r0+1}, v{r0+2}, v{r0+3}",
                f"v_cvt_pk_bf16_f32 v{r0+2}, v{r1}, v{r1+1}", f"v_cvt_pk_bf16_f32 v{r0+3}, v{r1+2}, v{r1+3}",
                f"buffer_store_dwordx4 {vr(r0)}, v{V_ST}, {WS}, s{soff} offen offset:{imm} sc1"]

        done_at = {}
        for j, (ks, nt) in enumerate(last_order):
            done_at[nt] = j
        jobs = []
        for tt in range(4):
            pre = [f"v_pk_mul_f32 {vr(acc(qk_t + t, tt) + 2*h, 2)}, {vr(acc(qk_t + t, tt) + 2*h, 2)}, {sr(S_QS, 2)}"
                   for t in range(2) for h in range(2)]
            jobs.append((done_at[qk_t + 1] + 3, pack_store(acc(qk_t, tt), acc(qk_t + 1, tt),
                                                           S_A0 if tt < 2 else S_A1, (tt & 1) * 128, pre)))
        if v_t is not None:
            for n in range(4):
                vi, e = divmod(n, 2)
                for m in range(2):
                    pre = [f"s_add_u32 s{S_T1}, s{S_A2}, {vi * 262144 + m * 4096}"]
                    jobs.append((done_at[v_t + n] + 3, pack_store(acc(v_t + n, 2 * m), acc(v_t + n, 2 * m + 1),
                                                                  S_T1, e * 128, pre)))
        fill = []
        for j in range(20):
            if j % 2 == 0:
                a(f"s_waitcnt lgkmcnt({4 if j <= 16 else 0})")
            while jobs and jobs[0][0] <= j:
                fill += jobs.pop(0)[1]
            wr = wread(1, j + 4, last_order) if j + 4 < 20 else []
            xr = [xread(1, 1, 2 * j), xread(1, 1, 2 * j + 1)] if j < 2 else []
            slots = [xr[:1] + wr[:1], xr[1:] + wr[1:], [], []]
            for tt in range(4):
                a(mfma(j, tt, last_order))
                for f in slots[tt]:
                    a(f)
                for _ in range(int(([o[4:] for o in OPT if o.startswith("fill")] or ["2"])[0])):
                    if fill:
                        a(fill.pop(0))
        assert not jobs
        for f in fill:
            a(f)
        st.stamp(2)
        tmp = XF[0]
        a(f"s_lshr_b32 s{S_T1}, s{TB}, 2")
        a(f"s_mul_i32 s{S_T1}, s{S_T1}, {AF_KB}")
        a(f"s_add_u32 s{S_T1}, s{S_T1}, s{S_FU}")
        a(f"s_lshl_b32 s{S_T1}, s{S_T1}, 13")
        a(f"s_and_b32 s{S_T2}, s{TB}, 2")
        a(f"s_lshl_b32 s{S_T2}, s{S_T2}, 11")
        a(f"s_add_u32 s{S_T1}, s{S_T1}, s{S_T2}")
        a(f"s_add_u32 s{S_H0}, s{S_T1}, {AF_BASE}")
        if variant == "E":
            a(f"s_add_u32 s{S_H1}, s{S_H0}, 8192")
        else:
            a(f"s_mov_b32 s{S_H1}, 0x7f000000")

        def raise_flag():
            a("s_waitcnt vmcnt(0)")
            a("s_barrier")
            a(f"s_cmp_lg_u32 s{S_WAVE}, 0")
            a(f"s_cbranch_scc1 L_p1_{variant}_flag")
            a(f"s_lshl_b32 s{S_T2}, s2, 7")
            a(f"s_add_u32 s{S_T2}, s{S_T2}, {FLAG_BASE}")
            a(f"v_mov_b32 v{G0}, 1")
            a(f"v_mov_b32 v{G1}, 0")
            a("s_mov_b64 exec, 1")
            a(f"buffer_store_dword v{G0}, v{G1}, {WS}, s{S_T2} offen sc1")
            a("s_mov_b64 exec, -1")
            a.label(f"L_p1_{variant}_flag")
            st.stamp(3)

        ftp = FLAG_TP_E if variant == "E" else FLAG_TP_O
        if ftp < 0:
            raise_flag()
        for ui, (gt, ut) in enumerate(hunits):
            for tp in range(2):
                regs = []
                for tt in (2 * tp, 2 * tp + 1):
                    for t in range(2):
                        regs.append((acc(gt + t, tt), acc(ut + t, tt)))
                tb = tmp + tp * 16
                for i, (G, U) in enumerate(regs):
                    for h in range(2):
                        a(f"v_pk_mul_f32 {vr(tb + 4*i + 2*h, 2)}, {vr(G + 2*h, 2)}, {sr(S_NL2E, 2)}")
                for r in range(16):
                    a(f"v_exp_f32 v{tb + r}, v{tb + r}")
                for r in range(8):
                    a(f"v_pk_add_f32 {vr(tb + 2*r, 2)}, {vr(tb + 2*r, 2)}, {sr(S_ONE, 2)}")
                for r in range(16):
                    a(f"v_rcp_f32 v{tb + r}, v{tb + r}")
                for i, (G, U) in enumerate(regs):
                    for h in range(2):
                        a(f"v_pk_mul_f32 {vr(G + 2*h, 2)}, {vr(G + 2*h, 2)}, {vr(tb + 4*i + 2*h, 2)}")
                for i, (G, U) in enumerate(regs):
                    for h in range(2):
                        a(f"v_pk_mul_f32 {vr(G + 2*h, 2)}, {vr(G + 2*h, 2)}, {vr(U + 2*h, 2)}")
                for tt in (2 * tp, 2 * tp + 1):
                    P = V_H + (ui * 4 + tt) * 4
                    r0, r1 = acc(gt, tt), acc(gt + 1, tt)
                    a(f"v_cvt_pk_bf16_f32 v{P}, v{r0}, v{r0+1}")
                    a(f"v_cvt_pk_bf16_f32 v{P+1}, v{r0+2}, v{r0+3}")
                    a(f"v_cvt_pk_bf16_f32 v{P+2}, v{r1}, v{r1+1}")
                    a(f"v_cvt_pk_bf16_f32 v{P+3}, v{r1+2}, v{r1+3}")
                if ui == 0 and tp == ftp:
                    raise_flag()
        if variant == "E":
            a("s_branch L_p1_gate")

    a.label("L_p1_gate")
    a(f"v_mov_b32 v{GA}, 0")
    for i in range(8):
        a(f"v_lshlrev_b32 v{G0}, 16, v{GX+i}")
        a(f"v_lshlrev_b32 v{G1}, 16, v{GW_+i}")
        a(f"v_mul_f32 v{G0}, v{G0}, v{G1}")
        a(f"v_and_b32 v{GX+i}, 0xffff0000, v{GX+i}")
        a(f"v_and_b32 v{GW_+i}, 0xffff0000, v{GW_+i}")
        a(f"v_mul_f32 v{GX+i}, v{GX+i}, v{GW_+i}")
        a(f"v_cvt_pk_bf16_f32 v{G0}, v{G0}, v{GX+i}")
        a(f"v_lshlrev_b32 v{G1}, 16, v{G0}")
        a(f"v_and_b32 v{G0}, 0xffff0000, v{G0}")
        a(f"v_add_f32 v{GA}, v{GA}, v{G1}")
        a(f"v_add_f32 v{GA}, v{GA}, v{G0}")
    for dpp in ("row_shr:1 bound_ctrl:0", "row_shr:2 bound_ctrl:0", "row_shr:4 bound_ctrl:0", "row_shr:8 bound_ctrl:0",
                "row_bcast:15 row_mask:0xa", "row_bcast:31 row_mask:0xc"):
        a("s_nop 1")
        a(f"v_add_f32_dpp v{GA}, v{GA}, v{GA} {dpp}")
    a(f"v_cvt_pk_bf16_f32 v{G0}, v{GA}, v{GA}")
    a(f"v_and_b32 v{G0}, 0xffff0000, v{G0}")
    a(f"v_mul_f32 v{G0}, s{S_NL2E}, v{G0}")
    a(f"v_exp_f32 v{G0}, v{G0}")
    a("s_nop 0")
    a(f"v_add_f32 v{G0}, 1.0, v{G0}")
    a(f"v_rcp_f32 v{G0}, v{G0}")
    a("s_nop 0")
    a(f"v_cvt_pk_bf16_f32 v{G0}, v{G0}, v{G0}")
    a(f"v_and_b32 v{G0}, 0xffff0000, v{G0}")
    a(f"v_sub_f32 v{G1}, 1.0, v{G0}")
    a(f"v_cvt_pk_bf16_f32 v{G1}, v{G1}, v{G1}")
    a(f"v_and_b32 v{G1}, 0xffff0000, v{G1}")
    a(f"s_lshl_b32 s{S_T1}, s{S_TOK}, 3")
    a(f"s_add_u32 s{S_T1}, s{S_T1}, {G_BASE}")
    a(f"v_mov_b32 v{GA}, 0")
    a("s_mov_b32 exec_lo, 0")
    a("s_mov_b32 exec_hi, 0x80000000")
    a(f"buffer_store_dwordx2 {vr(G0, 2)}, v{GA}, {WS}, s{S_T1} offen sc1")
    a("s_mov_b64 exec, -1")
    st.stamp(4)


RB, STG, NB = 49152, 32768, 8


def lds_arrive(a, word, vt, label):
    a(f"v_mov_b32 v{vt}, {word}")
    a(f"v_mov_b32 v{vt + 1}, 1")
    a("s_mov_b64 exec, 1")
    a(f"ds_add_rtn_u32 v{vt + 1}, v{vt}, v{vt + 1}")
    a("s_waitcnt lgkmcnt(0)")
    a(f"v_readfirstlane_b32 s80, v{vt + 1}")
    a("s_mov_b64 exec, -1")
    a("s_cmp_eq_u32 s80, 3")
    a(f"s_cbranch_scc0 {label}")


def global_arrive(a, off, vt, label):
    a(f"v_mov_b32 v{vt}, 1")
    a(f"v_mov_b32 v{vt + 1}, {off}")
    a("s_mov_b64 exec, 1")
    a(f"buffer_atomic_add v{vt}, v{vt + 1}, {DBG}, 0 offen sc0 sc1")
    a("s_waitcnt vmcnt(0)")
    a(f"v_readfirstlane_b32 s80, v{vt}")
    a("s_mov_b64 exec, -1")
    a("s_cmp_eq_u32 s80, 255")
    a(f"s_cbranch_scc0 {label}")
    a(f"v_mov_b32 v{vt}, 1")
    a("s_mov_b64 exec, 1")
    a(f"buffer_store_dword v{vt}, v{vt + 1}, {DBG}, 0 offen offset:128 sc1")
    a("s_mov_b64 exec, -1")


def lds_wait(a, label, word, value, vt, scnt):
    a(f"v_mov_b32 v{vt}, {word}")
    a(f"s_mov_b32 s{scnt}, 0")
    a.label(label)
    a(f"ds_read_b32 v{vt + 1}, v{vt}")
    a("s_waitcnt lgkmcnt(0)")
    a(f"v_cmp_gt_u32 vcc, {value}, v{vt + 1}")
    a("s_cmp_eq_u64 vcc, 0")
    a(f"s_cbranch_scc1 {label}_ok")
    a("s_sleep 2")
    a(f"s_add_u32 s{scnt}, s{scnt}, 1")
    a(f"s_cmp_lt_u32 s{scnt}, {SPIN_LIMIT * 8}")
    a(f"s_cbranch_scc1 {label}")
    a.label(f"{label}_ok")


def phase23(a, st):
    L = V_LANE
    S_KVD, S_OUT, S_UW = 12, 16, 20
    S_HEAD, S_QBLK, S_SRC, S_LDS, S_CNT = 24, 25, 26, 27, 28
    S_T0, S_T1, S_T2 = 29, 30, 31
    S_TOKB, S_KVB, S_BIG, S_SP = 32, 33, 34, 35
    S_MB, S_NB, S_KQ, S_ASRC, S_WSRC, S_STEPS, S_GOFF = 40, 41, 42, 43, 44, 45, 46
    S_RD = 47
    S_WL = 48
    V_DA, V_UA, V_UR = 232, 233, 234
    V_G = 240
    V_X = 248
    BUF = [128, 176]

    a(f"s_cmp_lt_u32 s{S_WAVE}, 4")
    a(f"s_cselect_b32 s{S_T0}, 16, 48")
    a(f"s_load_dwordx2 {sr(S_UW, 2)}, s[0:1], s{S_T0}")
    a(f"s_mov_b32 s{S_UW + 2}, {3584 * 2048}")
    a(f"s_cselect_b32 s{S_UW + 2}, {1024 * 2048}, s{S_UW + 2}")
    a(f"s_mov_b32 s{S_UW + 3}, 0x00020000")
    a(f"s_load_dwordx2 {sr(S_OUT, 2)}, s[0:1], 64")
    a(f"s_and_b32 s{S_T0}, s2, 7")
    a(f"s_lshl_b32 s{S_HEAD}, s{S_T0}, 2")
    a(f"s_lshr_b32 s{S_T1}, s2, 3")
    a(f"s_and_b32 s{S_T2}, s{S_T1}, 3")
    a(f"s_add_u32 s{S_HEAD}, s{S_HEAD}, s{S_T2}")
    a(f"s_lshr_b32 s{S_QBLK}, s2, 5")
    a(f"s_lshl_b32 s36, s{S_HEAD}, 2")
    a("s_and_b32 s36, s36, 8")
    a(f"s_add_u32 s36, s36, s{S_T0}")
    a("s_add_u32 s37, s36, 16")
    a(f"s_add_u32 s38, s{S_T0}, 24")
    a(f"s_lshl_b32 s39, s{S_QBLK}, 5")
    a("s_add_u32 s36, s36, s39")
    X0, X1, X2, X3, X4, X5 = (V_X + i for i in range(6))
    a(f"s_lshr_b32 s{S_MB}, s{S_T0}, 1")
    a(f"s_lshl_b32 s{S_MB}, s{S_MB}, 2")
    a(f"s_add_u32 s{S_MB}, s{S_MB}, s{S_T2}")
    a(f"s_and_b32 s{S_NB}, s{S_T0}, 1")
    a(f"s_lshl_b32 s{S_NB}, s{S_NB}, 3")
    a(f"s_add_u32 s{S_NB}, s{S_NB}, s{S_QBLK}")
    a(f"s_and_b32 s{S_KQ}, s{S_WAVE}, 3")
    a(f"s_cmp_lt_u32 s{S_WAVE}, 4")
    a(f"s_cselect_b32 s{S_T1}, {AF_O}, 0")
    a(f"s_cselect_b32 s{S_STEPS}, 4, 14")
    a(f"s_cselect_b32 s{S_GOFF}, 0, 4")
    a(f"s_add_u32 s{S_T1}, s{S_T1}, s{S_KQ}")
    a(f"s_mul_i32 s{S_ASRC}, s{S_MB}, {AF_KB}")
    a(f"s_add_u32 s{S_ASRC}, s{S_ASRC}, s{S_T1}")
    a(f"s_lshl_b32 s{S_ASRC}, s{S_ASRC}, 13")
    a(f"s_add_u32 s{S_ASRC}, s{S_ASRC}, {AF_BASE}")
    a(f"s_lshl_b32 s{S_WSRC}, s{S_KQ}, 16")
    a(f"s_lshl_b32 s{S_T1}, s{S_NB}, 7")
    a(f"s_add_u32 s{S_WSRC}, s{S_WSRC}, s{S_T1}")
    a(f"s_lshl_b32 s{S_WL}, s{S_KQ}, 13")
    a(f"s_add_u32 s{S_T1}, s{S_WL}, {RB}")
    a(f"s_cmp_lt_u32 s{S_WAVE}, 4")
    a(f"s_cselect_b32 s{S_WL}, s{S_T1}, s{S_WL}")
    a(f"v_lshrrev_b32 v{X0}, 3, v{L}")
    a(f"v_and_b32 v{X1}, 6, v{X0}")
    a(f"v_and_b32 v{X2}, 7, v{L}")
    a(f"v_xor_b32 v{X1}, v{X1}, v{X2}")
    a(f"v_lshlrev_b32 v{X1}, 4, v{X1}")
    a(f"v_lshlrev_b32 v{X0}, 11, v{X0}")
    a(f"v_add_u32 v{V_UA}, v{X0}, v{X1}")
    a(f"v_lshrrev_b32 v{X0}, 2, v{L}")
    a(f"v_lshlrev_b32 v{X0}, 7, v{X0}")
    a(f"v_lshlrev_b32 v{X1}, 2, v{L}")
    a(f"v_and_b32 v{X1}, 0x60, v{X1}")
    a(f"v_add_u32 v{X0}, v{X0}, v{X1}")
    a(f"v_and_b32 v{X1}, 3, v{L}")
    a(f"v_lshlrev_b32 v{X1}, 3, v{X1}")
    a(f"v_add_u32 v{X0}, v{X0}, v{X1}")
    a(f"v_add_u32 v{V_UR}, s{S_WL}, v{X0}")
    for q in range(1, 4):
        a(f"v_xor_b32 v{V_UR + q}, {q << 5}, v{V_UR}")
    a(f"s_lshl_b32 s{S_T1}, s{S_MB}, 10")
    a(f"s_add_u32 s{S_GOFF}, s{S_GOFF}, s{S_T1}")
    a(f"s_add_u32 s{S_GOFF}, s{S_GOFF}, {G_BASE}")
    a(f"v_add_u32 v{V_DA}, 4096, v{V_L16}")
    a(f"s_mov_b32 s{S_OUT + 2}, {2048 * 2048}")
    a(f"s_mov_b32 s{S_OUT + 3}, 0x00020000")
    a(f"s_lshl_b32 s{S_KVB}, s{S_HEAD}, 18")
    a(f"s_add_u32 s{S_KVB}, s{S_KVB}, {KV_BASE}")
    a(f"s_lshl_b32 s{S_LDS}, s{S_KQ}, 13")
    a(f"s_add_u32 s{S_SRC}, s{S_KVB}, s{S_LDS}")
    a(f"s_add_u32 s{S_LDS}, s{S_LDS}, {RB}")
    srd(a, S_KVD, S_WS, WS_USED)
    a(f"s_add_u32 s{S_KVD + 2}, s{S_KVB}, {8 * STG}")
    a(f"s_lshl_b32 s{S_T1}, s{S_KQ}, 13")
    a(f"v_add_u32 v{X5}, s{S_T1}, v{V_L16}")
    a(f"s_cmp_lt_u32 s{S_WAVE}, 4")
    a("s_cbranch_scc0 L_g_start")

    V_K, V_V, V_ONE = 0, 8, 16
    V_OS, V_KA, V_VA, V_PG, V_PW = 20, 21, 22, 23, 24
    V_IDX = 26
    V_PR = 28

    def R(q):
        b = 32 + q * 88
        return dict(Q=b, S=[b + 8, b + 24], C=b + 40, O=b + 56, P=b + 72, L=b + 80, M=b + 84)
    V_T = 208

    for k in range(8):
        a(f"ds_write_b128 v{X5}, {vr(V_H + 4 * k)} offset:{k * 1024}")
    a(f"v_mov_b32 v{V_PW}, {SW}")
    a(f"s_lshl_b32 s{S_TOKB}, s{S_QBLK}, 3")
    a(f"s_lshl_b32 s{S_T1}, s{S_WAVE}, 1")
    a(f"s_add_u32 s{S_TOKB}, s{S_TOKB}, s{S_T1}")
    a(f"v_and_b32 v{X0}, 7, v{L}")
    a(f"v_lshrrev_b32 v{X1}, 1, v{L}")
    a(f"v_and_b32 v{X1}, 8, v{X1}")
    a(f"v_or_b32 v{X0}, v{X0}, v{X1}")
    a(f"v_lshrrev_b32 v{X1}, 3, v{L}")
    a(f"v_and_b32 v{X1}, 1, v{X1}")
    a(f"v_lshlrev_b32 v{V_OS}, 10, v{X1}")
    a(f"v_lshlrev_b32 v{X0}, 4, v{X0}")
    a(f"v_add_u32 v{V_OS}, v{V_OS}, v{X0}")
    a(f"v_lshrrev_b32 v{X0}, 5, v{L}")
    a(f"v_lshlrev_b32 v{X0}, 8, v{X0}")
    a(f"v_add_u32 v{V_OS}, v{V_OS}, v{X0}")
    a(f"v_and_b32 v{X0}, 4, v{L}")
    a(f"v_cmp_eq_u32 vcc, 0, v{X0}")
    a(f"v_mov_b32 v{X1}, 0x3f803f80")
    a("s_nop 1")
    a(f"v_cndmask_b32 v{V_ONE}, 0, v{X1}, vcc")
    a(f"v_mov_b32 v{V_ONE + 1}, v{V_ONE}")
    a(f"v_xor_b32 v{V_ONE + 2}, v{X1}, v{V_ONE}")
    a(f"v_mov_b32 v{V_ONE + 3}, v{V_ONE + 2}")
    a(f"v_and_b32 v{X0}, 1, v{L}")
    a(f"v_cmp_eq_u32 vcc, 0, v{X0}")
    a(f"v_mov_b32 v{X0}, 0xeeeeeeee")
    a(f"v_mov_b32 v{X1}, 0x44444444")
    a(f"v_cndmask_b32 v{V_IDX}, v{X0}, v{X1}, vcc")
    a("s_waitcnt lgkmcnt(0)")
    a(f"s_lshl_b32 s{S_T1}, s{S_WAVE}, 2")
    a(f"s_add_u32 s{S_T1}, s{S_T1}, {SW_H}")
    a(f"v_mov_b32 v{X0}, s{S_T1}")
    a(f"v_mov_b32 v{X1}, 1")
    a(f"ds_write_b32 v{X0}, v{X1}")
    for q in range(2):
        r = R(q)
        for i in range(0, 16, 2):
            a(f"v_mov_b64 {vr(r['O'] + i, 2)}, 0")
        for i in range(0, 4, 2):
            a(f"v_mov_b64 {vr(r['L'] + i, 2)}, 0")
            a(f"v_mov_b64 {vr(r['P'] + 4 + i, 2)}, 0")
    a(f"v_mov_b64 {vr(V_V + 4, 2)}, 0")
    a(f"v_mov_b64 {vr(V_V + 6, 2)}, 0")
    a(f"v_add_u32 v{V_KA}, {RB}, v{V_L16}")
    a(f"v_mov_b32 v{V_VA}, v{V_KA}")
    a(f"s_mov_b32 s{S_RD}, {RB}")
    a(f"s_lshl_b32 s{S_T1}, s{S_WAVE}, 2")
    a(f"s_add_u32 s{S_T1}, s{S_T1}, {SW}")
    a(f"v_mov_b32 v{V_PW + 1}, s{S_T1}")
    a(f"v_mov_b32 v{V_PG}, 0")
    a(f"s_mov_b32 s{S_BIG}, {f32bits(2.0 ** 60):#x}")
    a(f"s_mov_b32 s{S_SP}, 0")
    a(f"s_lshl_b32 s{S_T0}, s{S_HEAD}, 17")
    a(f"s_lshl_b32 s{S_T1}, s{S_TOKB}, 11")
    a(f"s_add_u32 s{S_T0}, s{S_T0}, s{S_T1}")
    a(f"s_cmp_lg_u32 s{S_WAVE}, 0")
    a("s_cbranch_scc1 L_p2_polled")
    a(f"v_and_b32 v{X0}, 7, v{L}")
    a(f"v_lshlrev_b32 v{X0}, 5, v{X0}")
    a(f"v_add_u32 v{X1}, s37, v{X0}")
    a(f"v_add_u32 v{X2}, s38, v{X0}")
    a(f"v_mov_b32 v{X4}, s36")
    a(f"v_cmp_gt_u32 vcc, 16, v{L}")
    a("s_nop 1")
    a(f"v_cndmask_b32 v{X4}, v{X4}, v{X2}, vcc")
    a(f"v_cmp_gt_u32 vcc, 8, v{L}")
    a("s_nop 1")
    a(f"v_cndmask_b32 v{X4}, v{X4}, v{X1}, vcc")
    a(f"v_lshlrev_b32 v{X4}, 7, v{X4}")
    a(f"v_add_u32 v{X4}, {FLAG_BASE}, v{X4}")
    a(f"v_mov_b32 v{X0}, {C0}")
    a(f"v_mov_b32 v{X1}, 0x100")
    ld0 = f"buffer_load_dword v{V_C0}, v{X0}, {DBG}, 0 offen sc1"
    ld1 = f"buffer_load_dword v{X2}, v{X4}, {WS}, 0 offen sc1"
    spin(a, "L_p2_c0", ld0, V_C0, f"v{X1}", S_SP)
    a(ld1)
    a("s_waitcnt vmcnt(0)")
    spin(a, "L_p2_fl", ld1, X2, 1, S_SP)
    a(f"v_mov_b32 v{X0}, {SW_F}")
    a(f"v_mov_b32 v{X1}, 1")
    a(f"ds_write_b32 v{X0}, v{X1}")
    a.label("L_p2_polled")
    lds_wait(a, "L_a_fl", SW_F, 1, X0, S_SP)
    a(f"s_mov_b32 s{S_SP}, 0")
    st.stamp(5)
    a("s_setprio 2")

    def dma_half(h):
        out = [f"s_add_u32 m0, s{S_LDS}, {h * 4096}\ns_add_u32 s{S_T1}, s{S_SRC}, {h * 4096}\n"
               f"buffer_load_dwordx4 v{V_L16}, {sr(S_KVD)}, s{S_T1} offen sc1 lds"]
        for i in range(1, 4):
            out.append(f"buffer_load_dwordx4 v{V_L16}, {sr(S_KVD)}, s{S_T1} offen offset:{i * 1024} sc1 lds")
        if h == 1:
            out[3] += (f"\ns_add_u32 s{S_SRC}, s{S_SRC}, {STG}\ns_add_u32 s{S_LDS}, s{S_LDS}, {STG}\n"
                       f"s_sub_u32 s{S_T1}, s{S_LDS}, {3 * STG}\ns_cmp_ge_u32 s{S_LDS}, {RB + 3 * STG}\n"
                       f"s_cselect_b32 s{S_LDS}, s{S_T1}, s{S_LDS}")
        return out

    for q in range(2):
        a(f"buffer_load_dwordx4 {vr(R(q)['Q'])}, v{V_L16}, {WS}, s{S_T0} offen offset:{q * 2048} sc1")
        a(f"buffer_load_dwordx4 {vr(R(q)['Q'] + 4)}, v{V_L16}, {WS}, s{S_T0} offen offset:{q * 2048 + 1024} sc1")
    if 'd1early' not in OPT:
        for x in dma_half(0) + dma_half(1):
            a(x)
        a("s_waitcnt vmcnt(0)")
        lds_arrive(a, SW_D, X0, "L_a_d0")
        a.label("L_a_d0")
        for x in dma_half(0) + dma_half(1):
            a(x)
    else:
        for x in dma_half(0) + dma_half(1) + dma_half(0) + dma_half(1):
            a(x)
        a("s_waitcnt vmcnt(8)")
        lds_arrive(a, SW_D, X0, "L_a_d0")
        a.label("L_a_d0")
    lds_wait(a, "L_a_dw", SW_D, 4, X0, S_SP)
    a(f"s_mov_b32 s{S_SP}, 0")
    st.stamp(6)

    def rdK(blk):
        o = (blk % NB) * 4096
        return [f"ds_read_b128 {vr(V_K)}, v{V_KA} offset:{o}", f"ds_read_b128 {vr(V_K + 4)}, v{V_KA} offset:{o + 1024}"]

    def rdV(blk):
        o = (blk % NB) * 4096 + 2048
        return [f"ds_read_b128 {vr(V_V)}, v{V_VA} offset:{o}", f"ds_read_b128 {vr(V_V + 4)}, v{V_VA} offset:{o + 1024}"]

    advK = (f"s_add_u32 s{S_RD}, s{S_RD}, {STG}\ns_cmp_ge_u32 s{S_RD}, {RB + 3 * STG}\n"
            f"s_cselect_b32 s{S_RD}, {RB}, s{S_RD}\nv_add_u32 v{V_KA}, s{S_RD}, v{V_L16}")
    advV = f"v_add_u32 v{V_VA}, s{S_RD}, v{V_L16}"

    def rowmax(dst, S, init=None):
        if init is None:
            a(f"v_max3_f32 v{dst}, v{S}, v{S+1}, v{S+2}")
            rest = list(range(3, 16))
        else:
            a(f"v_max3_f32 v{dst}, v{init}, v{S}, v{S+1}")
            rest = list(range(2, 16))
        while len(rest) >= 2:
            a(f"v_max3_f32 v{dst}, v{dst}, v{S + rest[0]}, v{S + rest[1]}")
            rest = rest[2:]
        if rest:
            a(f"v_max_f32 v{dst}, v{dst}, v{S + rest[0]}")

    def crosshalf_max(dst, tmp):
        a(f"v_mov_b32 v{tmp}, v{dst}")
        a("s_nop 1")
        a(f"v_permlane32_swap_b32 v{tmp}, v{dst}")
        a("s_nop 1")
        a(f"v_max_f32 v{dst}, v{dst}, v{tmp}")

    for x in rdK(0):
        a(x)
    a("s_waitcnt lgkmcnt(0)")
    for q in range(2):
        r = R(q)
        a(f"v_mfma_f32_32x32x16_bf16 {vr(r['S'][0], 16)}, {vr(V_K)}, {vr(r['Q'])}, 0")
        a(f"v_mfma_f32_32x32x16_bf16 {vr(r['S'][0], 16)}, {vr(V_K + 4)}, {vr(r['Q'] + 4)}, {vr(r['S'][0], 16)}")
    for x in rdK(1):
        a(x)
    a(rdV(0)[0])
    a("s_nop 14")
    for q in range(2):
        r = R(q)
        rowmax(r['M'], r['S'][0])
        crosshalf_max(r['M'], r['M'] + 1)
        for i in range(16):
            a(f"v_sub_f32 v{r['C'] + i}, 0, v{r['M']}")
        for i in range(16):
            a(f"v_sub_f32 v{r['S'][0] + i}, v{r['S'][0] + i}, v{r['M']}")

    def half_block(i, q, extra):
        extra = list(extra) + ["", "", ""]
        r = R(q)
        Sc, Sn = r['S'][i & 1], r['S'][(i + 1) & 1]
        P, O, Lr = r['P'], r['O'], r['L']
        ex = [f"v_exp_f32 v{Sc + k}, v{Sc + k}" for k in range(16)]
        cv = [f"v_cvt_pk_bf16_f32 v{P + d}, v{Sc + 2*d}, v{Sc + 2*d + 1}" for d in range(8)]
        kr = rdK(i + 2) if q == 1 else ["", ""]
        if q == 0:
            a("s_waitcnt lgkmcnt(1)")
        a(f"v_mfma_f32_32x32x16_bf16 {vr(Sn, 16)}, {vr(V_K)}, {vr(r['Q'])}, {vr(r['C'], 16)}")
        a(kr[0])
        for e in ex[0:3]:
            a(e)
        a(f"v_mfma_f32_32x32x16_bf16 {vr(Sn, 16)}, {vr(V_K + 4)}, {vr(r['Q'] + 4)}, {vr(Sn, 16)}")
        a(kr[1])
        a(extra[0])
        for e in ex[3:6]:
            a(e)
        a(f"v_mfma_f32_32x32x16_bf16 {vr(O, 16)}, {vr(V_V + 4)}, {vr(P + 4)}, {vr(O, 16)}")
        if q == 1:
            a(rdV(i)[1])
        a(ex[6])
        a(ex[7])
        a(cv[0])
        a(cv[1])
        a(cv[2])
        a(cv[3])
        a(ex[8])
        a(ex[9])
        if q == 0:
            a("s_waitcnt lgkmcnt(0)")
        if q == 1 and i % NB == NB - 1:
            a(advV)
        a(f"v_mfma_f32_32x32x16_bf16 {vr(O, 16)}, {vr(V_V)}, {vr(P)}, {vr(O, 16)}")
        if q == 1:
            a(rdV(i + 1)[0])
        a(extra[1])
        for e in ex[10:13]:
            a(e)
        a(f"v_smfmac_f32_16x16x64_bf16 {vr(Lr)}, {vr(V_ONE)}, {vr(P, 8)}, v{V_IDX}")
        a(extra[2])
        for e in ex[13:16]:
            a(e)
        for c in cv[4:8]:
            a(c)

    V_PR2 = V_T
    rdprog = f"ds_read_b128 {vr(V_PR)}, v{V_PW}\nds_read_b128 {vr(V_PR2)}, v{V_PW} offset:16"
    a(f"s_mov_b32 s{S_CNT}, 0")
    a(".p2align 6")
    a.label("L_p2_loop")
    dq = dma_half(0) + dma_half(1)
    for i in range(NB):
        ex0, ex1 = [], []
        if i == 1:
            ex0 = ["", f"v_add_u32 v{V_PG}, 1, v{V_PG}\ns_waitcnt vmcnt(0)\nds_write_b32 v{V_PW + 1}, v{V_PG}"]
        if i == 3:
            ex0 = ["", rdprog]
        if i == 4:
            a("s_waitcnt lgkmcnt(1)")
            a.label("L_p2_chk")
            a(f"v_min3_u32 v{V_PR}, v{V_PR}, v{V_PR+1}, v{V_PR+2}")
            a(f"v_min3_u32 v{V_PR2}, v{V_PR2}, v{V_PR2+1}, v{V_PR2+2}")
            a(f"v_min_u32 v{V_PR2}, v{V_PR2}, v{V_PR2+3}")
            a(f"v_add_u32 v{V_PR2}, 1, v{V_PR2}")
            a(f"v_min3_u32 v{V_PR}, v{V_PR}, v{V_PR+3}, v{V_PR2}")
            a(f"v_cmp_gt_u32 vcc, v{V_PG}, v{V_PR}")
            a("s_cmp_eq_u64 vcc, 0")
            a("s_cbranch_scc0 L_p2_wait")
            a.label("L_p2_go")
            a(f"s_sub_u32 s{S_T0}, s{S_CNT}, 1")
            a(f"s_cmp_lt_u32 s{S_T0}, 5")
            a("s_cselect_b64 vcc, -1, 0")
            st.loop_stamp(48, S_CNT, 1, 0)
        if i >= 4:
            def guard(x, k):
                body = x.split("\n")
                j = [n for n, ln in enumerate(body) if ln.startswith("buffer_load")][0]
                return "\n".join(body[:j] + [f"s_cbranch_vccz L_p2_skip{k}", body[j], f"L_p2_skip{k}:"] + body[j + 1:])
            ex0 = [guard(dq[2 * (i - 4)], 2 * (i - 4))]
            ex1 = [guard(dq[2 * (i - 4) + 1], 2 * (i - 4) + 1)]
        if i == NB - 2:
            a(advK)
        half_block(i, 0, ex0)
        half_block(i, 1, ex1)
    a(f"s_add_u32 s{S_CNT}, s{S_CNT}, 1")
    a(f"s_cmp_lt_u32 s{S_CNT}, 8")
    a("s_cbranch_scc1 L_p2_loop")
    for q in range(2):
        a(f"v_mov_b64 {vr(R(q)['P'], 2)}, 0")
        a(f"v_mov_b64 {vr(R(q)['P'] + 2, 2)}, 0")
    a("s_waitcnt lgkmcnt(0)")
    a("s_nop 0")
    for q in range(2):
        r = R(q)
        a(f"v_mfma_f32_32x32x16_bf16 {vr(r['O'], 16)}, {vr(V_V + 4)}, {vr(r['P'] + 4)}, {vr(r['O'], 16)}")
        a(f"v_smfmac_f32_16x16x64_bf16 {vr(r['L'])}, {vr(V_ONE)}, {vr(r['P'], 8)}, v{V_IDX}")
    a("s_nop 15")
    st.stamp(7)
    a(f"s_lshr_b32 s{S_T2}, s{S_TOKB}, 2")
    a(f"s_mul_i32 s{S_T2}, s{S_T2}, {AF_KB}")
    a(f"s_add_u32 s{S_T2}, s{S_T2}, s{S_HEAD}")
    a(f"s_lshl_b32 s{S_T2}, s{S_T2}, 13")
    a(f"s_and_b32 s{S_T1}, s{S_TOKB}, 2")
    a(f"s_lshl_b32 s{S_T1}, s{S_T1}, 11")
    a(f"s_add_u32 s{S_T2}, s{S_T2}, s{S_T1}")
    a(f"s_add_u32 s{S_T2}, s{S_T2}, {AF_BASE + AF_O * 8192}")
    def finish_q(q):
        r = R(q)
        O, P = r['O'], r['P']
        a(f"v_add_f32 v{r['L']}, v{r['L']}, v{r['L'] + 1}")
        a(f"v_rcp_f32 v{V_T}, v{r['L']}")
        a("s_nop 0")
        for i in range(16):
            a(f"v_mul_f32 v{O + i}, v{O + i}, v{V_T}")
        for d in range(8):
            a(f"v_cvt_pk_bf16_f32 v{P + d}, v{O + 2*d}, v{O + 2*d + 1}")
        a(f"buffer_store_dwordx4 {vr(P)}, v{V_OS}, {WS}, s{S_T2} offen offset:{q * 2048} sc1")
        a(f"buffer_store_dwordx4 {vr(P + 4)}, v{V_OS}, {WS}, s{S_T2} offen offset:{q * 2048 + 512} sc1")

    finish_q(0)
    finish_q(1)
    a(f"v_mov_b32 v{V_T+2}, 0x7c000000")
    for q in range(2):
        r = R(q)
        O = r['O']
        a(f"v_add_f32 v{V_T+1}, abs(v{O}), abs(v{O+1})")
        for i in range(2, 16):
            a(f"v_add_f32 v{V_T+1}, v{V_T+1}, abs(v{O+i})")
        a(f"v_cmp_lt_f32 vcc, v{V_T+1}, v{V_T+2}")
        a(f"v_cmp_gt_f32 s[36:37], s{S_BIG}, v{r['L']}")
        a("s_and_b64 vcc, vcc, s[36:37]")
        a("s_cmp_eq_u64 vcc, exec")
        a(f"s_cbranch_scc0 L_p2_slow{q}")
        a.label(f"L_p2_fin{q}")
    a("s_setprio 0")
    a("s_waitcnt vmcnt(0)")
    lds_arrive(a, SW_A, X0, "L_a_sig")
    global_arrive(a, C3, X0, "L_a_sig")
    a.label("L_a_sig")
    st.stamp(8)
    a(f"v_and_b32 v{X0}, 1, v{L}")
    a(f"v_lshlrev_b32 v{X0}, 2, v{X0}")
    a(f"v_add_u32 v{X0}, {C2}, v{X0}")
    a("s_branch L_gemm")

    a.label("L_p2_wait")
    a(f"s_add_u32 s{S_SP}, s{S_SP}, 1")
    a(f"s_cmp_gt_u32 s{S_SP}, {SPIN_LIMIT * 8}")
    a("s_cbranch_scc1 L_p2_go")
    a("s_sleep 1")
    a(rdprog)
    a("s_waitcnt lgkmcnt(0)")
    a("s_branch L_p2_chk")

    for q in range(2):
        r = R(q)
        S0, Q = r['S'][0], r['Q']
        a.label(f"L_p2_slow{q}")
        a(f"v_mov_b32 v{V_T}, 0xff800000")
        a(f"s_mov_b32 s{S_T0}, s{S_KVB}")
        a(f"s_mov_b32 s{S_CNT}, 0")
        a.label(f"L_p2_slow_max{q}")
        a(f"buffer_load_dwordx4 {vr(V_K)}, v{V_L16}, {WS}, s{S_T0} offen sc1")
        a(f"buffer_load_dwordx4 {vr(V_K + 4)}, v{V_L16}, {WS}, s{S_T0} offen offset:1024 sc1")
        a("s_waitcnt vmcnt(0)")
        a(f"v_mfma_f32_32x32x16_bf16 {vr(S0, 16)}, {vr(V_K)}, {vr(Q)}, 0")
        a(f"v_mfma_f32_32x32x16_bf16 {vr(S0, 16)}, {vr(V_K + 4)}, {vr(Q + 4)}, {vr(S0, 16)}")
        a("s_nop 15")
        rowmax(V_T, S0, init=V_T)
        a(f"s_add_u32 s{S_T0}, s{S_T0}, 4096")
        a(f"s_add_u32 s{S_CNT}, s{S_CNT}, 1")
        a(f"s_cmp_lt_u32 s{S_CNT}, 64")
        a(f"s_cbranch_scc1 L_p2_slow_max{q}")
        crosshalf_max(V_T, V_T + 1)
        for i in range(16):
            a(f"v_sub_f32 v{r['C'] + i}, 0, v{V_T}")
            a(f"v_mov_b32 v{r['O'] + i}, 0")
        for i in range(4):
            a(f"v_mov_b32 v{r['L'] + i}, 0")
        a(f"s_mov_b32 s{S_T0}, s{S_KVB}")
        a(f"s_mov_b32 s{S_CNT}, 0")
        a.label(f"L_p2_slow_pv{q}")
        a(f"buffer_load_dwordx4 {vr(V_K)}, v{V_L16}, {WS}, s{S_T0} offen sc1")
        a(f"buffer_load_dwordx4 {vr(V_K + 4)}, v{V_L16}, {WS}, s{S_T0} offen offset:1024 sc1")
        a(f"buffer_load_dwordx4 {vr(V_V)}, v{V_L16}, {WS}, s{S_T0} offen offset:2048 sc1")
        a(f"buffer_load_dwordx4 {vr(V_V + 4)}, v{V_L16}, {WS}, s{S_T0} offen offset:3072 sc1")
        a("s_waitcnt vmcnt(0)")
        a(f"v_mfma_f32_32x32x16_bf16 {vr(S0, 16)}, {vr(V_K)}, {vr(Q)}, {vr(r['C'], 16)}")
        a(f"v_mfma_f32_32x32x16_bf16 {vr(S0, 16)}, {vr(V_K + 4)}, {vr(Q + 4)}, {vr(S0, 16)}")
        a("s_nop 15")
        for k in range(16):
            a(f"v_exp_f32 v{S0 + k}, v{S0 + k}")
        a("s_nop 0")
        for d in range(8):
            a(f"v_cvt_pk_bf16_f32 v{r['P'] + d}, v{S0 + 2*d}, v{S0 + 2*d + 1}")
        a("s_nop 1")
        a(f"v_mfma_f32_32x32x16_bf16 {vr(r['O'], 16)}, {vr(V_V)}, {vr(r['P'])}, {vr(r['O'], 16)}")
        a(f"v_mfma_f32_32x32x16_bf16 {vr(r['O'], 16)}, {vr(V_V + 4)}, {vr(r['P'] + 4)}, {vr(r['O'], 16)}")
        a(f"v_smfmac_f32_16x16x64_bf16 {vr(r['L'])}, {vr(V_ONE)}, {vr(r['P'], 8)}, v{V_IDX}")
        a("s_nop 15")
        a(f"s_add_u32 s{S_T0}, s{S_T0}, 4096")
        a(f"s_add_u32 s{S_CNT}, s{S_CNT}, 1")
        a(f"s_cmp_lt_u32 s{S_CNT}, 64")
        a(f"s_cbranch_scc1 L_p2_slow_pv{q}")
        finish_q(q)
        a(f"s_branch L_p2_fin{q}")

    a.label("L_g_start")
    a(f"s_lshl_b32 s{S_T1}, s{S_KQ}, 2")
    a(f"s_add_u32 s{S_T1}, s{S_T1}, {SW_H}")
    lds_wait(a, "L_g_hw", f"s{S_T1}", 1, X0, S_SP)
    st.stamp(5)
    for k in range(8):
        a(f"ds_read_b128 {vr(4 * k)}, v{X5} offset:{k * 1024}")
    a(f"s_add_u32 s{S_SRC}, s{S_SRC}, {2 * STG}")
    a(f"s_add_u32 s{S_LDS}, s{S_LDS}, {2 * STG}")
    lds_wait(a, "L_g_dw", SW_D, 4, X0, S_SP)
    st.stamp(6)
    for x in dma_half(0) + dma_half(1):
        a(x)
    TH = int(([o[2:] for o in OPT if o.startswith("th")] or ["8"])[0])
    a(f"s_lshl_b32 s{S_T1}, s{S_WAVE}, 2")
    a(f"s_add_u32 s{S_T1}, s{S_T1}, {SW}")
    a(f"v_mov_b32 v{X0}, s{S_T1}")
    a(f"v_mov_b32 v{X1}, 99")
    st.stamp(12)
    a("s_waitcnt vmcnt(0)")
    a(f"ds_write_b32 v{X0}, v{X1}")
    st.stamp(13)
    for k in range(8):
        a(f"buffer_store_dwordx4 {vr(V_H + 4 * k)}, v{V_L16}, {WS}, s{(S_H0, S_H1)[k // 4]} offen offset:{(k % 4) * 1024} sc1")
        a(f"s_waitcnt vmcnt({TH})")
    a(f"s_sub_u32 s{S_H0}, s{S_H0}, {8 * AF_KB * 1024}")
    a(f"s_sub_u32 s{S_H1}, s{S_H1}, {8 * AF_KB * 1024}")
    for k in range(8):
        a(f"buffer_store_dwordx4 {vr(4 * k)}, v{V_L16}, {WS}, s{(S_H0, S_H1)[k // 4]} offen offset:{(k % 4) * 1024} sc1")
        a(f"s_waitcnt vmcnt({TH})")
    st.stamp(27)
    st.stamp(28)
    a("s_waitcnt vmcnt(0)")
    st.stamp(29)
    for o in OPT:
        if o.startswith("late"):
            lds_wait(a, "L_g_hold", SW, int(o[4:]), X0, S_SP)
    lds_arrive(a, SW_G, X0, "L_g_sig")
    global_arrive(a, C2, X0, "L_g_sig")
    a.label("L_g_sig")
    st.stamp(7)
    st.stamp(8)
    a(f"v_mov_b32 v{X0}, {C2}")

    a.label("L_gemm")

    def wdma(slot, i):
        x = (f"s_add_u32 m0, s{S_WL}, {slot * 4096 + i * 1024}\ns_add_u32 s{S_T1}, s{S_WSRC}, {i * 16384}\n"
             f"buffer_load_dwordx4 v{V_UA}, {sr(S_UW)}, s{S_T1} offen lds")
        if i == 3:
            x += f"\ns_add_u32 s{S_WSRC}, s{S_WSRC}, {128 * 2048}"
        return x

    def wreads(slot):
        return [f"ds_read_b64_tr_b16 {vr(BUF[slot] + 32 + q * 4 + t * 2, 2)}, v{V_UR + q} offset:{slot * 4096 + t * 2048}"
                for q in range(4) for t in range(2)]

    for slot in range(2):
        for i in range(4):
            a(wdma(slot, i))
    for i in range(0, 128, 2):
        a(f"v_mov_b64 {vr(i, 2)}, 0")
    a("s_waitcnt vmcnt(4)")
    for x in wreads(0):
        a(x)
    a("s_waitcnt lgkmcnt(0)")
    for i in range(4):
        a(wdma(0, i))
    ldc = f"buffer_load_dword v{X2}, v{X0}, {DBG}, 0 offen offset:128 sc1"
    a(ldc)
    a("s_waitcnt vmcnt(0)")
    spin(a, "L_gemm_c", "s_sleep 8\n" + ldc, X2, 1, S_SP)
    st.stamp(9)
    srd(a, S_KVD, S_WS, WS_USED)
    GA = sr(S_KVD)

    def aload(u, tt):
        x = (f"buffer_load_dwordx4 {vr(BUF[u] + tt * 4)}, v{V_L16 if tt < 4 else V_DA}, {GA}, s{S_ASRC} "
             f"offen offset:{(tt & 3) * 1024} sc1")
        if tt == 7:
            x += f"\ns_add_u32 s{S_ASRC}, s{S_ASRC}, 32768"
        return x

    a(f"v_and_b32 v{X0}, 15, v{L}")
    a(f"v_lshlrev_b32 v{X0}, 3, v{X0}")
    for tt in range(4, 8):
        a(f"buffer_load_dword v{V_G + tt}, v{X0}, {WS}, s{S_GOFF} offen offset:{tt * 128} sc1")
    for tt in range(8):
        a(aload(0, tt))
    for tt in range(4):
        a(f"buffer_load_dword v{V_G + tt}, v{X0}, {WS}, s{S_GOFF} offen offset:{tt * 128} sc1")
    for tt in range(8):
        a(aload(1, tt))
    a(".p2align 6")
    a.label("L_gemm_loop")
    gate = [o for o in OPT if o.startswith('gate')]
    if gate:
        a(f"s_cmp_eq_u32 s{S_STEPS}, {gate[0][4:]}")
        a("s_cbranch_scc0 L_gemm_ng_ok")
        lds_wait(a, "L_gemm_ng", SW_A, 4, X3, S_SP)
    a(f"s_cmp_eq_u32 s{S_STEPS}, 1")
    a(f"s_cselect_b32 s{S_KVD + 2}, 0, s{S_KVD + 2}")
    for u in range(2):
        a("s_waitcnt vmcnt(12) lgkmcnt(0)")
        rd = wreads(u ^ 1)
        for tt in range(8):
            if tt == 3:
                a("s_waitcnt lgkmcnt(0)")
            for nt in range(4):
                d = vr((tt * 4 + nt) * 4)
                a(f"v_mfma_f32_16x16x32_bf16 {d}, {vr(BUF[u] + 32 + nt * 4)}, {vr(BUF[u] + tt * 4)}, {d}")
                if tt < 2:
                    a(rd[tt * 4 + nt])
                if 3 <= tt < 7 and nt == 1:
                    a(wdma(u ^ 1, tt - 3))
            a(aload(u, tt))
    a(f"s_sub_u32 s{S_STEPS}, s{S_STEPS}, 1")
    a(f"s_cmp_lg_u32 s{S_STEPS}, 0")
    a("s_cbranch_scc1 L_gemm_loop")
    a("s_waitcnt vmcnt(0) lgkmcnt(0)")
    st.stamp(10)
    a(f"s_lshl_b32 s{S_T0}, s{S_KQ}, 15")
    a(f"v_add_u32 v{X3}, s{S_T0}, v{V_L16}")
    a(f"s_lshl_b32 s{S_T0}, s{S_KQ}, 13")
    a(f"v_add_u32 v{X4}, s{S_T0}, v{V_L16}")
    a(f"v_add_u32 v{X5}, 65536, v{X4}")

    def write_partial():
        for i in range(32):
            a(f"ds_write_b128 v{X3}, {vr(4 * i)} offset:{i * 1024}")

    def gather(dst_acc, first):
        src = [(X4, 0), (X4, 32768), (X5, 0), (X5, 32768)]
        for p in range(4):
            for i in range(8):
                a(f"ds_read_b128 {vr(32 * p + 4 * i)}, v{src[p][0]} offset:{src[p][1] + i * 1024}")
            if p in (1, 3):
                a("s_waitcnt lgkmcnt(0)")
                for i in range(0, 32, 2):
                    a(f"v_pk_add_f32 {vr(32 * p + i, 2)}, {vr(32 * p + i, 2)}, {vr(32 * (p - 1) + i, 2)}")
        for i in range(0, 32, 2):
            if first:
                a(f"v_pk_add_f32 {vr(dst_acc + i, 2)}, {vr(32 + i, 2)}, {vr(96 + i, 2)}")
            else:
                a(f"v_pk_add_f32 {vr(32 + i, 2)}, {vr(32 + i, 2)}, {vr(96 + i, 2)}")
                a(f"v_fmac_f32 v{dst_acc + i}, v{32 + i}, v{V_G + i // 16}")
                a(f"v_fmac_f32 v{dst_acc + i + 1}, v{33 + i}, v{V_G + i // 16}")

    a(f"s_cmp_lt_u32 s{S_WAVE}, 4")
    a("s_cbranch_scc0 L_g_red")
    a("s_barrier")
    write_partial()
    a("s_waitcnt lgkmcnt(0)")
    a("s_barrier")
    st.stamp(11)
    st.finish(100)
    a("s_endpgm")

    a.label("L_g_red")
    SUM = 128
    for tt in range(8):
        for i in range(16):
            a(f"v_mul_f32 v{tt * 16 + i}, v{tt * 16 + i}, v{V_G + tt}")
    a(f"v_and_b32 v{X0}, 15, v{L}")
    a(f"v_lshlrev_b32 v{X0}, 3, v{X0}")
    a(f"s_lshl_b32 s{S_T0}, s{S_KQ}, 8")
    a(f"s_add_u32 s{S_T0}, s{S_T0}, s{S_GOFF}")
    a(f"s_sub_u32 s{S_T0}, s{S_T0}, 4")
    a(f"buffer_load_dword v{V_G}, v{X0}, {WS}, s{S_T0} offen sc1")
    a(f"buffer_load_dword v{V_G + 1}, v{X0}, {WS}, s{S_T0} offen offset:128 sc1")
    lds_wait(a, "L_g_wa", SW_A, 4, X0, S_SP)

    def slice_addr(dst, src, j):
        a(f"s_cmp_gt_u32 {j}, {src}")
        a(f"s_cselect_b32 s{S_T1}, 1, 0")
        a(f"s_sub_u32 s{S_T1}, {j}, s{S_T1}")
        a(f"s_lshl_b32 s{S_T2}, {src}, 1")
        a(f"s_add_u32 s{S_T2}, s{S_T2}, s{S_T1}")
        a(f"s_add_u32 s{S_T2}, s{S_T2}, 9")
        a(f"s_cmp_eq_u32 s{S_T1}, 0")
        a(f"s_cselect_b32 s{S_T2}, {src}, s{S_T2}")
        a(f"s_lshl_b32 s{S_T2}, s{S_T2}, 13")
        a(f"v_add_u32 v{dst}, s{S_T2}, v{V_L16}")

    for j in range(4):
        slice_addr(X0, f"s{S_KQ}", j)
        a(f"s_cmp_eq_u32 s{S_KQ}, {j}")
        a(f"s_cbranch_scc1 L_g_own{j}")
        for i in range(8):
            a(f"ds_write_b128 v{X0}, {vr(32 * j + 4 * i)} offset:{i * 1024}")
        a(f"s_branch L_g_nxt{j}")
        a.label(f"L_g_own{j}")
        for i in range(0, 32, 2):
            a(f"v_mov_b64 {vr(SUM + i, 2)}, {vr(32 * j + i, 2)}")
        a.label(f"L_g_nxt{j}")
    a("s_waitcnt lgkmcnt(0)")
    lds_arrive(a, SW_R, X0, "L_g_arr")
    a.label("L_g_arr")
    lds_wait(a, "L_g_wr", SW_R, 4, X0, S_SP)
    for p in range(4):
        a(f"s_cmp_eq_u32 s{S_KQ}, {p}")
        a(f"s_cbranch_scc1 L_g_skip{p}")
        slice_addr(X0, p, f"s{S_KQ}")
        for i in range(8):
            a(f"ds_read_b128 {vr(4 * i)}, v{X0} offset:{i * 1024}")
        a("s_waitcnt lgkmcnt(0)")
        for i in range(0, 32, 2):
            a(f"v_pk_add_f32 {vr(SUM + i, 2)}, {vr(SUM + i, 2)}, {vr(i, 2)}")
        a.label(f"L_g_skip{p}")
    a("s_barrier")
    a(f"v_and_b32 v{X0}, 15, v{L}")
    a(f"s_lshl_b32 s{S_T0}, s{S_MB}, 7")
    a(f"s_lshl_b32 s{S_T1}, s{S_KQ}, 5")
    a(f"s_add_u32 s{S_T0}, s{S_T0}, s{S_T1}")
    a(f"v_add_u32 v{X0}, s{S_T0}, v{X0}")
    a(f"v_lshlrev_b32 v{X0}, 11, v{X0}")
    a(f"v_lshlrev_b32 v{X1}, 1, v{L}")
    a(f"v_and_b32 v{X1}, 32, v{X1}")
    a(f"v_add_u32 v{X0}, v{X0}, v{X1}")
    a(f"v_lshrrev_b32 v{X1}, 1, v{L}")
    a(f"v_and_b32 v{X1}, 16, v{X1}")
    a(f"v_add_u32 v{X0}, v{X0}, v{X1}")
    a(f"s_lshl_b32 s{S_T0}, s{S_NB}, 7")
    a(f"s_add_u32 s{S_T1}, s{S_T0}, {16 * 2048}")
    a("s_waitcnt vmcnt(0)")
    a("s_barrier")
    gather(SUM, False)
    P = 160
    for i in range(16):
        a(f"v_cvt_pk_bf16_f32 v{P + i}, v{SUM + 2*i}, v{SUM + 2*i + 1}")
    a("s_nop 1")
    for m in range(4):
        a(f"v_permlane16_swap_b32 v{P + 4*m}, v{P + 4*m + 2}")
        a(f"v_permlane16_swap_b32 v{P + 4*m + 1}, v{P + 4*m + 3}")
    for m in range(4):
        a(f"buffer_store_dwordx4 {vr(P + 4*m)}, v{X0}, {sr(S_OUT)}, s{S_T0 if m < 2 else S_T1} offen offset:{64 * (m & 1)}")
    if STAMPS:
        a("s_waitcnt vmcnt(0)")
    st.stamp(11)
    st.finish(100)


def main():
    global STAMPS
    if "--stamps" in sys.argv:
        STAMPS = True
        sys.argv.remove("--stamps")
    for x in list(sys.argv):
        if x.startswith("--opt="):
            OPT.update(x[6:].split(","))
            sys.argv.remove(x)
    global FLAG_TP_O
    if 'fo1' in OPT:
        FLAG_TP_O = 1
    if 'fom' in OPT:
        FLAG_TP_O = -1
    if 'fo0' in OPT:
        FLAG_TP_O = 0
    out = sys.argv[1] if len(sys.argv) > 1 else f"cdna_kernels/{NAME}.s"
    ref = open(f"cdna_kernels/{NAME}.s.ref").read().split("\n")
    head = [ln for ln in ref if ln.startswith(";") and "@launch" not in ln and "Override launch" not in ln
            and "grid=ceil" not in ln]
    a = Asm()
    a(f".globl {KNAME}")
    a(".p2align 8")
    a(f".type {KNAME},@function")
    a.label(KNAME)
    a("s_cmp_ge_u32 s2, 256")
    a("s_cbranch_scc1 L_end")
    st = Stamper(a)
    st.start()
    phase1(a, st)
    phase23(a, st)
    a.label("L_end")
    a("s_endpgm")
    a.label("L_code_end")
    txt = "\n".join(head) + "\n"
    if "list" in OPT:
        txt += f"; @launch kernel={KNAME} grid=(256,1,1) block=(512,1,1) lds=163840\n"
    else:
        txt += "; @launch grid=(256,1,1) block=(512,1,1) lds=163840\n"
    txt += '.amdgcn_target "amdgcn-amd-amdhsa--gfx950"\n.text\n'
    txt += a.text()
    txt += f""".section .rodata,"a"
.p2align 6
.amdhsa_kernel {KNAME}
  .amdhsa_next_free_vgpr 256
  .amdhsa_next_free_sgpr 102
  .amdhsa_accum_offset 256
  .amdhsa_group_segment_fixed_size 0
  .amdhsa_kernarg_size 88
  .amdhsa_user_sgpr_count 2
  .amdhsa_user_sgpr_kernarg_segment_ptr 1
  .amdhsa_system_sgpr_workgroup_id_x 1
.end_amdhsa_kernel
"""
    open(out, "w").write(txt)


if __name__ == "__main__":
    main()
```

```python
import struct
import sys

NAME = "gated_mix__softmax_full_mha__swiglu_ffn__prompt"
KNAME = NAME + "_kernel"

QF_BASE = 0
KV_BASE = 4 << 20
AF_BASE = 12 << 20
AF_KB = 144
AF_O = 112
G_BASE = AF_BASE + 128 * AF_KB * 1024
FLAG_BASE = G_BASE + 2048 * 8
WS_USED = FLAG_BASE + 256 * 128
STAMP_BASE = 64 << 20
STAMPS = False
OPT = set()
LOG2E = 1.4426950408889634
QSCALE = (32 ** -0.5) * LOG2E
C0, C2, C3 = 0, 4, 8
SPIN_LIMIT = 1 << 22


DESCRIPTION = """; One persistent launch, 256 workgroups x 8 waves (generated by dev/gen9.py):
;   phase 1  all waves: x @ [wqkv | w_gate | w_up], 256 x 320 tile per workgroup, LDS-DMA double buffer,
;            16x16x32 MFMA; q/k/v and h = silu(gate)*up leave in MFMA fragment order; gate value per row
;   phase 2  waves 0-3: attention, 64 queries each (shift = row max of the first key block, checked at the
;            end; a wave whose shift was unsafe redoes its rows with the true row max), then o @ wo
;            waves 4-7: store h, then h @ w_down, concurrently with the attention waves
;   final    LDS reduction of the partial tiles, out = (1-g)*(h@w_down) + g*(o@wo)
;   hand-offs: write-through stores, per-workgroup flags in d_ws (cleared first, confirmed through a
"""


def f32bits(x):
    return struct.unpack("<I", struct.pack("<f", x))[0]


class Asm:
    def __init__(self):
        self.lines = []

    def __call__(self, s):
        for ln in s.split("\n"):
            ln = ln.strip()
            if not ln:
                continue
            if ln.endswith(":") or ln.startswith("."):
                self.lines.append(ln)
            else:
                self.lines.append("    " + ln)

    def label(self, name):
        self.lines.append(name + ":")

    def text(self):
        return "\n".join(self.lines) + "\n"


def vr(base, n=4):
    return f"v[{base}:{base + n - 1}]"


def sr(base, n=4):
    return f"s[{base}:{base + n - 1}]"


def srd(a, dst, lo, nbytes):
    a(f"s_mov_b32 s{dst}, s{lo}")
    a(f"s_mov_b32 s{dst + 1}, s{lo + 1}")
    a(f"s_mov_b32 s{dst + 2}, {nbytes}")
    a(f"s_mov_b32 s{dst + 3}, 0x00020000")


class Stamper:
    def __init__(self, a):
        self.a = a

    def start(self):
        self.stamp(-1)

    def stamp(self, idx):
        if not STAMPS:
            return
        self.a("s_memrealtime s[80:81]")
        self.a("s_memtime s[82:83]")
        self.a("s_waitcnt lgkmcnt(0)")
        self.a(f"v_writelane_b32 v255, s80, {2 * (idx + 1)}")
        self.a(f"v_writelane_b32 v255, s82, {2 * (idx + 1) + 1}")

    def loop_stamp(self, base, scnt, mul, add):
        if not STAMPS:
            return
        self.a("s_memtime s[82:83]")
        self.a(f"s_mul_i32 s80, s{scnt}, {mul}")
        self.a(f"s_add_u32 m0, s80, {base + add}")
        self.a("s_waitcnt lgkmcnt(0)")
        self.a("v_writelane_b32 v255, s82, m0")

    def finish(self, vt):
        if not STAMPS:
            return
        a = self.a
        a("s_mov_b64 exec, -1")
        a("s_lshl_b32 s80, s2, 3")
        a(f"s_add_u32 s80, s80, s{S_WAVE}")
        a("s_lshl_b32 s80, s80, 8")
        a(f"s_add_u32 s80, s80, {STAMP_BASE}")
        a(f"s_mov_b32 s{S_WS + 2}, 0x10000000")
        a(f"v_lshlrev_b32 v{vt}, 2, v{V_LANE}")
        a(f"buffer_store_dword v255, v{vt}, {sr(S_WS)}, s80 offen")


S_WAVE = 3
S_WS, S_DBG = 4, 8
V_LANE, V_L16 = 228, 229
V_C0 = 251
SW = 147456
SW_G, SW_A, SW_R, SW_F, SW_D, SW_H = SW + 32, SW + 36, SW + 40, SW + 44, SW + 48, SW + 64
V_H = 192
S_H0, S_H1 = 78, 79
FLAG_TP_E, FLAG_TP_O = -1, -1
NEARLY = 9
WS = sr(S_WS)
DBG = sr(S_DBG)


def signal(a, off, vt, label):
    a(f"s_cmp_lg_u32 s{S_WAVE}, 0")
    a(f"s_cbranch_scc1 {label}")
    a(f"v_mov_b32 v{vt}, 1")
    a(f"v_mov_b32 v{vt + 1}, {off}")
    a("s_mov_b64 exec, 1")
    a(f"buffer_atomic_add v{vt}, v{vt + 1}, {DBG}, 0 offen sc1")
    a("s_mov_b64 exec, -1")
    a.label(label)


def spin(a, label, load, vval, expect, scnt):
    a(f"s_mov_b32 s{scnt}, 0")
    a.label(label)
    a(f"v_cmp_{'ne' if expect == 1 else 'gt'}_u32 vcc, {expect}, v{vval}")
    a("s_cmp_eq_u64 vcc, 0")
    a(f"s_cbranch_scc1 {label}_ok")
    a("s_sleep 1")
    a(load)
    a("s_waitcnt vmcnt(0)")
    a(f"s_add_u32 s{scnt}, s{scnt}, 1")
    a(f"s_cmp_lt_u32 s{scnt}, {SPIN_LIMIT}")
    a(f"s_cbranch_scc1 {label}")
    a.label(f"{label}_ok")


def phase1(a, st):
    XBUF = [0, 32768]
    WBASE = 65536
    WSTRIDE = 40960
    S_X, S_QKV, S_G, S_U, S_GW, S_PF = 12, 16, 20, 24, 28, 32
    S_W1024, S_ROWBLK, S_XCD, S_COLSUB, S_KX = 36, 37, 38, 39, 40
    S_WO = 41
    S_CNT = 46
    S_T0, S_T1, S_T2, S_T3 = 47, 48, 49, 50
    S_WN = 51
    S_NL2E, S_ONE, S_QS = 52, 54, 56
    S_FU, S_QKU, S_VU, S_TOK, S_E = 58, 59, 60, 61, 62
    S_PFO, S_PFS = 63, 100
    XF = [160, 176]
    WF = 192
    V_XA = 212
    V_WA, V_WB = 214, 218
    V_DX = 220
    V_DW6, V_DW7 = 224, 225
    V_PF, V_PFD = 226, 227
    V_ST = 230
    V_T = 232
    L = V_LANE
    T0, T1, T2, T3, T4 = V_T, V_T + 1, V_T + 2, V_T + 3, V_T + 4

    def acc(nt, tt):
        return (nt * 4 + tt) * 4

    for dst, off in ((S_X, 0), (S_QKV, 8), (S_G, 32), (S_U, 40), (S_WS, 80), (S_DBG, 72), (64, 56)):
        a(f"s_load_dwordx2 {sr(dst, 2)}, s[0:1], {off}")
    a(f"v_and_b32 v{L}, 63, v0")
    a(f"v_lshrrev_b32 v{T0}, 6, v0")
    a(f"v_lshlrev_b32 v{V_L16}, 4, v{L}")
    a(f"v_readfirstlane_b32 s{S_WAVE}, v{T0}")
    a("s_getpc_b64 s[28:29]")
    a.label("L_p1_pc")
    a(f"s_sub_u32 s28, s28, L_p1_pc-{KNAME}")
    a("s_subb_u32 s29, s29, 0")
    a(f"s_cmp_eq_u32 s{S_WAVE}, 7")
    a(f"s_cselect_b32 s30, L_code_end-{KNAME}, 0")
    a("s_mov_b32 s31, 0x00020000")
    a(f"s_lshr_b32 s{S_COLSUB}, s2, 3")
    a(f"s_and_b32 s{S_COLSUB}, s{S_COLSUB}, 3")
    a(f"s_lshl_b32 s{S_T0}, s{S_COLSUB}, 13")
    a(f"v_lshlrev_b32 v{T1}, 7, v{L}")
    a(f"buffer_load_dword v{V_PFD}, v{T1}, s[28:31], s{S_T0} offen")
    a(f"s_and_b32 s{S_XCD}, s2, 7")
    a(f"s_lshr_b32 s{S_ROWBLK}, s2, 5")
    a(f"s_lshl_b32 s{S_W1024}, s{S_WAVE}, 10")
    a(f"s_and_b32 s{S_WN}, s{S_WAVE}, 1")
    a(f"s_lshl_b32 s{S_T0}, s{S_WN}, 2")
    a(f"v_lshrrev_b32 v{T0}, 4, v{L}")
    a(f"v_add_u32 v{T0}, s{S_T0}, v{T0}")
    a(f"v_and_b32 v{T1}, 7, v{L}")
    a(f"v_xor_b32 v{T0}, v{T0}, v{T1}")
    a(f"v_lshlrev_b32 v{T0}, 4, v{T0}")
    a(f"v_lshrrev_b32 v{T2}, 3, v{L}")
    a(f"s_lshl_b32 s{S_T0}, s{S_ROWBLK}, 8")
    a(f"s_lshl_b32 s{S_T1}, s{S_WAVE}, 3")
    a(f"s_add_u32 s{S_T0}, s{S_T0}, s{S_T1}")
    a(f"v_add_u32 v{T3}, s{S_T0}, v{T2}")
    a(f"v_lshlrev_b32 v{T3}, 11, v{T3}")
    a(f"v_add_u32 v{V_DX}, v{T3}, v{T0}")
    for j in range(1, 4):
        a(f"v_add_u32 v{V_DX + j}, {j * 64 * 2048}, v{V_DX}")
    a(f"v_and_b32 v{T0}, 2, v{T2}")
    a(f"s_lshl_b32 s{S_T0}, s{S_WN}, 2")
    a(f"v_or_b32 v{T0}, s{S_T0}, v{T0}")
    a(f"v_xor_b32 v{T0}, v{T0}, v{T1}")
    a(f"v_lshlrev_b32 v{T0}, 4, v{T0}")
    a(f"v_add_u32 v{T3}, s{S_T1}, v{T2}")
    a(f"v_mul_u32_u24 v{V_DW6}, 6144, v{T3}")
    a(f"v_add_u32 v{V_DW6}, v{V_DW6}, v{T0}")
    a(f"v_mul_u32_u24 v{V_DW7}, 7168, v{T3}")
    a(f"v_add_u32 v{V_DW7}, v{V_DW7}, v{T0}")
    a(f"s_mov_b32 s{S_KX}, 0")
    a(f"s_mul_i32 s{S_E}, s{S_XCD}, 3")
    a(f"s_add_u32 s{S_E}, s{S_E}, s{S_COLSUB}")
    a(f"s_lshl_b32 s{S_T0}, s{S_E}, 8")
    a(f"s_lshl_b32 s{S_T1}, s{S_XCD}, 7")
    a(f"s_add_u32 s{S_T2}, s{S_T1}, 6144")
    a(f"s_cmp_eq_u32 s{S_COLSUB}, 3")
    a(f"s_cselect_b32 s{S_WO}, s{S_T2}, s{S_T0}")
    a(f"s_mov_b32 s{S_WO+1}, s{S_WO}")
    a(f"s_add_u32 s{S_T0}, s{S_T0}, 128")
    a(f"s_lshl_b32 s{S_QKU}, s{S_XCD}, 1")
    a(f"s_and_b32 s{S_T2}, s{S_COLSUB}, 1")
    a(f"s_add_u32 s{S_QKU}, s{S_QKU}, s{S_T2}")
    a(f"s_lshr_b32 s{S_T2}, s{S_COLSUB}, 1")
    a(f"s_lshl_b32 s{S_T2}, s{S_T2}, 4")
    a(f"s_add_u32 s{S_QKU}, s{S_QKU}, s{S_T2}")
    a(f"s_lshl_b32 s{S_T2}, s{S_QKU}, 7")
    a(f"s_lshl_b32 s{S_T1}, s{S_XCD}, 8")
    a(f"s_add_u32 s{S_T1}, s{S_T1}, 4096")
    a(f"s_add_u32 s{S_T3}, s{S_T1}, 128")
    a(f"s_cmp_eq_u32 s{S_COLSUB}, 3")
    a(f"s_cselect_b32 s{S_WO+2}, s{S_T2}, s{S_T0}")
    a(f"s_cselect_b32 s{S_WO+3}, s{S_T1}, s{S_T0}")
    a(f"s_cselect_b32 s{S_WO+4}, s{S_T3}, s{S_T2}")
    a(f"s_lshl_b32 s{S_QKU}, s{S_QKU}, 1")
    a(f"s_add_u32 s{S_QKU}, s{S_QKU}, s{S_WN}")
    a(f"s_and_b32 s{S_T0}, s{S_WAVE}, 1")
    a(f"s_lshl_b32 s{S_T0}, s{S_T0}, 3")
    a(f"s_add_u32 s{S_T0}, s{S_T0}, 32")
    a(f"s_cmp_eq_u32 s{S_COLSUB}, 3")
    a(f"s_cselect_b32 s{S_T1}, 2, 4")
    a(f"s_cmp_ge_u32 s{S_WAVE}, s{S_T1}")
    a(f"s_cselect_b32 s{S_T0}, 8, s{S_T0}")
    a(f"s_mov_b32 s{S_T3}, 7168")
    a(f"s_cselect_b32 s{S_T3}, 6144, s{S_T3}")
    a(f"s_cmp_ge_u32 s{S_WAVE}, 5")
    a(f"s_cselect_b32 s{S_T0}, 0, s{S_T0}")
    a(f"s_cselect_b32 s{S_T3}, 2048, s{S_T3}")
    a(f"s_cmp_eq_u32 s{S_WAVE}, 6")
    a(f"s_cselect_b32 s{S_T0}, 48, s{S_T0}")
    a(f"s_cmp_eq_u32 s{S_WAVE}, 7")
    a(f"s_cselect_b32 s{S_T0}, 16, s{S_T0}")
    a(f"s_load_dwordx2 {sr(S_PF, 2)}, s[0:1], s{S_T0}")
    a(f"s_lshl_b32 s{S_PF+2}, s{S_T3}, 10")
    a(f"s_lshl_b32 s{S_PFS}, s{S_T3}, 6")
    a(f"s_mov_b32 s{S_PFO}, 0")
    for p_ in range(5):
        a(f"s_cmp_eq_u32 s{S_WAVE}, {p_}")
        a(f"s_cselect_b32 s{S_PFO}, s{S_WO+p_}, s{S_PFO}")
    a(f"s_cmp_eq_u32 s{S_WAVE}, 5")
    a(f"s_cselect_b32 s{S_PF+2}, {2048 * 2048}, s{S_PF+2}")
    a(f"s_cselect_b32 s{S_PFS}, 128, s{S_PFS}")
    a(f"s_cmp_gt_u32 s{S_WAVE}, 5")
    a(f"s_cselect_b32 s{S_PF+2}, 0, s{S_PF+2}")
    a(f"s_mov_b32 s{S_PF+3}, 0x00020000")
    a(f"s_lshl_b32 s{S_T0}, s{S_ROWBLK}, 3")
    a(f"s_lshl_b32 s{S_T1}, s{S_ROWBLK}, 8")
    a(f"s_lshl_b32 s{S_T2}, s{S_COLSUB}, 6")
    a(f"s_add_u32 s{S_T1}, s{S_T1}, s{S_T2}")
    a(f"s_cmp_lt_u32 s{S_WAVE}, 5")
    a(f"s_cselect_b32 s{S_T0}, s{S_T0}, s{S_T1}")
    a(f"s_cselect_b32 s{S_T1}, 7, 63")
    a(f"v_and_b32 v{V_PF}, s{S_T1}, v{L}")
    a(f"v_add_u32 v{V_PF}, s{S_T0}, v{V_PF}")
    a(f"v_mul_lo_u32 v{V_PF}, v{V_PF}, s{S_T3}")
    for dst, nb in ((S_X, 2048 * 2048), (S_QKV, 1024 * 6144), (S_G, 1024 * 7168), (S_U, 1024 * 7168),
                    (S_WS, WS_USED), (S_DBG, 256)):
        a(f"s_mov_b32 s{dst + 2}, {nb}")
        a(f"s_mov_b32 s{dst + 3}, 0x00020000")
    pf = (f"buffer_load_dword v{V_PFD}, v{V_PF}, {sr(S_PF)}, s{S_PFO} offen\n"
          f"s_add_u32 s{S_PFO}, s{S_PFO}, s{S_PFS}")
    a("s_waitcnt lgkmcnt(0)")
    po = ([o[2:] for o in OPT if o.startswith("po")] or ["220"])[0]
    for _ in range(int(po[0])):
        a(pf)
    a(f"s_cmp_eq_u32 s{S_COLSUB}, 3")
    a("s_cbranch_scc1 L_p1_O")

    for variant in ("E", "O"):
        a.label(f"L_p1_{variant}")
        if variant == "E":
            blocks = [S_G, S_U, S_G, S_U, S_QKV]
            tiles = [(V_WB + 0, 0, 0), (V_WB + 1, 0, 0),
                     (V_WA + 0, 0, 0), (V_WA + 1, 0, 0), (V_WA + 0, 8192, 0), (V_WA + 1, 8192, 0),
                     (V_WA + 2, 0, 0), (V_WA + 3, 0, 0), (V_WA + 2, 8192, 0), (V_WA + 3, 8192, 0)]
            hunits = [(2, 4), (6, 8)]
            qk_t, v_t = 0, None
            last_order = [(0, 0), (0, 1), (0, 2), (0, 3), (1, 0), (1, 1)] + [(0, n) for n in range(4, 10)] + \
                         [(1, n) for n in range(2, 10)]
        else:
            blocks = [S_G, S_U, S_QKV, S_QKV, S_QKV]
            tiles = [(V_WB + 0, 16384, 0), (V_WB + 1, 16384, 0),
                     (V_WA + 0, 0, 1), (V_WA + 1, 0, 1), (V_WA + 2, 0, 1), (V_WA + 3, 0, 1),
                     (V_WB + 0, 0, 0), (V_WB + 1, 0, 0), (V_WB + 0, 8192, 0), (V_WB + 1, 8192, 0)]
            hunits = [(6, 8)]
            qk_t, v_t = 0, 2
            last_order = [(0, 0), (0, 1), (0, 2), (0, 3), (1, 0), (1, 1), (1, 2), (1, 3), (0, 4), (1, 4),
                          (0, 5), (1, 5)] + [(k, n) for n in range(6, 10) for k in range(2)]

        def dma_list(buf):
            out = []
            for j in range(4):
                out.append(f"s_add_u32 m0, s{S_W1024}, {XBUF[buf] + j * 8192}\ns_nop 0\n"
                           f"buffer_load_dwordx4 v{V_DX + j}, {sr(S_X)}, s{S_KX} offen lds")
            for p in range(5):
                b = blocks[p]
                vd = V_DW6 if b == S_QKV else V_DW7
                pitch = 6144 if b == S_QKV else 7168
                out.append(f"s_add_u32 m0, s{S_W1024}, {WBASE + buf * WSTRIDE + p * 8192}\ns_nop 0\n"
                           f"buffer_load_dwordx4 v{vd}, {sr(b)}, s{S_WO + p} offen lds\n"
                           f"s_add_u32 s{S_WO + p}, s{S_WO + p}, {64 * pitch}")
            out[3] += f"\ns_add_u32 s{S_KX}, s{S_KX}, 128"
            return out

        for d in dma_list(0):
            a(d)
        for _ in range(int(po[1])):
            a(pf)
        d1 = dma_list(1)
        srd(a, S_GW, 64, 2048)
        if 'endwarm' not in OPT:
            a(f"s_cmp_eq_u32 s{S_WAVE}, 6")
            a(f"s_cselect_b32 s{S_T0}, 14, 4")
            a(f"s_lshl_b32 s{S_T0}, s{S_T0}, 11")
            a(f"s_mul_i32 s{S_T1}, s{S_T0}, s2")
            a(f"s_add_u32 s{S_T0}, s{S_T0}, s{S_T1}")
            a(f"v_and_b32 v{T0}, 15, v{L}")
            a(f"v_lshlrev_b32 v{T0}, 7, v{T0}")
            a(f"s_cmp_gt_u32 s{S_WAVE}, 5")
            a(f"s_cselect_b32 s{S_PF+2}, s{S_T0}, s{S_PF+2}")
            a(f"s_cselect_b32 s{S_PFO}, s{S_T1}, s{S_PFO}")
            a(f"s_cselect_b32 s{S_PFS}, 2048, s{S_PFS}")
            a("s_cselect_b64 vcc, -1, 0")
            a("s_nop 1")
            a(f"v_cndmask_b32 v{V_PF}, v{V_PF}, v{T0}, vcc")
        a("s_lshr_b32 s65, s2, 6")
        a("s_add_u32 s65, s65, 1")
        a(f"s_lshr_b32 s{S_T0}, s{S_WAVE}, 1")
        a(f"s_lshl_b32 s{S_T0}, s{S_T0}, 13")
        a(f"v_and_b32 v{T1}, 15, v{L}")
        a(f"v_lshlrev_b32 v{T1}, 7, v{T1}")
        a(f"v_add_u32 v{T3}, s{S_T0}, v{T1}")
        a(f"v_lshrrev_b32 v{T1}, 1, v{L}")
        a(f"v_and_b32 v{T1}, 7, v{T1}")
        a(f"v_lshrrev_b32 v{T4}, 4, v{L}")
        a(f"v_xor_b32 v{T1}, v{T1}, v{T4}")
        a(f"v_lshlrev_b32 v{T1}, 4, v{T1}")
        a(f"v_add_u32 v{V_XA}, v{T3}, v{T1}")
        a(f"v_xor_b32 v{V_XA+1}, 64, v{V_XA}")
        a(f"v_lshlrev_b32 v{T4}, 10, v{T4}")
        a(f"v_lshrrev_b32 v{T1}, 2, v{L}")
        a(f"v_and_b32 v{T1}, 3, v{T1}")
        a(f"v_lshlrev_b32 v{T3}, 7, v{T1}")
        a(f"v_add_u32 v{T4}, v{T4}, v{T3}")
        a(f"v_lshlrev_b32 v{T1}, 2, v{L}")
        a(f"v_and_b32 v{T1}, 0x60, v{T1}")
        a(f"v_add_u32 v{T4}, v{T4}, v{T1}")
        a(f"v_and_b32 v{T1}, 3, v{L}")
        a(f"v_lshlrev_b32 v{T1}, 3, v{T1}")
        a(f"v_add_u32 v{T4}, v{T4}, v{T1}")

        if variant == "E":
            a(f"s_lshl_b32 s{S_T0}, s{S_WN}, 14")
            a(f"s_add_u32 s{S_T0}, s{S_T0}, {WBASE}")
            a(f"s_mov_b32 s{S_T1}, {WBASE + 4 * 8192}")
            a(f"s_lshl_b32 s{S_FU}, s{S_E}, 2")
            a(f"s_lshl_b32 s{S_T2}, s{S_WN}, 1")
            a(f"s_add_u32 s{S_FU}, s{S_FU}, s{S_T2}")
        else:
            a(f"s_lshl_b32 s{S_T0}, s{S_WN}, 13")
            a(f"s_add_u32 s{S_T0}, s{S_T0}, {WBASE + 3 * 8192}")
            a(f"s_mov_b32 s{S_T1}, {WBASE}")
            a(f"s_lshl_b32 s{S_FU}, s{S_XCD}, 1")
            a(f"s_add_u32 s{S_FU}, s{S_FU}, 96")
            a(f"s_add_u32 s{S_FU}, s{S_FU}, s{S_WN}")
            a(f"s_lshl_b32 s{S_VU}, s{S_XCD}, 2")
            a(f"s_lshl_b32 s{S_T2}, s{S_WN}, 1")
            a(f"s_add_u32 s{S_VU}, s{S_VU}, s{S_T2}")
        for q in range(4):
            a(f"v_xor_b32 v{V_WA + q}, {q << 5}, v{T4}")
            a(f"v_add_u32 v{V_WA + q}, s{S_T0}, v{V_WA + q}")
        a(f"s_lshl_b32 s{S_T2}, s{S_WN}, 6")
        a(f"v_xor_b32 v{V_WB}, s{S_T2}, v{T4}")
        a(f"v_add_u32 v{V_WB}, s{S_T1}, v{V_WB}")
        a(f"v_xor_b32 v{V_WB+1}, 32, v{V_WB}")
        a(f"v_lshrrev_b32 v{T1}, 3, v{L}")
        a(f"v_lshlrev_b32 v{T1}, 8, v{T1}")
        a(f"v_and_b32 v{T2}, 7, v{L}")
        a(f"v_lshlrev_b32 v{T2}, 4, v{T2}")
        a(f"v_add_u32 v{V_ST}, v{T1}, v{T2}")
        a(f"s_mov_b32 s{S_NL2E}, {f32bits(-LOG2E):#x}")
        a(f"s_mov_b32 s{S_NL2E+1}, {f32bits(-LOG2E):#x}")
        a(f"s_mov_b32 s{S_ONE}, 1.0")
        a(f"s_mov_b32 s{S_ONE+1}, 1.0")
        a(f"s_lshl_b32 s{S_T0}, s2, 3")
        a(f"s_add_u32 s{S_TOK}, s{S_T0}, s{S_WAVE}")
        for i in range(0, 160, 2):
            a(f"v_mov_b64 {vr(i, 2)}, 0")

        normal_order = [divmod(j, 10) for j in range(20)]

        def wread(buf, j, order=normal_order):
            ks, nt = order[j]
            va, imm, _ = tiles[nt]
            F = WF + (j % 5) * 4
            return [f"ds_read_b64_tr_b16 {vr(F + 2 * t, 2)}, v{va} offset:{buf * WSTRIDE + imm + (32 * ks + 4 * t) * 128}"
                    for t in range(2)]

        def xread(buf, ks, tt):
            return f"ds_read_b128 {vr(XF[ks] + 4 * tt)}, v{V_XA + ks} offset:{XBUF[buf] + tt * 2048}"

        def mfma(j, tt, order=normal_order):
            ks, nt = order[j]
            W = vr(WF + (j % 5) * 4)
            X = vr(XF[ks] + 4 * tt)
            A, B = (X, W) if tiles[nt][2] else (W, X)
            d = vr(acc(nt, tt))
            return f"v_mfma_f32_16x16x32_bf16 {d}, {A}, {B}, {d}"

        a(f"v_lshlrev_b32 v{T1}, 2, v{L}")
        a(f"v_add_u32 v{T1}, {SW}, v{T1}")
        a(f"v_mov_b32 v{T0}, 0")
        a(f"ds_write_b32 v{T1}, v{T0}")
        a("s_waitcnt lgkmcnt(0)")
        a(f"s_lshl_b32 s{S_T0}, s2, 7")
        a(f"s_add_u32 s{S_T0}, s{S_T0}, {FLAG_BASE}")
        a(f"v_mov_b32 v{T0}, 0")
        a(f"buffer_store_dword v{T0}, v{T0}, {WS}, s{S_T0} offen sc1")
        st.stamp(0)
        a(f"s_waitcnt vmcnt({1 + int(po[1])})")
        a("s_barrier")
        st.stamp(1)
        for tt in range(4):
            a(xread(0, 0, tt))
        for j in range(4):
            for r in wread(0, j):
                a(r)
        for d in d1[:2]:
            a(d)
        for _ in range(int(po[2])):
            a(pf)

        def stage(buf, post_barrier=None):
            for j in range(20):
                if j == 16:
                    a("s_waitcnt vmcnt(1) lgkmcnt(0)")
                    a("s_barrier")
                    st.loop_stamp(32, S_CNT, 2, buf)
                    assert not stage.pending
                    stage.pending = dma_list(buf) + [pf]
                    if post_barrier:
                        post_barrier()
                elif j % 2 == 0 and j < 16:
                    a("s_waitcnt lgkmcnt(4)")
                wr = wread(buf, j + 4) if j + 4 < 20 else wread(buf ^ 1, j + 4 - 20)
                xr = []
                if 2 <= j <= 5:
                    xr = [xread(buf, 1, j - 2)]
                if j in (16, 17):
                    xr = [xread(buf ^ 1, 0, 2 * (j - 16)), xread(buf ^ 1, 0, 2 * (j - 16) + 1)]
                dm, dm2 = [], []
                if stage.pending and j not in (16, 17):
                    if 'dma2' in OPT and not xr and j < 16:
                        dm2 = [stage.pending.pop(0)]
                if stage.pending and j not in (16, 17):
                    dm = [stage.pending.pop(0)]
                slots = [wr[:1], wr[1:] + dm2, xr[:1], xr[1:] + dm]
                for tt in range(4):
                    a(mfma(j, tt))
                    for f in slots[tt]:
                        a(f)

        GX, GW_, G0, G1, GA = V_T, V_T + 8, V_T + 16, V_T + 17, V_T + 18

        def events():
            a(f"s_cmp_eq_u32 s{S_CNT}, s65")
            a(f"s_cbranch_scc0 L_p1_{variant}_e0")
            signal(a, C0, G0, f"L_p1_{variant}_e0")
            a(f"s_cmp_eq_u32 s{S_CNT}, 7")
            a(f"s_cbranch_scc0 L_p1_{variant}_e7")
            a(f"v_mov_b32 v{G1}, {C0}")
            a(f"buffer_load_dword v{V_C0}, v{G1}, {DBG}, 0 offen sc1")
            a(f"s_lshl_b32 s{S_T0}, s{S_TOK}, 11")
            a(f"v_lshlrev_b32 v{G0}, 5, v{L}")
            a(f"buffer_load_dwordx4 {vr(GX)}, v{G0}, {sr(S_X)}, s{S_T0} offen")
            a(f"buffer_load_dwordx4 {vr(GX+4)}, v{G0}, {sr(S_X)}, s{S_T0} offen offset:16")
            a(f"buffer_load_dwordx4 {vr(GW_)}, v{G0}, {sr(S_GW)}, 0 offen")
            a(f"buffer_load_dwordx4 {vr(GW_+4)}, v{G0}, {sr(S_GW)}, 0 offen offset:16")
            if 'endwarm' in OPT:
                a(f"s_cmp_eq_u32 s{S_WAVE}, 6")
                a(f"s_cselect_b32 s{S_T0}, 14, 4")
                a(f"s_lshl_b32 s{S_T0}, s{S_T0}, 11")
                a(f"s_mul_i32 s{S_T1}, s{S_T0}, s2")
                a(f"s_add_u32 s{S_T0}, s{S_T0}, s{S_T1}")
                a(f"s_cmp_gt_u32 s{S_WAVE}, 5")
                a(f"s_cselect_b32 s{S_PF+2}, s{S_T0}, 0")
                a(f"v_lshlrev_b32 v{V_PF}, 7, v{L}")
                for k_ in range(4):
                    a(f"buffer_load_dword v{V_PFD}, v{V_PF}, {sr(S_PF)}, s{S_T1} offen")
                    a(f"s_add_u32 s{S_T1}, s{S_T1}, 8192")
            for s_ in (S_X, S_QKV, S_G, S_U, S_PF):
                a(f"s_mov_b32 s{s_ + 2}, 0")
            a.label(f"L_p1_{variant}_e7")

        stage.pending = d1[2:] + [pf]
        a(f"s_mov_b32 s{S_CNT}, 0")
        a(".p2align 6")
        a.label(f"L_p1_{variant}_loop")
        saved = list(stage.pending)
        stage(0, post_barrier=events)
        a(f"s_cmp_eq_u32 s{S_CNT}, 7")
        a(f"s_cbranch_scc1 L_p1_{variant}_last")
        stage(1)
        assert stage.pending == saved
        a(f"s_add_u32 s{S_CNT}, s{S_CNT}, 1")
        a(f"s_branch L_p1_{variant}_loop")

        a.label(f"L_p1_{variant}_last")
        a(f"s_lshl_b32 s{S_T0}, s{S_ROWBLK}, 3")
        a(f"s_and_b32 s{S_T1}, s{S_WAVE}, 6")
        a(f"s_add_u32 s{S_T0}, s{S_T0}, s{S_T1}")
        TB = S_T0
        S_A0, S_A1, S_A2 = S_WO, S_WO + 1, S_WO + 2
        a(f"s_cmp_lt_u32 s{S_QKU}, 32")
        a(f"s_cselect_b32 s{S_QS}, {f32bits(QSCALE):#x}, 1.0")
        a(f"s_mov_b32 s{S_QS+1}, s{S_QS}")
        a(f"s_lshl_b32 s{S_T1}, s{S_QKU}, 17")
        a(f"s_lshl_b32 s{S_T2}, s{TB}, 11")
        a(f"s_add_u32 s{S_T1}, s{S_T1}, s{S_T2}")
        a(f"s_sub_u32 s{S_T3}, s{S_QKU}, 32")
        a(f"s_lshl_b32 s{S_T3}, s{S_T3}, 18")
        a(f"s_lshl_b32 s{S_T2}, s{TB}, 12")
        a(f"s_add_u32 s{S_T3}, s{S_T3}, s{S_T2}")
        a(f"s_add_u32 s{S_T3}, s{S_T3}, {KV_BASE}")
        a(f"s_cmp_lt_u32 s{S_QKU}, 32")
        a(f"s_cselect_b32 s{S_A0}, s{S_T1}, s{S_T3}")
        a(f"s_cselect_b32 s{S_T1}, 1, 2")
        a(f"s_lshl_b32 s{S_T1}, s{S_T1}, 11")
        a(f"s_add_u32 s{S_A1}, s{S_A0}, s{S_T1}")
        if v_t is not None:
            a(f"s_lshl_b32 s{S_A2}, s{S_VU}, 18")
            a(f"s_add_u32 s{S_A2}, s{S_A2}, s{S_T2}")
            a(f"s_add_u32 s{S_A2}, s{S_A2}, {KV_BASE + 2048}")

        def pack_store(r0, r1, soff, imm, pre=()):
            return list(pre) + [
                f"v_cvt_pk_bf16_f32 v{r0}, v{r0}, v{r0+1}", f"v_cvt_pk_bf16_f32 v{r0+1}, v{r0+2}, v{r0+3}",
                f"v_cvt_pk_bf16_f32 v{r0+2}, v{r1}, v{r1+1}", f"v_cvt_pk_bf16_f32 v{r0+3}, v{r1+2}, v{r1+3}",
                f"buffer_store_dwordx4 {vr(r0)}, v{V_ST}, {WS}, s{soff} offen offset:{imm} sc1"]

        done_at = {}
        for j, (ks, nt) in enumerate(last_order):
            done_at[nt] = j
        jobs = []
        for tt in range(4):
            pre = [f"v_pk_mul_f32 {vr(acc(qk_t + t, tt) + 2*h, 2)}, {vr(acc(qk_t + t, tt) + 2*h, 2)}, {sr(S_QS, 2)}"
                   for t in range(2) for h in range(2)]
            jobs.append((done_at[qk_t + 1] + 3, pack_store(acc(qk_t, tt), acc(qk_t + 1, tt),
                                                           S_A0 if tt < 2 else S_A1, (tt & 1) * 128, pre)))
        if v_t is not None:
            for n in range(4):
                vi, e = divmod(n, 2)
                for m in range(2):
                    pre = [f"s_add_u32 s{S_T1}, s{S_A2}, {vi * 262144 + m * 4096}"]
                    jobs.append((done_at[v_t + n] + 3, pack_store(acc(v_t + n, 2 * m), acc(v_t + n, 2 * m + 1),
                                                                  S_T1, e * 128, pre)))
        fill = []
        for j in range(20):
            if j % 2 == 0:
                a(f"s_waitcnt lgkmcnt({4 if j <= 16 else 0})")
            while jobs and jobs[0][0] <= j:
                fill += jobs.pop(0)[1]
            wr = wread(1, j + 4, last_order) if j + 4 < 20 else []
            xr = [xread(1, 1, 2 * j), xread(1, 1, 2 * j + 1)] if j < 2 else []
            slots = [xr[:1] + wr[:1], xr[1:] + wr[1:], [], []]
            for tt in range(4):
                a(mfma(j, tt, last_order))
                for f in slots[tt]:
                    a(f)
                for _ in range(int(([o[4:] for o in OPT if o.startswith("fill")] or ["2"])[0])):
                    if fill:
                        a(fill.pop(0))
        assert not jobs
        for f in fill:
            a(f)
        st.stamp(2)
        tmp = XF[0]
        a(f"s_lshr_b32 s{S_T1}, s{TB}, 2")
        a(f"s_mul_i32 s{S_T1}, s{S_T1}, {AF_KB}")
        a(f"s_add_u32 s{S_T1}, s{S_T1}, s{S_FU}")
        a(f"s_lshl_b32 s{S_T1}, s{S_T1}, 13")
        a(f"s_and_b32 s{S_T2}, s{TB}, 2")
        a(f"s_lshl_b32 s{S_T2}, s{S_T2}, 11")
        a(f"s_add_u32 s{S_T1}, s{S_T1}, s{S_T2}")
        a(f"s_add_u32 s{S_H0}, s{S_T1}, {AF_BASE}")
        if variant == "E":
            a(f"s_add_u32 s{S_H1}, s{S_H0}, 8192")
        else:
            a(f"s_mov_b32 s{S_H1}, 0x7f000000")

        def raise_flag():
            a("s_waitcnt vmcnt(0)")
            a("s_barrier")
            a(f"s_cmp_lg_u32 s{S_WAVE}, 0")
            a(f"s_cbranch_scc1 L_p1_{variant}_flag")
            a(f"s_lshl_b32 s{S_T2}, s2, 7")
            a(f"s_add_u32 s{S_T2}, s{S_T2}, {FLAG_BASE}")
            a(f"v_mov_b32 v{G0}, 1")
            a(f"v_mov_b32 v{G1}, 0")
            a("s_mov_b64 exec, 1")
            a(f"buffer_store_dword v{G0}, v{G1}, {WS}, s{S_T2} offen sc1")
            a("s_mov_b64 exec, -1")
            a.label(f"L_p1_{variant}_flag")
            st.stamp(3)

        ftp = FLAG_TP_E if variant == "E" else FLAG_TP_O
        if ftp < 0:
            raise_flag()
        for ui, (gt, ut) in enumerate(hunits):
            for tp in range(2):
                regs = []
                for tt in (2 * tp, 2 * tp + 1):
                    for t in range(2):
                        regs.append((acc(gt + t, tt), acc(ut + t, tt)))
                tb = tmp + tp * 16
                for i, (G, U) in enumerate(regs):
                    for h in range(2):
                        a(f"v_pk_mul_f32 {vr(tb + 4*i + 2*h, 2)}, {vr(G + 2*h, 2)}, {sr(S_NL2E, 2)}")
                for r in range(16):
                    a(f"v_exp_f32 v{tb + r}, v{tb + r}")
                for r in range(8):
                    a(f"v_pk_add_f32 {vr(tb + 2*r, 2)}, {vr(tb + 2*r, 2)}, {sr(S_ONE, 2)}")
                for r in range(16):
                    a(f"v_rcp_f32 v{tb + r}, v{tb + r}")
                for i, (G, U) in enumerate(regs):
                    for h in range(2):
                        a(f"v_pk_mul_f32 {vr(G + 2*h, 2)}, {vr(G + 2*h, 2)}, {vr(tb + 4*i + 2*h, 2)}")
                for i, (G, U) in enumerate(regs):
                    for h in range(2):
                        a(f"v_pk_mul_f32 {vr(G + 2*h, 2)}, {vr(G + 2*h, 2)}, {vr(U + 2*h, 2)}")
                for tt in (2 * tp, 2 * tp + 1):
                    P = V_H + (ui * 4 + tt) * 4
                    r0, r1 = acc(gt, tt), acc(gt + 1, tt)
                    a(f"v_cvt_pk_bf16_f32 v{P}, v{r0}, v{r0+1}")
                    a(f"v_cvt_pk_bf16_f32 v{P+1}, v{r0+2}, v{r0+3}")
                    a(f"v_cvt_pk_bf16_f32 v{P+2}, v{r1}, v{r1+1}")
                    a(f"v_cvt_pk_bf16_f32 v{P+3}, v{r1+2}, v{r1+3}")
                if ui == 0 and tp == ftp:
                    raise_flag()
        if variant == "E":
            a("s_branch L_p1_gate")

    a.label("L_p1_gate")
    a(f"v_mov_b32 v{GA}, 0")
    for i in range(8):
        a(f"v_lshlrev_b32 v{G0}, 16, v{GX+i}")
        a(f"v_lshlrev_b32 v{G1}, 16, v{GW_+i}")
        a(f"v_mul_f32 v{G0}, v{G0}, v{G1}")
        a(f"v_and_b32 v{GX+i}, 0xffff0000, v{GX+i}")
        a(f"v_and_b32 v{GW_+i}, 0xffff0000, v{GW_+i}")
        a(f"v_mul_f32 v{GX+i}, v{GX+i}, v{GW_+i}")
        a(f"v_cvt_pk_bf16_f32 v{G0}, v{G0}, v{GX+i}")
        a(f"v_lshlrev_b32 v{G1}, 16, v{G0}")
        a(f"v_and_b32 v{G0}, 0xffff0000, v{G0}")
        a(f"v_add_f32 v{GA}, v{GA}, v{G1}")
        a(f"v_add_f32 v{GA}, v{GA}, v{G0}")
    for dpp in ("row_shr:1 bound_ctrl:0", "row_shr:2 bound_ctrl:0", "row_shr:4 bound_ctrl:0", "row_shr:8 bound_ctrl:0",
                "row_bcast:15 row_mask:0xa", "row_bcast:31 row_mask:0xc"):
        a("s_nop 1")
        a(f"v_add_f32_dpp v{GA}, v{GA}, v{GA} {dpp}")
    a(f"v_cvt_pk_bf16_f32 v{G0}, v{GA}, v{GA}")
    a(f"v_and_b32 v{G0}, 0xffff0000, v{G0}")
    a(f"v_mul_f32 v{G0}, s{S_NL2E}, v{G0}")
    a(f"v_exp_f32 v{G0}, v{G0}")
    a("s_nop 0")
    a(f"v_add_f32 v{G0}, 1.0, v{G0}")
    a(f"v_rcp_f32 v{G0}, v{G0}")
    a("s_nop 0")
    a(f"v_cvt_pk_bf16_f32 v{G0}, v{G0}, v{G0}")
    a(f"v_and_b32 v{G0}, 0xffff0000, v{G0}")
    a(f"v_sub_f32 v{G1}, 1.0, v{G0}")
    a(f"v_cvt_pk_bf16_f32 v{G1}, v{G1}, v{G1}")
    a(f"v_and_b32 v{G1}, 0xffff0000, v{G1}")
    a(f"s_lshl_b32 s{S_T1}, s{S_TOK}, 3")
    a(f"s_add_u32 s{S_T1}, s{S_T1}, {G_BASE}")
    a(f"v_mov_b32 v{GA}, 0")
    a("s_mov_b32 exec_lo, 0")
    a("s_mov_b32 exec_hi, 0x80000000")
    a(f"buffer_store_dwordx2 {vr(G0, 2)}, v{GA}, {WS}, s{S_T1} offen sc1")
    a("s_mov_b64 exec, -1")
    st.stamp(4)


RB, STG, NB = 49152, 32768, 8


def lds_arrive(a, word, vt, label):
    a(f"v_mov_b32 v{vt}, {word}")
    a(f"v_mov_b32 v{vt + 1}, 1")
    a("s_mov_b64 exec, 1")
    a(f"ds_add_rtn_u32 v{vt + 1}, v{vt}, v{vt + 1}")
    a("s_waitcnt lgkmcnt(0)")
    a(f"v_readfirstlane_b32 s80, v{vt + 1}")
    a("s_mov_b64 exec, -1")
    a("s_cmp_eq_u32 s80, 3")
    a(f"s_cbranch_scc0 {label}")


def global_arrive(a, off, vt, label):
    a(f"v_mov_b32 v{vt}, 1")
    a(f"v_mov_b32 v{vt + 1}, {off}")
    a("s_mov_b64 exec, 1")
    a(f"buffer_atomic_add v{vt}, v{vt + 1}, {DBG}, 0 offen sc0 sc1")
    a("s_waitcnt vmcnt(0)")
    a(f"v_readfirstlane_b32 s80, v{vt}")
    a("s_mov_b64 exec, -1")
    a("s_cmp_eq_u32 s80, 255")
    a(f"s_cbranch_scc0 {label}")
    a(f"v_mov_b32 v{vt}, 1")
    a("s_mov_b64 exec, 1")
    a(f"buffer_store_dword v{vt}, v{vt + 1}, {DBG}, 0 offen offset:128 sc1")
    a("s_mov_b64 exec, -1")


def lds_wait(a, label, word, value, vt, scnt):
    a(f"v_mov_b32 v{vt}, {word}")
    a(f"s_mov_b32 s{scnt}, 0")
    a.label(label)
    a(f"ds_read_b32 v{vt + 1}, v{vt}")
    a("s_waitcnt lgkmcnt(0)")
    a(f"v_cmp_gt_u32 vcc, {value}, v{vt + 1}")
    a("s_cmp_eq_u64 vcc, 0")
    a(f"s_cbranch_scc1 {label}_ok")
    a("s_sleep 2")
    a(f"s_add_u32 s{scnt}, s{scnt}, 1")
    a(f"s_cmp_lt_u32 s{scnt}, {SPIN_LIMIT * 8}")
    a(f"s_cbranch_scc1 {label}")
    a.label(f"{label}_ok")


def phase23(a, st):
    L = V_LANE
    S_KVD, S_OUT, S_UW = 12, 16, 20
    S_HEAD, S_QBLK, S_SRC, S_LDS, S_CNT = 24, 25, 26, 27, 28
    S_T0, S_T1, S_T2 = 29, 30, 31
    S_TOKB, S_KVB, S_BIG, S_SP = 32, 33, 34, 35
    S_MB, S_NB, S_KQ, S_ASRC, S_WSRC, S_STEPS, S_GOFF = 40, 41, 42, 43, 44, 45, 46
    S_RD = 47
    S_WL = 48
    V_DA, V_UA, V_UR = 232, 233, 234
    V_G = 240
    V_X = 248
    BUF = [128, 176]

    a(f"s_cmp_lt_u32 s{S_WAVE}, 4")
    a(f"s_cselect_b32 s{S_T0}, 16, 48")
    a(f"s_load_dwordx2 {sr(S_UW, 2)}, s[0:1], s{S_T0}")
    a(f"s_mov_b32 s{S_UW + 2}, {3584 * 2048}")
    a(f"s_cselect_b32 s{S_UW + 2}, {1024 * 2048}, s{S_UW + 2}")
    a(f"s_mov_b32 s{S_UW + 3}, 0x00020000")
    a(f"s_load_dwordx2 {sr(S_OUT, 2)}, s[0:1], 64")
    a(f"s_and_b32 s{S_T0}, s2, 7")
    a(f"s_lshl_b32 s{S_HEAD}, s{S_T0}, 2")
    a(f"s_lshr_b32 s{S_T1}, s2, 3")
    a(f"s_and_b32 s{S_T2}, s{S_T1}, 3")
    a(f"s_add_u32 s{S_HEAD}, s{S_HEAD}, s{S_T2}")
    a(f"s_lshr_b32 s{S_QBLK}, s2, 5")
    a(f"s_lshl_b32 s36, s{S_HEAD}, 2")
    a("s_and_b32 s36, s36, 8")
    a(f"s_add_u32 s36, s36, s{S_T0}")
    a("s_add_u32 s37, s36, 16")
    a(f"s_add_u32 s38, s{S_T0}, 24")
    a(f"s_lshl_b32 s39, s{S_QBLK}, 5")
    a("s_add_u32 s36, s36, s39")
    X0, X1, X2, X3, X4, X5 = (V_X + i for i in range(6))
    a(f"s_lshr_b32 s{S_MB}, s{S_T0}, 1")
    a(f"s_lshl_b32 s{S_MB}, s{S_MB}, 2")
    a(f"s_add_u32 s{S_MB}, s{S_MB}, s{S_T2}")
    a(f"s_and_b32 s{S_NB}, s{S_T0}, 1")
    a(f"s_lshl_b32 s{S_NB}, s{S_NB}, 3")
    a(f"s_add_u32 s{S_NB}, s{S_NB}, s{S_QBLK}")
    a(f"s_and_b32 s{S_KQ}, s{S_WAVE}, 3")
    a(f"s_cmp_lt_u32 s{S_WAVE}, 4")
    a(f"s_cselect_b32 s{S_T1}, {AF_O}, 0")
    a(f"s_cselect_b32 s{S_STEPS}, 4, 14")
    a(f"s_cselect_b32 s{S_GOFF}, 0, 4")
    a(f"s_add_u32 s{S_T1}, s{S_T1}, s{S_KQ}")
    a(f"s_mul_i32 s{S_ASRC}, s{S_MB}, {AF_KB}")
    a(f"s_add_u32 s{S_ASRC}, s{S_ASRC}, s{S_T1}")
    a(f"s_lshl_b32 s{S_ASRC}, s{S_ASRC}, 13")
    a(f"s_add_u32 s{S_ASRC}, s{S_ASRC}, {AF_BASE}")
    a(f"s_lshl_b32 s{S_WSRC}, s{S_KQ}, 16")
    a(f"s_lshl_b32 s{S_T1}, s{S_NB}, 7")
    a(f"s_add_u32 s{S_WSRC}, s{S_WSRC}, s{S_T1}")
    a(f"s_lshl_b32 s{S_WL}, s{S_KQ}, 13")
    a(f"s_add_u32 s{S_T1}, s{S_WL}, {RB}")
    a(f"s_cmp_lt_u32 s{S_WAVE}, 4")
    a(f"s_cselect_b32 s{S_WL}, s{S_T1}, s{S_WL}")
    a(f"v_lshrrev_b32 v{X0}, 3, v{L}")
    a(f"v_and_b32 v{X1}, 6, v{X0}")
    a(f"v_and_b32 v{X2}, 7, v{L}")
    a(f"v_xor_b32 v{X1}, v{X1}, v{X2}")
    a(f"v_lshlrev_b32 v{X1}, 4, v{X1}")
    a(f"v_lshlrev_b32 v{X0}, 11, v{X0}")
    a(f"v_add_u32 v{V_UA}, v{X0}, v{X1}")
    a(f"v_lshrrev_b32 v{X0}, 2, v{L}")
    a(f"v_lshlrev_b32 v{X0}, 7, v{X0}")
    a(f"v_lshlrev_b32 v{X1}, 2, v{L}")
    a(f"v_and_b32 v{X1}, 0x60, v{X1}")
    a(f"v_add_u32 v{X0}, v{X0}, v{X1}")
    a(f"v_and_b32 v{X1}, 3, v{L}")
    a(f"v_lshlrev_b32 v{X1}, 3, v{X1}")
    a(f"v_add_u32 v{X0}, v{X0}, v{X1}")
    a(f"v_add_u32 v{V_UR}, s{S_WL}, v{X0}")
    for q in range(1, 4):
        a(f"v_xor_b32 v{V_UR + q}, {q << 5}, v{V_UR}")
    a(f"s_lshl_b32 s{S_T1}, s{S_MB}, 10")
    a(f"s_add_u32 s{S_GOFF}, s{S_GOFF}, s{S_T1}")
    a(f"s_add_u32 s{S_GOFF}, s{S_GOFF}, {G_BASE}")
    a(f"v_add_u32 v{V_DA}, 4096, v{V_L16}")
    a(f"s_mov_b32 s{S_OUT + 2}, {2048 * 2048}")
    a(f"s_mov_b32 s{S_OUT + 3}, 0x00020000")
    a(f"s_lshl_b32 s{S_KVB}, s{S_HEAD}, 18")
    a(f"s_add_u32 s{S_KVB}, s{S_KVB}, {KV_BASE}")
    a(f"s_lshl_b32 s{S_LDS}, s{S_KQ}, 13")
    a(f"s_add_u32 s{S_SRC}, s{S_KVB}, s{S_LDS}")
    a(f"s_add_u32 s{S_LDS}, s{S_LDS}, {RB}")
    srd(a, S_KVD, S_WS, WS_USED)
    a(f"s_add_u32 s{S_KVD + 2}, s{S_KVB}, {8 * STG}")
    a(f"s_lshl_b32 s{S_T1}, s{S_KQ}, 13")
    a(f"v_add_u32 v{X5}, s{S_T1}, v{V_L16}")
    a(f"s_cmp_lt_u32 s{S_WAVE}, 4")
    a("s_cbranch_scc0 L_g_start")

    V_K, V_V, V_ONE = 0, 8, 16
    V_OS, V_KA, V_VA, V_PG, V_PW = 20, 21, 22, 23, 24
    V_IDX = 26
    V_PR = 28

    def R(q):
        b = 32 + q * 88
        return dict(Q=b, S=[b + 8, b + 24], C=b + 40, O=b + 56, P=b + 72, L=b + 80, M=b + 84)
    V_T = 208

    for k in range(8):
        a(f"ds_write_b128 v{X5}, {vr(V_H + 4 * k)} offset:{k * 1024}")
    a(f"v_mov_b32 v{V_PW}, {SW}")
    a(f"s_lshl_b32 s{S_TOKB}, s{S_QBLK}, 3")
    a(f"s_lshl_b32 s{S_T1}, s{S_WAVE}, 1")
    a(f"s_add_u32 s{S_TOKB}, s{S_TOKB}, s{S_T1}")
    a(f"v_and_b32 v{X0}, 7, v{L}")
    a(f"v_lshrrev_b32 v{X1}, 1, v{L}")
    a(f"v_and_b32 v{X1}, 8, v{X1}")
    a(f"v_or_b32 v{X0}, v{X0}, v{X1}")
    a(f"v_lshrrev_b32 v{X1}, 3, v{L}")
    a(f"v_and_b32 v{X1}, 1, v{X1}")
    a(f"v_lshlrev_b32 v{V_OS}, 10, v{X1}")
    a(f"v_lshlrev_b32 v{X0}, 4, v{X0}")
    a(f"v_add_u32 v{V_OS}, v{V_OS}, v{X0}")
    a(f"v_lshrrev_b32 v{X0}, 5, v{L}")
    a(f"v_lshlrev_b32 v{X0}, 8, v{X0}")
    a(f"v_add_u32 v{V_OS}, v{V_OS}, v{X0}")
    a(f"v_and_b32 v{X0}, 4, v{L}")
    a(f"v_cmp_eq_u32 vcc, 0, v{X0}")
    a(f"v_mov_b32 v{X1}, 0x3f803f80")
    a("s_nop 1")
    a(f"v_cndmask_b32 v{V_ONE}, 0, v{X1}, vcc")
    a(f"v_mov_b32 v{V_ONE + 1}, v{V_ONE}")
    a(f"v_xor_b32 v{V_ONE + 2}, v{X1}, v{V_ONE}")
    a(f"v_mov_b32 v{V_ONE + 3}, v{V_ONE + 2}")
    a(f"v_and_b32 v{X0}, 1, v{L}")
    a(f"v_cmp_eq_u32 vcc, 0, v{X0}")
    a(f"v_mov_b32 v{X0}, 0xeeeeeeee")
    a(f"v_mov_b32 v{X1}, 0x44444444")
    a(f"v_cndmask_b32 v{V_IDX}, v{X0}, v{X1}, vcc")
    a("s_waitcnt lgkmcnt(0)")
    a(f"s_lshl_b32 s{S_T1}, s{S_WAVE}, 2")
    a(f"s_add_u32 s{S_T1}, s{S_T1}, {SW_H}")
    a(f"v_mov_b32 v{X0}, s{S_T1}")
    a(f"v_mov_b32 v{X1}, 1")
    a(f"ds_write_b32 v{X0}, v{X1}")
    for q in range(2):
        r = R(q)
        for i in range(0, 16, 2):
            a(f"v_mov_b64 {vr(r['O'] + i, 2)}, 0")
        for i in range(0, 4, 2):
            a(f"v_mov_b64 {vr(r['L'] + i, 2)}, 0")
            a(f"v_mov_b64 {vr(r['P'] + 4 + i, 2)}, 0")
    a(f"v_mov_b64 {vr(V_V + 4, 2)}, 0")
    a(f"v_mov_b64 {vr(V_V + 6, 2)}, 0")
    a(f"v_add_u32 v{V_KA}, {RB}, v{V_L16}")
    a(f"v_mov_b32 v{V_VA}, v{V_KA}")
    a(f"s_mov_b32 s{S_RD}, {RB}")
    a(f"s_lshl_b32 s{S_T1}, s{S_WAVE}, 2")
    a(f"s_add_u32 s{S_T1}, s{S_T1}, {SW}")
    a(f"v_mov_b32 v{V_PW + 1}, s{S_T1}")
    a(f"v_mov_b32 v{V_PG}, 0")
    a(f"s_mov_b32 s{S_BIG}, {f32bits(2.0 ** 60):#x}")
    a(f"s_mov_b32 s{S_SP}, 0")
    a(f"s_lshl_b32 s{S_T0}, s{S_HEAD}, 17")
    a(f"s_lshl_b32 s{S_T1}, s{S_TOKB}, 11")
    a(f"s_add_u32 s{S_T0}, s{S_T0}, s{S_T1}")
    a(f"s_cmp_lg_u32 s{S_WAVE}, 0")
    a("s_cbranch_scc1 L_p2_polled")
    a(f"v_and_b32 v{X0}, 7, v{L}")
    a(f"v_lshlrev_b32 v{X0}, 5, v{X0}")
    a(f"v_add_u32 v{X1}, s37, v{X0}")
    a(f"v_add_u32 v{X2}, s38, v{X0}")
    a(f"v_mov_b32 v{X4}, s36")
    a(f"v_cmp_gt_u32 vcc, 16, v{L}")
    a("s_nop 1")
    a(f"v_cndmask_b32 v{X4}, v{X4}, v{X2}, vcc")
    a(f"v_cmp_gt_u32 vcc, 8, v{L}")
    a("s_nop 1")
    a(f"v_cndmask_b32 v{X4}, v{X4}, v{X1}, vcc")
    a(f"v_lshlrev_b32 v{X4}, 7, v{X4}")
    a(f"v_add_u32 v{X4}, {FLAG_BASE}, v{X4}")
    a(f"v_mov_b32 v{X0}, {C0}")
    a(f"v_mov_b32 v{X1}, 0x100")
    ld0 = f"buffer_load_dword v{V_C0}, v{X0}, {DBG}, 0 offen sc1"
    ld1 = f"buffer_load_dword v{X2}, v{X4}, {WS}, 0 offen sc1"
    spin(a, "L_p2_c0", ld0, V_C0, f"v{X1}", S_SP)
    a(ld1)
    a("s_waitcnt vmcnt(0)")
    spin(a, "L_p2_fl", ld1, X2, 1, S_SP)
    a(f"v_mov_b32 v{X0}, {SW_F}")
    a(f"v_mov_b32 v{X1}, 1")
    a(f"ds_write_b32 v{X0}, v{X1}")
    a.label("L_p2_polled")
    lds_wait(a, "L_a_fl", SW_F, 1, X0, S_SP)
    a(f"s_mov_b32 s{S_SP}, 0")
    st.stamp(5)
    a("s_setprio 2")

    def dma_half(h):
        out = [f"s_add_u32 m0, s{S_LDS}, {h * 4096}\ns_add_u32 s{S_T1}, s{S_SRC}, {h * 4096}\n"
               f"buffer_load_dwordx4 v{V_L16}, {sr(S_KVD)}, s{S_T1} offen sc1 lds"]
        for i in range(1, 4):
            out.append(f"buffer_load_dwordx4 v{V_L16}, {sr(S_KVD)}, s{S_T1} offen offset:{i * 1024} sc1 lds")
        if h == 1:
            out[3] += (f"\ns_add_u32 s{S_SRC}, s{S_SRC}, {STG}\ns_add_u32 s{S_LDS}, s{S_LDS}, {STG}\n"
                       f"s_sub_u32 s{S_T1}, s{S_LDS}, {3 * STG}\ns_cmp_ge_u32 s{S_LDS}, {RB + 3 * STG}\n"
                       f"s_cselect_b32 s{S_LDS}, s{S_T1}, s{S_LDS}")
        return out

    for q in range(2):
        a(f"buffer_load_dwordx4 {vr(R(q)['Q'])}, v{V_L16}, {WS}, s{S_T0} offen offset:{q * 2048} sc1")
        a(f"buffer_load_dwordx4 {vr(R(q)['Q'] + 4)}, v{V_L16}, {WS}, s{S_T0} offen offset:{q * 2048 + 1024} sc1")
    if 'd1early' not in OPT:
        for x in dma_half(0) + dma_half(1):
            a(x)
        a("s_waitcnt vmcnt(0)")
        lds_arrive(a, SW_D, X0, "L_a_d0")
        a.label("L_a_d0")
        for x in dma_half(0) + dma_half(1):
            a(x)
    else:
        for x in dma_half(0) + dma_half(1) + dma_half(0) + dma_half(1):
            a(x)
        a("s_waitcnt vmcnt(8)")
        lds_arrive(a, SW_D, X0, "L_a_d0")
        a.label("L_a_d0")
    lds_wait(a, "L_a_dw", SW_D, 4, X0, S_SP)
    a(f"s_mov_b32 s{S_SP}, 0")
    st.stamp(6)

    def rdK(blk):
        o = (blk % NB) * 4096
        return [f"ds_read_b128 {vr(V_K)}, v{V_KA} offset:{o}", f"ds_read_b128 {vr(V_K + 4)}, v{V_KA} offset:{o + 1024}"]

    def rdV(blk):
        o = (blk % NB) * 4096 + 2048
        return [f"ds_read_b128 {vr(V_V)}, v{V_VA} offset:{o}", f"ds_read_b128 {vr(V_V + 4)}, v{V_VA} offset:{o + 1024}"]

    advK = (f"s_add_u32 s{S_RD}, s{S_RD}, {STG}\ns_cmp_ge_u32 s{S_RD}, {RB + 3 * STG}\n"
            f"s_cselect_b32 s{S_RD}, {RB}, s{S_RD}\nv_add_u32 v{V_KA}, s{S_RD}, v{V_L16}")
    advV = f"v_add_u32 v{V_VA}, s{S_RD}, v{V_L16}"

    def rowmax(dst, S, init=None):
        if init is None:
            a(f"v_max3_f32 v{dst}, v{S}, v{S+1}, v{S+2}")
            rest = list(range(3, 16))
        else:
            a(f"v_max3_f32 v{dst}, v{init}, v{S}, v{S+1}")
            rest = list(range(2, 16))
        while len(rest) >= 2:
            a(f"v_max3_f32 v{dst}, v{dst}, v{S + rest[0]}, v{S + rest[1]}")
            rest = rest[2:]
        if rest:
            a(f"v_max_f32 v{dst}, v{dst}, v{S + rest[0]}")

    def crosshalf_max(dst, tmp):
        a(f"v_mov_b32 v{tmp}, v{dst}")
        a("s_nop 1")
        a(f"v_permlane32_swap_b32 v{tmp}, v{dst}")
        a("s_nop 1")
        a(f"v_max_f32 v{dst}, v{dst}, v{tmp}")

    for x in rdK(0):
        a(x)
    a("s_waitcnt lgkmcnt(0)")
    for q in range(2):
        r = R(q)
        a(f"v_mfma_f32_32x32x16_bf16 {vr(r['S'][0], 16)}, {vr(V_K)}, {vr(r['Q'])}, 0")
        a(f"v_mfma_f32_32x32x16_bf16 {vr(r['S'][0], 16)}, {vr(V_K + 4)}, {vr(r['Q'] + 4)}, {vr(r['S'][0], 16)}")
    for x in rdK(1):
        a(x)
    a(rdV(0)[0])
    a("s_nop 14")
    for q in range(2):
        r = R(q)
        rowmax(r['M'], r['S'][0])
        crosshalf_max(r['M'], r['M'] + 1)
        for i in range(16):
            a(f"v_sub_f32 v{r['C'] + i}, 0, v{r['M']}")
        for i in range(16):
            a(f"v_sub_f32 v{r['S'][0] + i}, v{r['S'][0] + i}, v{r['M']}")

    def half_block(i, q, extra):
        extra = list(extra) + ["", "", ""]
        r = R(q)
        Sc, Sn = r['S'][i & 1], r['S'][(i + 1) & 1]
        P, O, Lr = r['P'], r['O'], r['L']
        ex = [f"v_exp_f32 v{Sc + k}, v{Sc + k}" for k in range(16)]
        cv = [f"v_cvt_pk_bf16_f32 v{P + d}, v{Sc + 2*d}, v{Sc + 2*d + 1}" for d in range(8)]
        kr = rdK(i + 2) if q == 1 else ["", ""]
        if q == 0:
            a("s_waitcnt lgkmcnt(1)")
        a(f"v_mfma_f32_32x32x16_bf16 {vr(Sn, 16)}, {vr(V_K)}, {vr(r['Q'])}, {vr(r['C'], 16)}")
        a(kr[0])
        for e in ex[0:3]:
            a(e)
        a(f"v_mfma_f32_32x32x16_bf16 {vr(Sn, 16)}, {vr(V_K + 4)}, {vr(r['Q'] + 4)}, {vr(Sn, 16)}")
        a(kr[1])
        a(extra[0])
        for e in ex[3:6]:
            a(e)
        a(f"v_mfma_f32_32x32x16_bf16 {vr(O, 16)}, {vr(V_V + 4)}, {vr(P + 4)}, {vr(O, 16)}")
        if q == 1:
            a(rdV(i)[1])
        a(ex[6])
        a(ex[7])
        a(cv[0])
        a(cv[1])
        a(cv[2])
        a(cv[3])
        a(ex[8])
        a(ex[9])
        if q == 0:
            a("s_waitcnt lgkmcnt(0)")
        if q == 1 and i % NB == NB - 1:
            a(advV)
        a(f"v_mfma_f32_32x32x16_bf16 {vr(O, 16)}, {vr(V_V)}, {vr(P)}, {vr(O, 16)}")
        if q == 1:
            a(rdV(i + 1)[0])
        a(extra[1])
        for e in ex[10:13]:
            a(e)
        a(f"v_smfmac_f32_16x16x64_bf16 {vr(Lr)}, {vr(V_ONE)}, {vr(P, 8)}, v{V_IDX}")
        a(extra[2])
        for e in ex[13:16]:
            a(e)
        for c in cv[4:8]:
            a(c)

    V_PR2 = V_T
    rdprog = f"ds_read_b128 {vr(V_PR)}, v{V_PW}\nds_read_b128 {vr(V_PR2)}, v{V_PW} offset:16"
    a(f"s_mov_b32 s{S_CNT}, 0")
    a(".p2align 6")
    a.label("L_p2_loop")
    dq = dma_half(0) + dma_half(1)
    for i in range(NB):
        ex0, ex1 = [], []
        if i == 1:
            ex0 = ["", f"v_add_u32 v{V_PG}, 1, v{V_PG}\ns_waitcnt vmcnt(0)\nds_write_b32 v{V_PW + 1}, v{V_PG}"]
        if i == 3:
            ex0 = ["", rdprog]
        if i == 4:
            a("s_waitcnt lgkmcnt(1)")
            a.label("L_p2_chk")
            a(f"v_min3_u32 v{V_PR}, v{V_PR}, v{V_PR+1}, v{V_PR+2}")
            a(f"v_min3_u32 v{V_PR2}, v{V_PR2}, v{V_PR2+1}, v{V_PR2+2}")
            a(f"v_min_u32 v{V_PR2}, v{V_PR2}, v{V_PR2+3}")
            a(f"v_add_u32 v{V_PR2}, 1, v{V_PR2}")
            a(f"v_min3_u32 v{V_PR}, v{V_PR}, v{V_PR+3}, v{V_PR2}")
            a(f"v_cmp_gt_u32 vcc, v{V_PG}, v{V_PR}")
            a("s_cmp_eq_u64 vcc, 0")
            a("s_cbranch_scc0 L_p2_wait")
            a.label("L_p2_go")
            a(f"s_sub_u32 s{S_T0}, s{S_CNT}, 1")
            a(f"s_cmp_lt_u32 s{S_T0}, 5")
            a("s_cselect_b64 vcc, -1, 0")
            st.loop_stamp(48, S_CNT, 1, 0)
        if i >= 4:
            def guard(x, k):
                body = x.split("\n")
                j = [n for n, ln in enumerate(body) if ln.startswith("buffer_load")][0]
                return "\n".join(body[:j] + [f"s_cbranch_vccz L_p2_skip{k}", body[j], f"L_p2_skip{k}:"] + body[j + 1:])
            ex0 = [guard(dq[2 * (i - 4)], 2 * (i - 4))]
            ex1 = [guard(dq[2 * (i - 4) + 1], 2 * (i - 4) + 1)]
        if i == NB - 2:
            a(advK)
        half_block(i, 0, ex0)
        half_block(i, 1, ex1)
    a(f"s_add_u32 s{S_CNT}, s{S_CNT}, 1")
    a(f"s_cmp_lt_u32 s{S_CNT}, 8")
    a("s_cbranch_scc1 L_p2_loop")
    for q in range(2):
        a(f"v_mov_b64 {vr(R(q)['P'], 2)}, 0")
        a(f"v_mov_b64 {vr(R(q)['P'] + 2, 2)}, 0")
    a("s_waitcnt lgkmcnt(0)")
    a("s_nop 0")
    for q in range(2):
        r = R(q)
        a(f"v_mfma_f32_32x32x16_bf16 {vr(r['O'], 16)}, {vr(V_V + 4)}, {vr(r['P'] + 4)}, {vr(r['O'], 16)}")
        a(f"v_smfmac_f32_16x16x64_bf16 {vr(r['L'])}, {vr(V_ONE)}, {vr(r['P'], 8)}, v{V_IDX}")
    a("s_nop 15")
    st.stamp(7)
    a(f"s_lshr_b32 s{S_T2}, s{S_TOKB}, 2")
    a(f"s_mul_i32 s{S_T2}, s{S_T2}, {AF_KB}")
    a(f"s_add_u32 s{S_T2}, s{S_T2}, s{S_HEAD}")
    a(f"s_lshl_b32 s{S_T2}, s{S_T2}, 13")
    a(f"s_and_b32 s{S_T1}, s{S_TOKB}, 2")
    a(f"s_lshl_b32 s{S_T1}, s{S_T1}, 11")
    a(f"s_add_u32 s{S_T2}, s{S_T2}, s{S_T1}")
    a(f"s_add_u32 s{S_T2}, s{S_T2}, {AF_BASE + AF_O * 8192}")
    def finish_q(q):
        r = R(q)
        O, P = r['O'], r['P']
        a(f"v_add_f32 v{r['L']}, v{r['L']}, v{r['L'] + 1}")
        a(f"v_rcp_f32 v{V_T}, v{r['L']}")
        a("s_nop 0")
        for i in range(16):
            a(f"v_mul_f32 v{O + i}, v{O + i}, v{V_T}")
        for d in range(8):
            a(f"v_cvt_pk_bf16_f32 v{P + d}, v{O + 2*d}, v{O + 2*d + 1}")
        a(f"buffer_store_dwordx4 {vr(P)}, v{V_OS}, {WS}, s{S_T2} offen offset:{q * 2048} sc1")
        a(f"buffer_store_dwordx4 {vr(P + 4)}, v{V_OS}, {WS}, s{S_T2} offen offset:{q * 2048 + 512} sc1")

    finish_q(0)
    finish_q(1)
    a(f"v_mov_b32 v{V_T+2}, 0x7c000000")
    for q in range(2):
        r = R(q)
        O = r['O']
        a(f"v_add_f32 v{V_T+1}, abs(v{O}), abs(v{O+1})")
        for i in range(2, 16):
            a(f"v_add_f32 v{V_T+1}, v{V_T+1}, abs(v{O+i})")
        a(f"v_cmp_lt_f32 vcc, v{V_T+1}, v{V_T+2}")
        a(f"v_cmp_gt_f32 s[36:37], s{S_BIG}, v{r['L']}")
        a("s_and_b64 vcc, vcc, s[36:37]")
        a("s_cmp_eq_u64 vcc, exec")
        a(f"s_cbranch_scc0 L_p2_slow{q}")
        a.label(f"L_p2_fin{q}")
    a("s_setprio 0")
    a("s_waitcnt vmcnt(0)")
    lds_arrive(a, SW_A, X0, "L_a_sig")
    global_arrive(a, C3, X0, "L_a_sig")
    a.label("L_a_sig")
    st.stamp(8)
    a(f"v_and_b32 v{X0}, 1, v{L}")
    a(f"v_lshlrev_b32 v{X0}, 2, v{X0}")
    a(f"v_add_u32 v{X0}, {C2}, v{X0}")
    a("s_branch L_gemm")

    a.label("L_p2_wait")
    a(f"s_add_u32 s{S_SP}, s{S_SP}, 1")
    a(f"s_cmp_gt_u32 s{S_SP}, {SPIN_LIMIT * 8}")
    a("s_cbranch_scc1 L_p2_go")
    a("s_sleep 1")
    a(rdprog)
    a("s_waitcnt lgkmcnt(0)")
    a("s_branch L_p2_chk")

    for q in range(2):
        r = R(q)
        S0, Q = r['S'][0], r['Q']
        a.label(f"L_p2_slow{q}")
        a(f"v_mov_b32 v{V_T}, 0xff800000")
        a(f"s_mov_b32 s{S_T0}, s{S_KVB}")
        a(f"s_mov_b32 s{S_CNT}, 0")
        a.label(f"L_p2_slow_max{q}")
        a(f"buffer_load_dwordx4 {vr(V_K)}, v{V_L16}, {WS}, s{S_T0} offen sc1")
        a(f"buffer_load_dwordx4 {vr(V_K + 4)}, v{V_L16}, {WS}, s{S_T0} offen offset:1024 sc1")
        a("s_waitcnt vmcnt(0)")
        a(f"v_mfma_f32_32x32x16_bf16 {vr(S0, 16)}, {vr(V_K)}, {vr(Q)}, 0")
        a(f"v_mfma_f32_32x32x16_bf16 {vr(S0, 16)}, {vr(V_K + 4)}, {vr(Q + 4)}, {vr(S0, 16)}")
        a("s_nop 15")
        rowmax(V_T, S0, init=V_T)
        a(f"s_add_u32 s{S_T0}, s{S_T0}, 4096")
        a(f"s_add_u32 s{S_CNT}, s{S_CNT}, 1")
        a(f"s_cmp_lt_u32 s{S_CNT}, 64")
        a(f"s_cbranch_scc1 L_p2_slow_max{q}")
        crosshalf_max(V_T, V_T + 1)
        for i in range(16):
            a(f"v_sub_f32 v{r['C'] + i}, 0, v{V_T}")
            a(f"v_mov_b32 v{r['O'] + i}, 0")
        for i in range(4):
            a(f"v_mov_b32 v{r['L'] + i}, 0")
        a(f"s_mov_b32 s{S_T0}, s{S_KVB}")
        a(f"s_mov_b32 s{S_CNT}, 0")
        a.label(f"L_p2_slow_pv{q}")
        a(f"buffer_load_dwordx4 {vr(V_K)}, v{V_L16}, {WS}, s{S_T0} offen sc1")
        a(f"buffer_load_dwordx4 {vr(V_K + 4)}, v{V_L16}, {WS}, s{S_T0} offen offset:1024 sc1")
        a(f"buffer_load_dwordx4 {vr(V_V)}, v{V_L16}, {WS}, s{S_T0} offen offset:2048 sc1")
        a(f"buffer_load_dwordx4 {vr(V_V + 4)}, v{V_L16}, {WS}, s{S_T0} offen offset:3072 sc1")
        a("s_waitcnt vmcnt(0)")
        a(f"v_mfma_f32_32x32x16_bf16 {vr(S0, 16)}, {vr(V_K)}, {vr(Q)}, {vr(r['C'], 16)}")
        a(f"v_mfma_f32_32x32x16_bf16 {vr(S0, 16)}, {vr(V_K + 4)}, {vr(Q + 4)}, {vr(S0, 16)}")
        a("s_nop 15")
        for k in range(16):
            a(f"v_exp_f32 v{S0 + k}, v{S0 + k}")
        a("s_nop 0")
        for d in range(8):
            a(f"v_cvt_pk_bf16_f32 v{r['P'] + d}, v{S0 + 2*d}, v{S0 + 2*d + 1}")
        a("s_nop 1")
        a(f"v_mfma_f32_32x32x16_bf16 {vr(r['O'], 16)}, {vr(V_V)}, {vr(r['P'])}, {vr(r['O'], 16)}")
        a(f"v_mfma_f32_32x32x16_bf16 {vr(r['O'], 16)}, {vr(V_V + 4)}, {vr(r['P'] + 4)}, {vr(r['O'], 16)}")
        a(f"v_smfmac_f32_16x16x64_bf16 {vr(r['L'])}, {vr(V_ONE)}, {vr(r['P'], 8)}, v{V_IDX}")
        a("s_nop 15")
        a(f"s_add_u32 s{S_T0}, s{S_T0}, 4096")
        a(f"s_add_u32 s{S_CNT}, s{S_CNT}, 1")
        a(f"s_cmp_lt_u32 s{S_CNT}, 64")
        a(f"s_cbranch_scc1 L_p2_slow_pv{q}")
        finish_q(q)
        a(f"s_branch L_p2_fin{q}")

    a.label("L_g_start")
    a(f"s_lshl_b32 s{S_T1}, s{S_KQ}, 2")
    a(f"s_add_u32 s{S_T1}, s{S_T1}, {SW_H}")
    lds_wait(a, "L_g_hw", f"s{S_T1}", 1, X0, S_SP)
    st.stamp(5)
    for k in range(8):
        a(f"ds_read_b128 {vr(4 * k)}, v{X5} offset:{k * 1024}")
    a(f"s_add_u32 s{S_SRC}, s{S_SRC}, {2 * STG}")
    a(f"s_add_u32 s{S_LDS}, s{S_LDS}, {2 * STG}")
    lds_wait(a, "L_g_dw", SW_D, 4, X0, S_SP)
    st.stamp(6)
    for x in dma_half(0) + dma_half(1):
        a(x)
    TH = int(([o[2:] for o in OPT if o.startswith("th")] or ["8"])[0])
    a(f"s_lshl_b32 s{S_T1}, s{S_WAVE}, 2")
    a(f"s_add_u32 s{S_T1}, s{S_T1}, {SW}")
    a(f"v_mov_b32 v{X0}, s{S_T1}")
    a(f"v_mov_b32 v{X1}, 99")
    st.stamp(12)
    a("s_waitcnt vmcnt(0)")
    a(f"ds_write_b32 v{X0}, v{X1}")
    st.stamp(13)
    for k in range(8):
        a(f"buffer_store_dwordx4 {vr(V_H + 4 * k)}, v{V_L16}, {WS}, s{(S_H0, S_H1)[k // 4]} offen offset:{(k % 4) * 1024} sc1")
        a(f"s_waitcnt vmcnt({TH})")
    a(f"s_sub_u32 s{S_H0}, s{S_H0}, {8 * AF_KB * 1024}")
    a(f"s_sub_u32 s{S_H1}, s{S_H1}, {8 * AF_KB * 1024}")
    for k in range(8):
        a(f"buffer_store_dwordx4 {vr(4 * k)}, v{V_L16}, {WS}, s{(S_H0, S_H1)[k // 4]} offen offset:{(k % 4) * 1024} sc1")
        a(f"s_waitcnt vmcnt({TH})")
    st.stamp(27)
    st.stamp(28)
    a("s_waitcnt vmcnt(0)")
    st.stamp(29)
    for o in OPT:
        if o.startswith("late"):
            lds_wait(a, "L_g_hold", SW, int(o[4:]), X0, S_SP)
    lds_arrive(a, SW_G, X0, "L_g_sig")
    global_arrive(a, C2, X0, "L_g_sig")
    a.label("L_g_sig")
    st.stamp(7)
    st.stamp(8)
    a(f"v_mov_b32 v{X0}, {C2}")

    a.label("L_gemm")

    def wdma(slot, i):
        x = (f"s_add_u32 m0, s{S_WL}, {slot * 4096 + i * 1024}\ns_add_u32 s{S_T1}, s{S_WSRC}, {i * 16384}\n"
             f"buffer_load_dwordx4 v{V_UA}, {sr(S_UW)}, s{S_T1} offen lds")
        if i == 3:
            x += f"\ns_add_u32 s{S_WSRC}, s{S_WSRC}, {128 * 2048}"
        return x

    def wreads(slot):
        return [f"ds_read_b64_tr_b16 {vr(BUF[slot] + 32 + q * 4 + t * 2, 2)}, v{V_UR + q} offset:{slot * 4096 + t * 2048}"
                for q in range(4) for t in range(2)]

    for slot in range(2):
        for i in range(4):
            a(wdma(slot, i))
    for i in range(0, 128, 2):
        a(f"v_mov_b64 {vr(i, 2)}, 0")
    a("s_waitcnt vmcnt(4)")
    for x in wreads(0):
        a(x)
    a("s_waitcnt lgkmcnt(0)")
    for i in range(4):
        a(wdma(0, i))
    ldc = f"buffer_load_dword v{X2}, v{X0}, {DBG}, 0 offen offset:128 sc1"
    a(ldc)
    a("s_waitcnt vmcnt(0)")
    spin(a, "L_gemm_c", "s_sleep 8\n" + ldc, X2, 1, S_SP)
    st.stamp(9)
    srd(a, S_KVD, S_WS, WS_USED)
    GA = sr(S_KVD)

    def aload(u, tt):
        x = (f"buffer_load_dwordx4 {vr(BUF[u] + tt * 4)}, v{V_L16 if tt < 4 else V_DA}, {GA}, s{S_ASRC} "
             f"offen offset:{(tt & 3) * 1024} sc1")
        if tt == 7:
            x += f"\ns_add_u32 s{S_ASRC}, s{S_ASRC}, 32768"
        return x

    a(f"v_and_b32 v{X0}, 15, v{L}")
    a(f"v_lshlrev_b32 v{X0}, 3, v{X0}")
    for tt in range(4, 8):
        a(f"buffer_load_dword v{V_G + tt}, v{X0}, {WS}, s{S_GOFF} offen offset:{tt * 128} sc1")
    for tt in range(8):
        a(aload(0, tt))
    for tt in range(4):
        a(f"buffer_load_dword v{V_G + tt}, v{X0}, {WS}, s{S_GOFF} offen offset:{tt * 128} sc1")
    for tt in range(8):
        a(aload(1, tt))
    a(".p2align 6")
    a.label("L_gemm_loop")
    gate = [o for o in OPT if o.startswith('gate')]
    if gate:
        a(f"s_cmp_eq_u32 s{S_STEPS}, {gate[0][4:]}")
        a("s_cbranch_scc0 L_gemm_ng_ok")
        lds_wait(a, "L_gemm_ng", SW_A, 4, X3, S_SP)
    a(f"s_cmp_eq_u32 s{S_STEPS}, 1")
    a(f"s_cselect_b32 s{S_KVD + 2}, 0, s{S_KVD + 2}")
    for u in range(2):
        a("s_waitcnt vmcnt(12) lgkmcnt(0)")
        rd = wreads(u ^ 1)
        for tt in range(8):
            if tt == 3:
                a("s_waitcnt lgkmcnt(0)")
            for nt in range(4):
                d = vr((tt * 4 + nt) * 4)
                a(f"v_mfma_f32_16x16x32_bf16 {d}, {vr(BUF[u] + 32 + nt * 4)}, {vr(BUF[u] + tt * 4)}, {d}")
                if tt < 2:
                    a(rd[tt * 4 + nt])
                if 3 <= tt < 7 and nt == 1:
                    a(wdma(u ^ 1, tt - 3))
            a(aload(u, tt))
    a(f"s_sub_u32 s{S_STEPS}, s{S_STEPS}, 1")
    a(f"s_cmp_lg_u32 s{S_STEPS}, 0")
    a("s_cbranch_scc1 L_gemm_loop")
    a("s_waitcnt vmcnt(0) lgkmcnt(0)")
    st.stamp(10)
    a(f"s_lshl_b32 s{S_T0}, s{S_KQ}, 15")
    a(f"v_add_u32 v{X3}, s{S_T0}, v{V_L16}")
    a(f"s_lshl_b32 s{S_T0}, s{S_KQ}, 13")
    a(f"v_add_u32 v{X4}, s{S_T0}, v{V_L16}")
    a(f"v_add_u32 v{X5}, 65536, v{X4}")

    def write_partial():
        for i in range(32):
            a(f"ds_write_b128 v{X3}, {vr(4 * i)} offset:{i * 1024}")

    def gather(dst_acc, first):
        src = [(X4, 0), (X4, 32768), (X5, 0), (X5, 32768)]
        for p in range(4):
            for i in range(8):
                a(f"ds_read_b128 {vr(32 * p + 4 * i)}, v{src[p][0]} offset:{src[p][1] + i * 1024}")
            if p in (1, 3):
                a("s_waitcnt lgkmcnt(0)")
                for i in range(0, 32, 2):
                    a(f"v_pk_add_f32 {vr(32 * p + i, 2)}, {vr(32 * p + i, 2)}, {vr(32 * (p - 1) + i, 2)}")
        for i in range(0, 32, 2):
            if first:
                a(f"v_pk_add_f32 {vr(dst_acc + i, 2)}, {vr(32 + i, 2)}, {vr(96 + i, 2)}")
            else:
                a(f"v_pk_add_f32 {vr(32 + i, 2)}, {vr(32 + i, 2)}, {vr(96 + i, 2)}")
                a(f"v_fmac_f32 v{dst_acc + i}, v{32 + i}, v{V_G + i // 16}")
                a(f"v_fmac_f32 v{dst_acc + i + 1}, v{33 + i}, v{V_G + i // 16}")

    a(f"s_cmp_lt_u32 s{S_WAVE}, 4")
    a("s_cbranch_scc0 L_g_red")
    a("s_barrier")
    write_partial()
    a("s_waitcnt lgkmcnt(0)")
    a("s_barrier")
    st.stamp(11)
    st.finish(100)
    a("s_endpgm")

    a.label("L_g_red")
    SUM = 128
    for tt in range(8):
        for i in range(16):
            a(f"v_mul_f32 v{tt * 16 + i}, v{tt * 16 + i}, v{V_G + tt}")
    a(f"v_and_b32 v{X0}, 15, v{L}")
    a(f"v_lshlrev_b32 v{X0}, 3, v{X0}")
    a(f"s_lshl_b32 s{S_T0}, s{S_KQ}, 8")
    a(f"s_add_u32 s{S_T0}, s{S_T0}, s{S_GOFF}")
    a(f"s_sub_u32 s{S_T0}, s{S_T0}, 4")
    a(f"buffer_load_dword v{V_G}, v{X0}, {WS}, s{S_T0} offen sc1")
    a(f"buffer_load_dword v{V_G + 1}, v{X0}, {WS}, s{S_T0} offen offset:128 sc1")
    lds_wait(a, "L_g_wa", SW_A, 4, X0, S_SP)

    def slice_addr(dst, src, j):
        a(f"s_cmp_gt_u32 {j}, {src}")
        a(f"s_cselect_b32 s{S_T1}, 1, 0")
        a(f"s_sub_u32 s{S_T1}, {j}, s{S_T1}")
        a(f"s_lshl_b32 s{S_T2}, {src}, 1")
        a(f"s_add_u32 s{S_T2}, s{S_T2}, s{S_T1}")
        a(f"s_add_u32 s{S_T2}, s{S_T2}, 9")
        a(f"s_cmp_eq_u32 s{S_T1}, 0")
        a(f"s_cselect_b32 s{S_T2}, {src}, s{S_T2}")
        a(f"s_lshl_b32 s{S_T2}, s{S_T2}, 13")
        a(f"v_add_u32 v{dst}, s{S_T2}, v{V_L16}")

    for j in range(4):
        slice_addr(X0, f"s{S_KQ}", j)
        a(f"s_cmp_eq_u32 s{S_KQ}, {j}")
        a(f"s_cbranch_scc1 L_g_own{j}")
        for i in range(8):
            a(f"ds_write_b128 v{X0}, {vr(32 * j + 4 * i)} offset:{i * 1024}")
        a(f"s_branch L_g_nxt{j}")
        a.label(f"L_g_own{j}")
        for i in range(0, 32, 2):
            a(f"v_mov_b64 {vr(SUM + i, 2)}, {vr(32 * j + i, 2)}")
        a.label(f"L_g_nxt{j}")
    a("s_waitcnt lgkmcnt(0)")
    lds_arrive(a, SW_R, X0, "L_g_arr")
    a.label("L_g_arr")
    lds_wait(a, "L_g_wr", SW_R, 4, X0, S_SP)
    for p in range(4):
        a(f"s_cmp_eq_u32 s{S_KQ}, {p}")
        a(f"s_cbranch_scc1 L_g_skip{p}")
        slice_addr(X0, p, f"s{S_KQ}")
        for i in range(8):
            a(f"ds_read_b128 {vr(4 * i)}, v{X0} offset:{i * 1024}")
        a("s_waitcnt lgkmcnt(0)")
        for i in range(0, 32, 2):
            a(f"v_pk_add_f32 {vr(SUM + i, 2)}, {vr(SUM + i, 2)}, {vr(i, 2)}")
        a.label(f"L_g_skip{p}")
    a("s_barrier")
    a(f"v_and_b32 v{X0}, 15, v{L}")
    a(f"s_lshl_b32 s{S_T0}, s{S_MB}, 7")
    a(f"s_lshl_b32 s{S_T1}, s{S_KQ}, 5")
    a(f"s_add_u32 s{S_T0}, s{S_T0}, s{S_T1}")
    a(f"v_add_u32 v{X0}, s{S_T0}, v{X0}")
    a(f"v_lshlrev_b32 v{X0}, 11, v{X0}")
    a(f"v_lshlrev_b32 v{X1}, 1, v{L}")
    a(f"v_and_b32 v{X1}, 32, v{X1}")
    a(f"v_add_u32 v{X0}, v{X0}, v{X1}")
    a(f"v_lshrrev_b32 v{X1}, 1, v{L}")
    a(f"v_and_b32 v{X1}, 16, v{X1}")
    a(f"v_add_u32 v{X0}, v{X0}, v{X1}")
    a(f"s_lshl_b32 s{S_T0}, s{S_NB}, 7")
    a(f"s_add_u32 s{S_T1}, s{S_T0}, {16 * 2048}")
    a("s_waitcnt vmcnt(0)")
    a("s_barrier")
    gather(SUM, False)
    P = 160
    for i in range(16):
        a(f"v_cvt_pk_bf16_f32 v{P + i}, v{SUM + 2*i}, v{SUM + 2*i + 1}")
    a("s_nop 1")
    for m in range(4):
        a(f"v_permlane16_swap_b32 v{P + 4*m}, v{P + 4*m + 2}")
        a(f"v_permlane16_swap_b32 v{P + 4*m + 1}, v{P + 4*m + 3}")
    for m in range(4):
        a(f"buffer_store_dwordx4 {vr(P + 4*m)}, v{X0}, {sr(S_OUT)}, s{S_T0 if m < 2 else S_T1} offen offset:{64 * (m & 1)}")
    if STAMPS:
        a("s_waitcnt vmcnt(0)")
    st.stamp(11)
    st.finish(100)


def main():
    global STAMPS
    if "--stamps" in sys.argv:
        STAMPS = True
        sys.argv.remove("--stamps")
    for x in list(sys.argv):
        if x.startswith("--opt="):
            OPT.update(x[6:].split(","))
            sys.argv.remove(x)
    global FLAG_TP_O
    if 'fo1' in OPT:
        FLAG_TP_O = 1
    if 'fom' in OPT:
        FLAG_TP_O = -1
    if 'fo0' in OPT:
        FLAG_TP_O = 0
    out = sys.argv[1] if len(sys.argv) > 1 else f"cdna_kernels/{NAME}.s"
    ref = open(f"cdna_kernels/{NAME}.s.ref").read().split("\n")
    head = [ln for ln in ref if ln.startswith(";") and "@launch" not in ln and "Override launch" not in ln
            and "grid=ceil" not in ln]
    a = Asm()
    a(f".globl {KNAME}")
    a(".p2align 8")
    a(f".type {KNAME},@function")
    a.label(KNAME)
    a("s_cmp_ge_u32 s2, 256")
    a("s_cbranch_scc1 L_end")
    st = Stamper(a)
    st.start()
    phase1(a, st)
    phase23(a, st)
    a.label("L_end")
    a("s_endpgm")
    a.label("L_code_end")
    txt = "\n".join(head) + "\n"
    if "list" in OPT:
        txt += f"; @launch kernel={KNAME} grid=(256,1,1) block=(512,1,1) lds=163840\n"
    else:
        txt += "; @launch grid=(256,1,1) block=(512,1,1) lds=163840\n"
    txt += DESCRIPTION
    txt += '.amdgcn_target "amdgcn-amd-amdhsa--gfx950"\n.text\n'
    txt += a.text()
    txt += f""".section .rodata,"a"
.p2align 6
.amdhsa_kernel {KNAME}
  .amdhsa_next_free_vgpr 256
  .amdhsa_next_free_sgpr 102
  .amdhsa_accum_offset 256
  .amdhsa_group_segment_fixed_size 0
  .amdhsa_kernarg_size 88
  .amdhsa_user_sgpr_count 2
  .amdhsa_user_sgpr_kernarg_segment_ptr 1
  .amdhsa_system_sgpr_workgroup_id_x 1
.end_amdhsa_kernel
"""
    open(out, "w").write(txt)


if __name__ == "__main__":
    main()
```
